```python
import torch

def _softmax(x, axis=-1):
    return torch.softmax(x, dim=axis)
def _gelu(x):
    return torch.nn.functional.gelu(x, approximate="tanh")
def _silu(x):
    return torch.nn.functional.silu(x)
def _sigmoid(x):
    return torch.sigmoid(x)
def _layernorm(x, axis=-1, eps=1e-5):
    m = x.mean(dim=axis, keepdim=True)
    v = x.var(dim=axis, keepdim=True, unbiased=False)
    return (x - m) / torch.sqrt(v + eps)
def _scatter_add(tgt, idx, src, axis=0):
    return tgt.clone().index_add_(axis, idx, src)
def _segment_sum(src, seg, n):
    out = torch.zeros((n,) + src.shape[1:], dtype=src.dtype)
    return out.index_add_(0, seg, src)
def _pad(x, pw):
    flat = tuple(v for pair in reversed(pw) for v in pair)
    return torch.nn.functional.pad(x, flat)

kernel_name = 'interleave_layers__mha_block_cached__dense_activation_gelu__decode'

def setup_inputs():

    _w = (lambda a: (lambda t: t.to(torch.bfloat16) if t.is_floating_point() else t)(torch.as_tensor(a)))
    def _A_setup():
        B, Sq, D = 2, 1, 576
        H, Sk, Dh = 32, 8192, 128
        return {
            "x": _w((lambda *s: torch.randn(*s, dtype=torch.bfloat16) * 0.1)(B, Sq, D)),
            "k_cache": _w((lambda *s: torch.randn(*s, dtype=torch.bfloat16) * 0.8)(B, H, Sk, Dh)),
            "v_cache": _w((lambda *s: torch.randn(*s, dtype=torch.bfloat16) * 3.2)(B, H, Sk, Dh)),
            "wq": _w((lambda *s: torch.randn(*s, dtype=torch.bfloat16) * 0.8)(D, H * Dh) * (D ** -0.5)),
            "wo": _w((lambda *s: torch.randn(*s, dtype=torch.bfloat16) * 3.2)(H * Dh, D) * ((H * Dh) ** -0.5)),
        }
    _A_in = _A_setup()

    def _B_setup():
        B, S, D, F = 2, 1, 576, 4608
        return {
            "x": _w((lambda *s: torch.randn(*s, dtype=torch.bfloat16) * 0.1)(B, S, D)),
            "w1": _w((lambda *s: torch.randn(*s, dtype=torch.bfloat16) * 1.6)(D, F) * (D ** -0.5)),
            "b1": _w((lambda *s: torch.randn(*s, dtype=torch.bfloat16) * 1.6)(F) * 0.01),
            "w2": _w((lambda *s: torch.randn(*s, dtype=torch.bfloat16) * 0.4)(F, D) * (F ** -0.5)),
            "b2": _w((lambda *s: torch.randn(*s, dtype=torch.bfloat16) * 0.4)(D) * 0.01),
        }
    _B_in = _B_setup()

    return {
        "A_x": _A_in["x"],
        "A_k_cache": _A_in["k_cache"],
        "A_v_cache": _A_in["v_cache"],
        "A_wq": _A_in["wq"],
        "A_wo": _A_in["wo"],
        "B_x": _B_in["x"],
        "B_w1": _B_in["w1"],
        "B_b1": _B_in["b1"],
        "B_w2": _B_in["w2"],
        "B_b2": _B_in["b2"],
    }

def reference(A_x, A_k_cache, A_v_cache, A_wq, A_wo, B_x, B_w1, B_b1, B_w2, B_b2):
    def _A_ref(x, k_cache, v_cache, wq, wo):
        B, Sq, D = x.shape
        H, Dh = 32, 128
        q = (lambda x, *d: x.permute(*d))((x @ wq).reshape(B, Sq, H, Dh), 0, 2, 1, 3)
        scores = torch.einsum("bhqd,bhkd->bhqk", q, k_cache) * (Dh ** -0.5)
        p = _softmax(scores, axis=-1)
        o = torch.einsum("bhqk,bhkd->bhqd", p, v_cache)
        return (lambda x, *d: x.permute(*d))(o, 0, 2, 1, 3).reshape(B, Sq, H * Dh) @ wo

    def _B_ref(x, w1, b1, w2, b2):
        h = torch.einsum("bsd,df->bsf", x, w1) + b1
        h = _gelu(h)
        return torch.einsum("bsf,fd->bsd", h, w2) + b2

    x = A_x
    x = x + _A_ref(_layernorm(x, axis=-1), A_k_cache, A_v_cache, A_wq, A_wo)
    x = x + _B_ref(_layernorm(x, axis=-1), B_w1, B_b1, B_w2, B_b2)
    x = x + _A_ref(_layernorm(x, axis=-1), A_k_cache, A_v_cache, A_wq, A_wo)
    x = x + _B_ref(_layernorm(x, axis=-1), B_w1, B_b1, B_w2, B_b2)
    return x
```

```python
from collections import deque
from emit import *
from layout import *

V_KOFF, V_VOFF, V_VOFF9, V_HALF, V_LDSRD, V_PUB, V_T7 = 1, 2, 3, 4, 5, 6, 7
R1 = 8
QB = R1
BV = [R1, R1 + 4]
DV = [R1 + 8, R1 + 12]
R2 = 24
DK = [R2, R2 + 4]
YR = [R2, R2 + 1]
PQ = 28
TA, TB, TC, TD = 32, 33, 34, 35
SP = {1: 36, 0: 41}
LT = [46, 50, 54, 58]
V_X0, V_X1 = 62, 63
SLOT0 = 64
S_WS = 4; S_K = 8; S_V = 12
S_TAG, S_W, S_H, S_SUB = 16, 17, 18, 19
S_BASE = {0: 20, 1: 21}
S_O18 = {0: 22, 1: 23}
S_OT = [24, 25, 26, 27]
S_C = 28
S_SPIN = 29
S_MASK = [30, 32, 34, 36]
S_M18 = 38
S_MG1 = 40
S_M = {0: 42, 1: 43}
S_L = {0: 44, 1: 45}
S_Q = 46; S_P = 47
S_T0, S_T1 = 48, 49
S_EX = 50
S_T2 = 52
LDS_SCR = 0
LDS_STAT = 2048
LDS_SLOTS = 8192
NLDS = 38
NT = 19

class Sched:
    def __init__(self, A, cfg):
        self.A = A; self.cfg = cfg
        self.items = []
        self.fifo_n = 0
        self.done = 0
        self.lg_n = 0; self.lg_done = 0
        self.slot_of = {}; self.load_idx = {}
        self.soff_cache = {}
        self.soff_rr = 0
        self.nloads = 0
    def vm_issue(self, text):
        self.A(text); idx = self.fifo_n; self.fifo_n += 1; return idx
    def vm_wait(self, idx):
        if idx < self.done: return
        n = self.fifo_n - 1 - idx
        assert n <= 63, n
        self.A("s_waitcnt vmcnt(%d)" % n)
        self.done = idx + 1
    def vm_all_done(self):
        self.done = self.fifo_n
    def lg_issue(self, text):
        self.A(text); idx = self.lg_n; self.lg_n += 1; return idx
    def lg_wait(self, idx):
        if idx < self.lg_done: return
        n = self.lg_n - 1 - idx
        assert n <= 15, n
        self.A("s_waitcnt lgkmcnt(%d)" % n)
        self.lg_done = idx + 1
    def lg_all(self):
        if self.lg_done < self.lg_n:
            self.A("s_waitcnt lgkmcnt(0)")
        self.lg_done = self.lg_n
    def soff(self, b, tile, extra=0):
        key = (b, tile, extra)
        if key in self.soff_cache: return self.soff_cache[key]
        if tile == 18 and extra == 0: return S_O18[b]
        if tile == 0 and extra == 0: return S_BASE[b]
        r = S_OT[self.soff_rr % len(S_OT)]; self.soff_rr += 1
        for k in [k for k, v in self.soff_cache.items() if v == r]: del self.soff_cache[k]
        if tile == 18:
            self.A("s_add_u32 s%d, s%d, 0x%x" % (r, S_O18[b], extra))
        else:
            self.A("s_add_u32 s%d, s%d, 0x%x" % (r, S_BASE[b], tile * 16384 + extra))
        self.soff_cache[key] = r
        return r
    def emit_load(self, p, slot, pol):
        if p[1] == "K":
            b, _, j, m = p; tile = j; imm = m * 1024; voff = V_KOFF; srd = S_K
        else:
            b, _, pi, mu, cb = p; tile = 2 * pi; imm = mu * 1024 + cb * 128; srd = S_V
            voff = V_VOFF9 if pi == 9 else V_VOFF
        polx = (" " + pol) if pol else ""
        if slot[0] == "r":
            so = self.soff(b, tile)
            t = "buffer_load_dwordx4 %s, v%d, s[%d:%d], s%d offen%s%s" % (vr(slot[1], 4), voff, srd, srd + 3, so, (" offset:%d" % imm) if imm else "", polx)
        else:
            self.A("s_add_u32 m0, s%d, 0x%x" % (S_T2, slot[1] * 1024))
            so = self.soff(b, tile, imm)
            t = "buffer_load_dwordx4 v%d, s[%d:%d], s%d offen%s lds" % (voff, srd, srd + 3, so, polx)
        self.nloads += 1
        return self.vm_issue(t)

    def run(self):
        A = self.A; cfg = self.cfg; items = self.items
        uses = [i for i, it in enumerate(items) if it[0] == "use"]
        kept = set(); loadq = deque()
        for i in uses:
            _, p, keep, fn = items[i][:4]
            if p not in kept: loadq.append((i, p))
            if keep: kept.add(p)
            else: kept.discard(p)
        free = deque([("l", s) for s in range(cfg["nlds"])] + [("r", SLOT0 + 4 * s) for s in range(cfg["nreg"])])
        if cfg.get("reg_first"):
            free = deque([("r", SLOT0 + 4 * s) for s in range(cfg["nreg"])] + [("l", s) for s in range(cfg["nlds"])])
        temps = deque(LT)
        ldsread = {}
        state = {"cap": cfg["cap0"], "pol": cfg.get("pol", "nt")}
        def issue_loads():
            while loadq and free and (self.fifo_n - self.done) < state["cap"]:
                i, p = loadq.popleft()
                slot = free.popleft()
                self.slot_of[p] = slot
                self.load_idx[p] = self.emit_load(p, slot, state["pol"])
                self.loaded_for[i] = True
        self.loaded_for = {}
        resident_use = {}
        LA = cfg.get("la", 3)
        def prefetch_lds(pos):
            cnt = 0
            for q in range(pos, min(pos + 8, len(uses))):
                ui = uses[q]
                if ui in ldsread:
                    cnt += 1; continue
                p = items[ui][1]
                if not (ui in self.loaded_for or self.kept_ok(ui)): break
                if self.slot_of[p][0] != "l": continue
                if cnt >= LA or not temps: break
                if any(items[x][0] == "code" and len(items[x]) > 2 and items[x][2] == "fence" for x in range(uses[pos], ui)): break
                self.vm_wait(self.load_idx[p])
                t = temps.popleft()
                li = self.lg_issue("ds_read_b128 %s, v%d offset:%d" % (vr(t, 4), V_LDSRD, self.slot_of[p][1] * 1024))
                ldsread[ui] = (t, li); cnt += 1
        lastkeep = {}
        self.keptset = set()
        self.kept_ok = lambda ui: items[ui][1] in self.keptset
        pos = 0
        for f in cfg.get("pre", []): f(self)
        issue_loads()
        for i, it in enumerate(items):
            if it[0] == "use":
                _, p, keep, fn = it[:4]
                assert (i in self.loaded_for) or (p in self.keptset), ("piece not loaded before use (deadlock)", i, p)
                prefetch_lds(pos)
                slot = self.slot_of[p]
                if slot[0] == "r":
                    self.vm_wait(self.load_idx[p])
                    fn(slot[1])
                else:
                    t, li = ldsread.pop(i)
                    self.lg_wait(li)
                    fn(t)
                    temps.append(t)
                if keep: self.keptset.add(p)
                else:
                    self.keptset.discard(p); free.append(slot)
                pos += 1
                issue_loads()
            elif it[0] == "code":
                it[1](self)
                issue_loads()
            elif it[0] == "drain":
                if self.fifo_n - self.done > it[1]:
                    self.vm_wait(self.fifo_n - 1 - it[1])
                issue_loads()
            elif it[0] == "loadall":
                while loadq and free:
                    n = self.fifo_n - self.done
                    tgt = max(0, state["cap"] - 4)
                    if n > tgt:
                        self.vm_wait(self.fifo_n - 1 - tgt)
                    issue_loads()
            elif it[0] == "cap":
                state["cap"] = it[1]; issue_loads()
            elif it[0] == "pol":
                state["pol"] = it[1]
        assert not loadq

def gen_setup(A):
    A.comment("attention setup")
    A("s_lshr_b32 s%d, s2, 3" % S_H)
    A("s_and_b32 s%d, s2, 7" % S_SUB)
    A("s_sub_u32 s%d, s%d, 1" % (S_SUB, S_SUB))
    A("s_mul_i32 s%d, s%d, 73" % (S_T0, S_SUB))
    A("s_add_u32 s%d, s%d, s%d" % (S_T0, S_T0, S_W))
    A("s_lshl_b32 s%d, s%d, 12" % (S_T0, S_T0))
    A("s_lshl_b32 s%d, s%d, 21" % (S_T1, S_H))
    A("s_add_u32 s%d, s%d, s%d" % (S_BASE[0], S_T0, S_T1))
    A("s_add_u32 s%d, s%d, 0x4000000" % (S_BASE[1], S_BASE[0]))
    A("s_cmp_eq_u32 s%d, 6" % S_SUB)
    A("s_cselect_b32 s%d, 2, 1" % S_T0)
    A("s_cmp_lt_u32 s%d, s%d" % (S_W, S_T0))
    A("s_cselect_b32 s%d, 1, 0" % S_T1)
    for b in (0, 1):
        A("s_add_u32 s%d, s%d, 0x%x" % (S_O18[b], S_BASE[b], 18 * 16384))
        A("s_cmp_eq_u32 s%d, 1" % S_T1)
        A("s_cselect_b32 s%d, s%d, 0x80000000" % (S_O18[b], S_O18[b]))
    for u in range(4):
        A("s_mov_b32 s%d, 0x%x" % (S_MASK[u], 0x11111111 << u))
        A("s_mov_b32 s%d, 0x%x" % (S_MASK[u] + 1, 0x11111111 << u))
    A("s_cmp_eq_u32 s%d, 1" % S_T1)
    A("s_cselect_b32 s%d, 0x44444444, 0" % S_M18)
    A("s_mov_b32 s%d, s%d" % (S_M18 + 1, S_M18))
    A("s_mov_b32 s%d, 0xcccccccc" % S_MG1)
    A("s_mov_b32 s%d, 0xcccccccc" % (S_MG1 + 1))
    A("s_mov_b32 s%d, 0x%x" % (S_C, f2u(SCALE_C)))
    A("s_lshl_b32 s%d, s%d, 9" % (S_Q, S_H))
    A("s_add_u32 s%d, s%d, 0x%x" % (S_Q, S_Q, OFF_Q))
    A("s_lshl_b32 s%d, s%d, 3" % (S_P, S_H))
    A("s_add_u32 s%d, s%d, s%d" % (S_P, S_P, S_SUB))
    A("s_lshl_b32 s%d, s%d, 11" % (S_P, S_P))
    A("s_add_u32 s%d, s%d, 0x%x" % (S_P, S_P, OFF_PART))
    A("s_mul_i32 s%d, s%d, %d" % (S_T2, S_W, NLDS * 1024))
    A("s_add_u32 s%d, s%d, %d" % (S_T2, S_T2, LDS_SLOTS))
    l = 0
    A("v_bfe_u32 v%d, v0, 2, 2" % TA)
    A("v_lshlrev_b32 v%d, 8, v%d" % (V_KOFF, TA))
    A("v_lshrrev_b32 v%d, 4, v0" % TB)
    A("v_lshl_add_u32 v%d, v%d, 6, v%d" % (V_KOFF, TB, V_KOFF))
    A("v_and_b32 v%d, 3, v0" % TC)
    A("v_lshl_add_u32 v%d, v%d, 4, v%d" % (V_KOFF, TC, V_KOFF))
    A("v_and_b32 v%d, 7, v0" % TC)
    A("v_lshlrev_b32 v%d, 4, v%d" % (TC, TC))
    A("v_lshl_add_u32 v%d, v%d, 8, v%d" % (TC, TB, TC))
    A("v_bfe_u32 v%d, v0, 3, 1" % TA)
    A("v_lshl_add_u32 v%d, v%d, 14, v%d" % (V_VOFF, TA, TC))
    A("v_lshl_add_u32 v%d, v%d, 30, v%d" % (V_VOFF9, TA, TC))
    A("v_and_b32 v%d, 1, v0" % TA)
    A("v_mov_b32 v%d, 0xffff" % TB)
    A("v_lshlrev_b32 v%d, 4, v%d" % (TC, TA))
    A("v_lshlrev_b32 v%d, v%d, v%d" % (V_HALF, TC, TB))
    A("v_lshlrev_b32 v%d, 4, v0" % V_LDSRD)
    A("v_add_u32 v%d, s%d, v%d" % (V_LDSRD, S_T2, V_LDSRD))
    A("v_bfe_u32 v%d, v0, 4, 1" % TA)
    A("v_lshlrev_b32 v%d, 5, v%d" % (V_PUB, TA))
    A("v_bfe_u32 v%d, v0, 1, 1" % TA)
    A("v_lshl_add_u32 v%d, v%d, 4, v%d" % (V_PUB, TA, V_PUB))
    A("v_lshrrev_b32 v%d, 5, v0" % TA)
    A("v_lshl_add_u32 v%d, v%d, 3, v%d" % (V_PUB, TA, V_PUB))
    A("v_bfe_u32 v%d, v0, 2, 2" % TA)
    A("v_lshl_add_u32 v%d, v%d, 1, v%d" % (V_PUB, TA, V_PUB))
    A("v_and_b32 v%d, 1, v0" % TA)
    A("v_add_u32 v%d, v%d, v%d" % (V_PUB, TA, V_PUB))
    A("s_lshl_b32 s%d, s%d, 6" % (S_T0, S_W))
    A("v_add_u32 v%d, s%d, v%d" % (V_PUB, S_T0, V_PUB))
    A("v_lshlrev_b32 v%d, 3, v%d" % (V_PUB, V_PUB))
    A("v_lshlrev_b32 v%d, 3, v0" % TA)
    A("v_add_u32 v%d, 1024, v%d" % (TA, TA))
    A("v_mov_b32 v%d, 0x7f000000" % TB)
    A("v_cmp_gt_u32 vcc, 2, v0")
    A("v_cndmask_b32 v%d, v%d, v%d, vcc" % (TA, TB, TA))
    A("s_cmp_eq_u32 s%d, 2" % S_W)
    A("s_cbranch_scc1 L_at_w2")
    A("s_cmp_eq_u32 s%d, 3" % S_W)
    A.branch("s_cbranch_scc0 L_at_wdone")
    A("v_mov_b32 v%d, v%d" % (V_PUB, TB))
    A.branch("s_branch L_at_wdone")
    A.label("L_at_w2")
    A("v_mov_b32 v%d, v%d" % (V_PUB, TA))
    A.label("L_at_wdone")

_lab = [0]
def newlab(p):
    _lab[0] += 1
    return "L_%s_%d" % (p, _lab[0])

def poll_issue(L, b):
    def f(S):
        A = S.A
        A("v_and_b32 v%d, 0xff, v%d" % (V_T7, V_KOFF))
        A("v_lshlrev_b32 v%d, 1, v%d" % (V_T7, V_T7))
        A("s_add_u32 s%d, s%d, 0x%x" % (S_T0, S_Q, (L * 2 + b) * 16384))
        S.vm_issue("buffer_load_dwordx4 %s, v%d, s[%d:%d], s%d offen sc1" % (vr(PQ, 4), V_T7, S_WS, S_WS + 3, S_T0))
        S.poll_idx = S.vm_issue("buffer_load_dwordx4 %s, v%d, s[%d:%d], s%d offen offset:16 sc1" % (vr(PQ + 4, 4), V_T7, S_WS, S_WS + 3, S_T0))
    return f

def poll_check(L, b):
    def chk(A):
        A("v_min3_u32 v%d, v%d, v%d, v%d" % (V_X0, PQ + 1, PQ + 3, PQ + 5))
        A("v_max3_u32 v%d, v%d, v%d, v%d" % (V_X1, PQ + 1, PQ + 3, PQ + 5))
        A("v_min_u32 v%d, v%d, v%d" % (V_X0, V_X0, PQ + 7))
        A("v_max_u32 v%d, v%d, v%d" % (V_X1, V_X1, PQ + 7))
        A("v_cmp_ne_u32 vcc, s%d, v%d" % (S_TAG, V_X0))
        A("v_cmp_ne_u32 s[%d:%d], s%d, v%d" % (S_EX, S_EX + 1, S_TAG, V_X1))
        A("s_or_b64 vcc, vcc, s[%d:%d]" % (S_EX, S_EX + 1))
    def f(S):
        A = S.A
        ok = newlab("qok"); retry = newlab("qretry")
        S.vm_wait(S.poll_idx)
        chk(A)
        A.branch("s_cbranch_vccz %s" % ok)
        A("s_mov_b32 s%d, 0x2000" % S_SPIN)
        A.label(retry)
        A("s_sleep 2")
        A("v_and_b32 v%d, 0xff, v%d" % (V_T7, V_KOFF))
        A("v_lshlrev_b32 v%d, 1, v%d" % (V_T7, V_T7))
        A("s_add_u32 s%d, s%d, 0x%x" % (S_T0, S_Q, (L * 2 + b) * 16384))
        A("buffer_load_dwordx4 %s, v%d, s[%d:%d], s%d offen sc1" % (vr(PQ, 4), V_T7, S_WS, S_WS + 3, S_T0))
        A("buffer_load_dwordx4 %s, v%d, s[%d:%d], s%d offen offset:16 sc1" % (vr(PQ + 4, 4), V_T7, S_WS, S_WS + 3, S_T0))
        A("s_waitcnt vmcnt(0)")
        chk(A)
        A("s_sub_u32 s%d, s%d, 1" % (S_SPIN, S_SPIN))
        A.branch("s_cbranch_scc1 %s" % ok)
        A.branch("s_cbranch_vccnz %s" % retry)
        A.label(ok)
        for m in range(4):
            for k in range(4):
                A("v_cndmask_b32_e64 v%d, 0, v%d, s[%d:%d]" % (QB + 4 * m + k, PQ + 2 * k, S_BANK[m], S_BANK[m] + 1))
    return f

S_BANK = [54, 56, 58, 60]

def gen_bank_masks(A):
    for m in range(4):
        v = (0xF << (4 * m)) * 0x00010001
        A("s_mov_b32 s%d, 0x%x" % (S_BANK[m], v))
        A("s_mov_b32 s%d, 0x%x" % (S_BANK[m] + 1, v))

def qp(a): return "quad_perm:[%d,%d,%d,%d] row_mask:0xf bank_mask:0xf" % tuple(a)

def extract(A, j, b):
    D = DK[j & 1]; u = j & 3; sp = SP[b] + (j >> 2)
    if u == 0:
        A("v_add_f32_dpp v%d, v%d, v%d %s" % (V_X0, D + 1, D + 0, qp([1] * 4)))
    else:
        A("v_add_f32_dpp v%d, v%d, v%d %s" % (V_X0, D + 0, D + 1, qp([0] * 4)))
    if u == 2:
        A("v_add_f32_dpp v%d, v%d, v%d %s" % (V_X1, D + 3, D + 2, qp([3] * 4)))
    else:
        A("v_add_f32_dpp v%d, v%d, v%d %s" % (V_X1, D + 2, D + 3, qp([2] * 4)))
    direct = (u == 0 and j < 16)
    dst = sp if direct else V_X0
    if u in (0, 1):
        A("v_add_f32_dpp v%d, v%d, v%d %s" % (dst, V_X1, V_X0, qp([3] * 4)))
    else:
        A("v_add_f32_dpp v%d, v%d, v%d %s" % (dst, V_X0, V_X1, qp([1] * 4)))
    if not direct:
        mk = S_M18 if j == 18 else S_MASK[u]
        A("v_cndmask_b32_e64 v%d, v%d, v%d, s[%d:%d]" % (sp, sp, V_X0, mk, mk + 1))

def k_phase(items, L, b, keepfn, j0=0, j1=NT, first=True, last=True):
    if first:
        items.append(("code", lambda S: S.A("v_mov_b32 v%d, 0xff800000" % (SP[b] + 4))))
    for j in range(j0, j1):
        for m in range(4):
            def fn(areg, j=j, m=m):
                def g(S_A):
                    pass
                D = DK[j & 1]
                return "v_mfma_f32_16x16x32_bf16 %s, %s, %s, %s" % (vr(D, 4), vr(areg, 4), vr(QB + 4 * m, 4), "0" if m == 0 else vr(D, 4))
            items.append(("use", (b, "K", j, m), keepfn((b, "K", j, m)), fn))
        if j > j0:
            items.append(("code", lambda S, j=j: extract(S.A, j - 1, b)))
    items.append(("code", lambda S: extract(S.A, j1 - 1, b)))

def wave_reduce(A, reg, op):
    for sh in (1, 2, 4, 8):
        A("%s_dpp v%d, v%d, v%d row_shr:%d row_mask:0xf bank_mask:0xf" % (op, reg, reg, reg, sh))
    A("%s_dpp v%d, v%d, v%d row_bcast:15 row_mask:0xa bank_mask:0xf" % (op, reg, reg, reg))
    A("%s_dpp v%d, v%d, v%d row_bcast:31 row_mask:0xc bank_mask:0xf" % (op, reg, reg, reg))

def softmax(b):
    def f(S):
        A = S.A; sp = SP[b]
        A("v_max3_f32 v%d, v%d, v%d, v%d" % (V_X0, sp, sp + 1, sp + 2))
        A("v_max3_f32 v%d, v%d, v%d, v%d" % (V_X0, V_X0, sp + 3, sp + 4))
        wave_reduce(A, V_X0, "v_max_f32")
        A("v_readlane_b32 s%d, v%d, 63" % (S_M[b], V_X0))
        A("v_mov_b32 v%d, s%d" % (V_X1, S_M[b]))
        A("v_mul_f32 v%d, s%d, v%d" % (V_X1, S_C, V_X1))
        for k in range(5):
            A("v_fma_f32 v%d, v%d, s%d, -v%d" % (sp + k, sp + k, S_C, V_X1))
        for k in range(5):
            A("v_exp_f32 v%d, v%d" % (sp + k, sp + k))
        A("v_add_f32 v%d, v%d, v%d" % (V_X0, sp, sp + 1))
        A("v_add_f32 v%d, v%d, v%d" % (V_X1, sp + 2, sp + 3))
        A("v_add_f32 v%d, v%d, v%d" % (V_X0, V_X0, sp + 4))
        A("v_add_f32 v%d, v%d, v%d" % (V_X0, V_X0, V_X1))
        for k in range(5):
            A("v_cvt_pk_bf16_f32 v%d, v%d, v%d" % (sp + k, sp + k, sp + k))
        wave_reduce(A, V_X0, "v_add_f32")
        A("v_readlane_b32 s%d, v%d, 63" % (S_L[b], V_X0))
    return f

def build_b(A, B, Y, mu):
    for rho in range(4):
        sh = 4 * ((rho - mu) & 3)
        ctl = "quad_perm:[0,1,2,3]" if sh == 0 else "row_ror:%d" % sh
        A("v_mov_b32_dpp v%d, v%d %s row_mask:0xf bank_mask:0x%x" % (B + rho, Y, ctl, 1 << rho))

def v_phase(items, L, b, keepfn):
    def zero(S):
        for r in range(8):
            S.A("v_mov_b32 v%d, 0" % (BV[0] + r))
    items.append(("code", zero))
    for pi in range(10):
        k = pi >> 1
        Y = YR[pi & 1]
        items.append(("code", lambda S, k=k, Y=Y, pi=pi: S.A("v_and_b32_dpp v%d, v%d, v%d %s" % (Y, SP[b] + k, V_HALF, qp([2, 2, 3, 3] if (pi & 1) else [0, 0, 1, 1])))))
        for mu in range(4):
            par = (pi * 4 + mu) & 1
            items.append(("code", lambda S, par=par, Y=Y, mu=mu: build_b(S.A, BV[par], Y, mu)))
            for cb in range(2):
                first = (pi == 0 and mu == 0)
                def fn(areg, par=par, cb=cb, first=first):
                    return "v_mfma_f32_16x16x32_bf16 %s, %s, %s, %s" % (vr(DV[cb], 4), vr(areg, 4), vr(BV[par], 4), "0" if first else vr(DV[cb], 4))
                p = (b, "V", pi, mu, cb)
                items.append(("use", p, keepfn(p), fn))

def g_reduce(A, D, t1, t2, R, smask):
    A("v_permlane32_swap_b32 v%d, v%d" % (D, D + 1))
    A("v_permlane32_swap_b32 v%d, v%d" % (D + 2, D + 3))
    A("v_add_f32_dpp v%d, v%d, v%d %s" % (t1, D + 1, D, qp([2, 3, 2, 3])))
    A("v_add_f32_dpp v%d, v%d, v%d %s" % (t2, D + 2, D + 3, qp([0, 1, 0, 1])))
    A("v_cndmask_b32_e64 v%d, v%d, v%d, s[%d:%d]" % (R, t1, t2, smask, smask + 1))

def combine(L, b):
    inst = L * 2 + b
    def f(S):
        A = S.A
        t = BV[0]
        S.lg_all()
        g_reduce(A, DV[0], t, t + 1, t + 2, S_MG1)
        g_reduce(A, DV[1], t + 3, t + 4, t + 5, S_MG1)
        A("s_lshl_b32 s%d, s%d, 9" % (S_T0, S_W))
        A("s_add_u32 m0, s%d, %d" % (S_T0, LDS_SCR))
        A("ds_write_addtid_b32 v%d offset:0" % (t + 2))
        A("ds_write_addtid_b32 v%d offset:256" % (t + 5))
        A("v_mov_b32 v%d, s%d" % (t, S_M[b]))
        A("v_mov_b32 v%d, s%d" % (t + 1, S_L[b]))
        A("s_lshl_b32 s%d, s%d, 3" % (S_T0, S_W))
        A("s_add_u32 s%d, s%d, %d" % (S_T0, S_T0, LDS_STAT))
        A("v_mov_b32 v%d, s%d" % (t + 3, S_T0))
        A("ds_write_b64 v%d, %s" % (t + 3, vr(t, 2)))
        A("s_waitcnt lgkmcnt(0)")
        A("s_barrier")
        st = DV[0]
        A("v_mov_b32 v%d, %d" % (t + 3, LDS_STAT))
        A("ds_read_b128 %s, v%d" % (vr(st, 4), t + 3))
        A("ds_read_b128 %s, v%d offset:16" % (vr(st + 4, 4), t + 3))
        A("s_and_b32 s%d, s%d, 1" % (S_T0, S_W))
        A("s_lshl_b32 s%d, s%d, 8" % (S_T0, S_T0))
        A("s_add_u32 m0, s%d, %d" % (S_T0, LDS_SCR))
        for w in range(4):
            A("ds_read_addtid_b32 v%d offset:%d" % (t + 4 + w, w * 512))
        A("s_waitcnt lgkmcnt(4)")
        A("v_max3_f32 v%d, v%d, v%d, v%d" % (t, st, st + 2, st + 4))
        A("v_max_f32 v%d, v%d, v%d" % (t, t, st + 6))
        for w in range(4):
            A("v_sub_f32 v%d, v%d, v%d" % (st + 2 * w, st + 2 * w, t))
            A("v_mul_f32 v%d, s%d, v%d" % (st + 2 * w, S_C, st + 2 * w))
        for w in range(4):
            A("v_exp_f32 v%d, v%d" % (st + 2 * w, st + 2 * w))
        A("v_mul_f32 v%d, v%d, v%d" % (t + 1, st, st + 1))
        for w in range(1, 4):
            A("v_fmac_f32 v%d, v%d, v%d" % (t + 1, st + 2 * w, st + 2 * w + 1))
        A("v_mul_f32 v%d, s%d, v%d" % (t, S_C, t))
        A("s_waitcnt lgkmcnt(0)")
        A("v_mul_f32 v%d, v%d, v%d" % (t + 2, st, t + 4))
        for w in range(1, 4):
            A("v_fmac_f32 v%d, v%d, v%d" % (t + 2, st + 2 * w, t + 4 + w))
        A("v_cndmask_b32_e64 v%d, v%d, v%d, s[%d:%d]" % (t, t, t + 1, S_MODD, S_MODD + 1))
        A("s_cmp_lt_u32 s%d, 2" % S_W)
        A("s_cselect_b64 vcc, -1, 0")
        A("v_cndmask_b32 v%d, v%d, v%d, vcc" % (t + 2, t, t + 2))
        A("v_mov_b32 v%d, s%d" % (t + 3, S_TAG))
        A("s_add_u32 s%d, s%d, 0x%x" % (S_T0, S_P, inst * 32 * 8 * 2048))
        S.vm_issue("buffer_store_dwordx2 %s, v%d, s[%d:%d], s%d offen sc1" % (vr(t + 2, 2), V_PUB, S_WS, S_WS + 3, S_T0))
        A("s_barrier")
        S.lg_done = S.lg_n
    return f
S_MODD = 62

S_STAMP = 64
def stamp(k):
    def f(S):
        if not S.cfg.get("stamps"): return
        A = S.A
        A("s_memrealtime s[%d:%d]" % (S_EX, S_EX + 1))
        A("s_waitcnt lgkmcnt(0)")
        A("s_mov_b32 s%d, s%d" % (S_STAMP + k, S_EX))
        S.lg_done = S.lg_n
    return f

OFF_STAMP = 0x700000
def dump_stamps(A, n):
    A("s_lshl_b32 s%d, s2, 2" % S_T0)
    A("s_add_u32 s%d, s%d, s%d" % (S_T0, S_T0, S_W))
    A("s_lshl_b32 s%d, s%d, 7" % (S_T0, S_T0))
    A("s_add_u32 s%d, s%d, 0x%x" % (S_T0, S_T0, OFF_STAMP))
    A("v_mov_b32 v1, 0")
    for k in range(n):
        A("v_mov_b32 v2, s%d" % (S_STAMP + k))
        A("buffer_store_dword v2, v1, s[%d:%d], s%d offen offset:%d" % (S_WS, S_WS + 3, S_T0, 4 * k))
        A("s_nop 1")

def gen_attn(A, cfg):
    gen_setup(A)
    gen_bank_masks(A)
    A("s_mov_b32 s%d, 0xaaaaaaaa" % S_MODD)
    A("s_mov_b32 s%d, 0xaaaaaaaa" % (S_MODD + 1))
    S = Sched(A, cfg)
    S.fifo_n = cfg.get("npf", 0)
    it = S.items
    wrap = lambda lst: None
    sched = cfg["sched"]
    sched(S, it)
    for i, x in enumerate(it):
        if x[0] == "use":
            fn = x[3]
            it[i] = ("use", x[1], x[2], (lambda areg, fn=fn: A(fn(areg))))
    S.run()
    if cfg.get("stamps"):
        dump_stamps(A, cfg["stamps"])
    A("s_waitcnt vmcnt(0)")
    A.branch("s_branch L_end")
    return S

def sched_simple(S, it):
    drop = lambda p: False
    for (L, b) in ((0, 1), (0, 0), (1, 1), (1, 0)):
        it.append(("code", poll_issue(L, b)))
        it.append(("code", poll_check(L, b), "fence"))
        k_phase(it, L, b, drop)
        it.append(("code", softmax(b)))
        v_phase(it, L, b, drop)
        it.append(("code", combine(L, b), "fence"))

def sched_pipe(S, it):
    cfg = S.cfg
    C = cfg["nlds"] + cfg["nreg"]; R = cfg.get("ring", 12)
    order = [(1, "K", j, m) for j in range(18) for m in range(4)] + [(1, "V", pi, mu, cb) for pi in range(9) for mu in range(4) for cb in range(2)]
    keep1 = set(order[:C - R])
    drop = lambda p: False
    F = "fence"
    it.append(("code", stamp(0), F))
    cap = cfg["cap0"]
    step = 4
    for _ in range(max(0, (cfg.get("npre", 76) - cap) // step)):
        it.append(("drain", cap - step))
    it.append(("code", poll_issue(0, 1)))
    it.append(("code", poll_check(0, 1), F))
    it.append(("code", stamp(1), F))
    k_phase(it, 0, 1, lambda p: p in keep1)
    it.append(("code", softmax(1)))
    it.append(("code", stamp(2), F))
    it.append(("code", poll_issue(0, 0)))
    v_phase(it, 0, 1, lambda p: p in keep1)
    it.append(("code", combine(0, 1), F))
    it.append(("code", stamp(3), F))
    it.append(("code", poll_check(0, 0), F))
    k_phase(it, 0, 0, drop)
    it.append(("code", softmax(0)))
    it.append(("code", stamp(4), F))
    it.append(("loadall",))
    it.append(("code", poll_issue(1, 1)))
    it.append(("code", poll_check(1, 1), F))
    it.append(("code", stamp(5), F))
    it.append(("cap", cfg.get("cap1", 60)))
    k_phase(it, 1, 1, drop)
    it.append(("code", softmax(1)))
    v_phase(it, 1, 1, drop)
    it.append(("code", combine(1, 1), F))
    it.append(("code", stamp(6), F))
    v_phase(it, 0, 0, lambda p: p[2] < 9)
    it.append(("code", combine(0, 0), F))
    it.append(("code", stamp(7), F))
    it.append(("loadall",))
    it.append(("code", poll_issue(1, 0)))
    it.append(("code", poll_check(1, 0), F))
    it.append(("code", stamp(8), F))
    k_phase(it, 1, 0, drop)
    it.append(("code", softmax(0)))
    it.append(("code", stamp(9), F))
    v_phase(it, 1, 0, drop)
    it.append(("code", combine(1, 0), F))
    it.append(("code", stamp(10), F))
```

```python
from emit import *
from layout import *
import math
from attn import qp, build_b, g_reduce, newlab

V_LANE, V_HALF, V_ROW8, V_N8, V_PX, V_X, V_XO, V_B1, V_B2, V_Y = 0, 1, 2, 3, 4, 5, 6, 7, 8, 9
B0 = 10
BX = 26
W0 = 30
YK = [9, 42, 43, 44, 45]
WREG0 = 48
def wq_reg(beta, cb):  return WREG0 + 4 * ((beta - 14) * 2 + cb)
def wo_reg(mu, cb):    return WREG0 + 4 * (8 + mu * 9 + cb)
def w1_reg(beta, cb):  return WREG0 + 4 * (8 + 36 + beta * 2 + cb)
def w2_reg(mu, cb):    return WREG0 + 4 * (8 + 72 + mu * 9 + cb)
SCR = 0
XH = 9216
L_WQ = 10240
L_W1L = L_WQ + 4 * 28672
L_W2X = L_W1L + 4 * 5120
assert L_W2X + 18 * 1024 == 163840
S_WS = 4; S_SRD = 8; S_OUT = 12
S_TAG, S_W, S_C, S_STEP = 16, 17, 18, 19
S_PART, S_YP1, S_YP2, S_X1, S_X2, S_QO, S_B, S_L, S_FAST, S_SPIN = 20, 21, 22, 23, 24, 25, 26, 27, 28, 29
S_MG1, S_MODD, S_ML36, S_MMU2, S_MGP = 30, 32, 34, 36, 38
S_T = list(range(40, 56))
S_EX = 56
S_P = 60
S_EPOCH = 99
OOB = 0x7f000000

def srd(A, base, ptr, size):
    A("s_mov_b32 s%d, s%d" % (base, ptr))
    A("s_and_b32 s%d, s%d, 0xffff" % (base + 1, ptr + 1))
    A("s_mov_b32 s%d, 0x%x" % (base + 2, size))
    A("s_mov_b32 s%d, 0x00020000" % (base + 3))

def bf16r(A, d, s):
    A("v_cvt_pk_bf16_f32 v%d, v%d, v%d" % (d, s, s))
    A("v_and_b32 v%d, 0xffff0000, v%d" % (d, d))

def poll(A, issue, check, first_wait=0, extra=None, sleep=0):
    ok = newlab("ok"); retry = newlab("rt")
    issue()
    if extra: extra()
    A("s_waitcnt vmcnt(%d)" % first_wait)
    check()
    A.branch("s_cbranch_vccz %s" % ok)
    A("s_mov_b32 s%d, 0x2000" % S_SPIN)
    A.label(retry)
    if sleep: A("s_sleep %d" % sleep)
    issue()
    A("s_waitcnt vmcnt(0)")
    check()
    A("s_sub_u32 s%d, s%d, 1" % (S_SPIN, S_SPIN))
    A.branch("s_cbranch_scc1 %s" % ok)
    A.branch("s_cbranch_vccnz %s" % retry)
    A.label(ok)

def tagcheck(A, regs, t0, t1):
    regs = list(regs)
    if len(regs) == 1: regs = regs * 2
    def fold(op3, op2, dst):
        r = regs[:]
        if len(r) >= 3:
            A("%s v%d, v%d, v%d, v%d" % (op3, dst, r[0], r[1], r[2])); r = r[3:]
        else:
            A("%s v%d, v%d, v%d" % (op2, dst, r[0], r[1])); r = r[2:]
        while len(r) >= 2:
            A("%s v%d, v%d, v%d, v%d" % (op3, dst, dst, r[0], r[1])); r = r[2:]
        if r: A("%s v%d, v%d, v%d" % (op2, dst, dst, r[0]))
    fold("v_min3_u32", "v_min_u32", t0)
    fold("v_max3_u32", "v_max_u32", t1)
    A("v_cmp_ne_u32 vcc, s%d, v%d" % (S_TAG, t0))
    A("v_cmp_ne_u32 s[%d:%d], s%d, v%d" % (S_EX, S_EX + 1, S_TAG, t1))
    A("s_or_b64 vcc, vcc, s[%d:%d]" % (S_EX, S_EX + 1))

def store_mode(A, texts, always_sc1=False):
    if always_sc1:
        for t in texts: A(t + " sc1")
        return
    slow = newlab("slow"); done = newlab("sdone")
    A("s_cmp_eq_u32 s%d, 1" % S_FAST)
    A("s_cbranch_scc0 %s" % slow)
    for t in texts: A(t)
    A("s_branch %s" % done)
    A.lines.append(slow + ":")
    for t in texts: A(t + " sc1")
    A.lines.append(done + ":")

def xrow_allreduce(A, z, t):
    A("v_mov_b32 v%d, v%d" % (t, z))
    A("v_permlane16_swap_b32 v%d, v%d" % (z, t))
    A("v_add_f32 v%d, v%d, v%d" % (z, z, t))
    A("v_mov_b32 v%d, v%d" % (t, z))
    A("v_permlane32_swap_b32 v%d, v%d" % (z, t))
    A("v_add_f32 v%d, v%d, v%d" % (z, z, t))

def parity_allreduce(A, z, t):
    for sh in (2, 4, 8):
        A("v_add_f32_dpp v%d, v%d, v%d row_ror:%d row_mask:0xf bank_mask:0xf" % (z, z, z, sh))
    xrow_allreduce(A, z, t)

def pubx(A, s_xoff, always_sc1=False):
    skip = newlab("pubx_skip")
    A("s_cmp_lg_u32 s%d, 0" % S_W)
    A.branch("s_cbranch_scc1 %s" % skip)
    z, t, d = W0, W0 + 1, W0 + 2
    A("v_mul_f32 v%d, v%d, v%d" % (t, V_X, V_X))
    A("v_cndmask_b32_e64 v%d, v%d, v%d, s[%d:%d]" % (z, V_X, t, S_MODD, S_MODD + 1))
    A("v_cndmask_b32_e64 v%d, 0, v%d, s[%d:%d]" % (z, z, S_ML36, S_ML36 + 1))
    parity_allreduce(A, z, t)
    A("v_cndmask_b32_e64 v%d, v%d, v%d, s[%d:%d]" % (d, z, V_X, S_ML36, S_ML36 + 1))
    A("v_mov_b32 v%d, s%d" % (d + 1, S_TAG))
    store_mode(A, ["buffer_store_dwordx2 %s, v%d, s[%d:%d], s%d offen" % (vr(d, 2), V_PX, S_WS, S_WS + 3, s_xoff)], always_sc1)
    A.label(skip)

def gath_ln(A, s_xoff, first_wait=0, extra=None):
    G = W0
    ST = W0 + 10
    t0, t1 = 46, 47
    sa, sb = S_T[0], S_T[1]
    def issue():
        A("s_mul_i32 s%d, s%d, 1152" % (sa, S_W))
        A("s_add_u32 s%d, s%d, s%d" % (sa, sa, s_xoff))
        A("s_add_u32 s%d, s%d, 4608" % (sb, s_xoff))
        A("v_lshlrev_b32 v%d, 3, v%d" % (t0, V_LANE))
        for k in range(5):
            A("buffer_load_dwordx2 %s, v%d, s[%d:%d], s%d offen offset:%d sc1" % (vr(G + 2 * k, 2), V_ROW8, S_WS, S_WS + 3, sa, 256 * k))
        A("buffer_load_dwordx2 %s, v%d, s[%d:%d], s%d offen sc1" % (vr(ST, 2), t0, S_WS, S_WS + 3, sb))
    def check():
        A("v_mov_b32 v%d, s%d" % (t0, S_TAG))
        A("v_cndmask_b32_e64 v%d, v%d, v%d, s[%d:%d]" % (42, t0, G + 9, S_MMU2, S_MMU2 + 1))
        tagcheck(A, [G + 1, G + 3, G + 5, G + 7, 42, ST + 1], t0, t1)
    poll(A, issue, check, first_wait, extra)
    parity_allreduce(A, ST, t0)
    ln_tail(A, ST, [G + 2 * k for k in range(5)], YK, 46, 47)

def ln_tail(A, z, xs, yk, mean, ex2):
    A("v_mov_b32_dpp v%d, v%d %s" % (mean, z, qp([0, 0, 2, 2])))
    A("v_mov_b32_dpp v%d, v%d %s" % (ex2, z, qp([1, 1, 3, 3])))
    A("v_mul_f32 v%d, 0x%x, v%d" % (mean, f2u(1.0 / 576), mean))
    A("v_mul_f32 v%d, 0x%x, v%d" % (ex2, f2u(1.0 / 576), ex2))
    A("v_fma_f32 v%d, -v%d, v%d, v%d" % (ex2, mean, mean, ex2))
    A("v_max_f32 v%d, 0, v%d" % (ex2, ex2))
    bf16r(A, mean, mean)
    bf16r(A, ex2, ex2)
    A("v_add_f32 v%d, 0x%x, v%d" % (ex2, f2u(1e-5), ex2))
    bf16r(A, ex2, ex2)
    A("v_sqrt_f32 v%d, v%d" % (ex2, ex2))
    bf16r(A, ex2, ex2)
    A("v_rcp_f32 v%d, v%d" % (ex2, ex2))
    for x in xs: A("v_sub_f32 v%d, v%d, v%d" % (x, x, mean))
    for x in xs: A("v_cvt_pk_bf16_f32 v%d, v%d, v%d" % (x, x, x))
    for x in xs: A("v_and_b32 v%d, 0xffff0000, v%d" % (x, x))
    for x in xs: A("v_mul_f32 v%d, v%d, v%d" % (x, x, ex2))
    for x in xs: A("v_cvt_pk_bf16_f32 v%d, v%d, v%d" % (x, x, x))
    for x, y in zip(xs, yk): A("v_and_b32 v%d, v%d, v%d" % (y, x, V_HALF))

class LdsPipe:
    def __init__(self, A, reads, temps, depth=None):
        self.A = A; self.reads = reads; self.temps = temps; self.n = 0; self.used = 0
        self.depth = depth or len(temps)
    def fill(self):
        while self.n < len(self.reads) and self.n - self.used < self.depth:
            a, off = self.reads[self.n]
            self.A("ds_read_b128 %s, v%d offset:%d" % (vr(self.temps[self.n % len(self.temps)], 4), a, off))
            self.n += 1
    def get(self):
        out = self.n - 1 - self.used
        self.A("s_waitcnt lgkmcnt(%d)" % out)
        t = self.temps[self.used % len(self.temps)]
        self.used += 1
        return t

def mfma(A, D, a, b, first):
    A("v_mfma_f32_16x16x32_bf16 %s, %s, %s, %s" % (vr(D, 4), vr(a, 4), vr(b, 4), "0" if first else vr(D, 4)))

def zero_b(A, lo, hi):
    for r in range(lo, hi): A("v_mov_b32 v%d, 0" % r)

def qproj(A, s_qoff, YK=YK):
    D = [30, 34]; t1, t2, R0, R1 = 38, 39, 40, 41
    LTMP = [18, 22, 26]; va = 46
    A("s_barrier")
    zero_b(A, B0, B0 + 8)
    A("s_mul_i32 s%d, s%d, 28672" % (S_T[0], S_W))
    A("s_add_u32 s%d, s%d, %d" % (S_T[0], S_T[0], L_WQ))
    A("v_lshlrev_b32 v%d, 4, v%d" % (va, V_LANE))
    A("v_add_u32 v%d, s%d, v%d" % (va, S_T[0], va))
    P = LdsPipe(A, [(va, i * 1024) for i in range(28)], LTMP)
    P.fill()
    for beta in range(18):
        B = B0 + 4 * (beta & 1)
        build_b(A, B, YK[beta >> 2], beta & 3)
        for cb in range(2):
            if beta < 14:
                a = P.get()
            else:
                a = wq_reg(beta, cb)
            mfma(A, D[cb], a, B, beta == 0)
            if beta < 14: P.fill()
    g_reduce(A, D[0], t1, t2, R0, S_MG1)
    g_reduce(A, D[1], t1, t2, R1, S_MG1)
    A("s_lshl_b32 s%d, s%d, 9" % (S_T[0], S_W))
    A("s_add_u32 m0, s%d, %d" % (S_T[0], SCR))
    A("ds_write_addtid_b32 v%d offset:0" % R0)
    A("ds_write_addtid_b32 v%d offset:256" % R1)
    A("s_waitcnt lgkmcnt(0)")
    A("s_barrier")
    skip = newlab("q_skip")
    A("s_cmp_ge_u32 s%d, 2" % S_W)
    A.branch("s_cbranch_scc1 %s" % skip)
    A("s_lshl_b32 s%d, s%d, 8" % (S_T[0], S_W))
    A("s_add_u32 m0, s%d, %d" % (S_T[0], SCR))
    for w in range(4):
        A("ds_read_addtid_b32 v%d offset:%d" % (30 + w, w * 512))
    A("v_lshrrev_b32 v%d, 1, v%d" % (36, V_N8))
    A("v_add_u32 v%d, s%d, v%d" % (36, S_T[0], 36))
    A("v_mov_b32 v%d, %d" % (37, 0))
    A("v_mov_b32 v%d, 0x%x" % (37, OOB))
    A("v_cndmask_b32_e64 v%d, v%d, v%d, s[%d:%d]" % (36, 36, 37, S_MODD, S_MODD + 1))
    A("s_waitcnt lgkmcnt(0)")
    A("v_add_f32 v%d, v%d, v%d" % (30, 30, 31))
    A("v_add_f32 v%d, v%d, v%d" % (32, 32, 33))
    A("v_add_f32 v%d, v%d, v%d" % (30, 30, 32))
    A("v_mov_b32_dpp v%d, v%d %s" % (31, 30, qp([1, 0, 3, 2])))
    A("v_cvt_pk_bf16_f32 v%d, v%d, v%d" % (32, 30, 31))
    A("v_mov_b32 v%d, s%d" % (33, S_TAG))
    A("buffer_store_dwordx2 %s, v%d, s[%d:%d], s%d offen sc1" % (vr(32, 2), 36, S_WS, S_WS + 3, s_qoff))
    A.label(skip)

def proj576(A, wreg, s_yp, ext=False):
    D = [30, 34]; t1, t2, R = 38, 39, 40
    LTMP = [44]; va = 43
    A("s_lshl_b32 s%d, s%d, 8" % (S_T[0], S_W))
    if ext:
        A("s_lshr_b32 s%d, s%d, 1" % (S_T[1], S_W))
        A("s_mul_i32 s%d, s%d, 9216" % (S_T[1], S_T[1]))
        A("s_add_u32 s%d, s%d, %d" % (S_T[1], S_T[1], L_W2X))
        A("v_lshlrev_b32 v%d, 4, v%d" % (va, V_LANE))
        A("v_add_u32 v%d, s%d, v%d" % (va, S_T[1], va))
        P = LdsPipe(A, [(va, i * 1024) for i in range(9)], LTMP)
        P.fill()
    A("s_add_u32 m0, s%d, %d" % (S_T[0], SCR))
    def finish(cb):
        g_reduce(A, D[cb & 1], t1, t2, R, S_MG1)
        A("ds_write_addtid_b32 v%d offset:%d" % (R, cb * 1024))
    for cb in range(9):
        for mu in range(4):
            mfma(A, D[cb & 1], wreg(mu, cb), B0 + 4 * mu, mu == 0)
        if ext:
            A("s_waitcnt lgkmcnt(0)")
            a = LTMP[0]
            mfma(A, D[cb & 1], a, BX, False)
            if cb < 8:
                A("ds_read_b128 %s, v%d offset:%d" % (vr(a, 4), va, (cb + 1) * 1024))
        if cb > 0: finish(cb - 1)
    finish(8)
    A("s_waitcnt lgkmcnt(0)")
    A("s_barrier")
    A("s_lshl_b32 s%d, s%d, 10" % (S_T[0], S_W))
    A("s_add_u32 m0, s%d, %d" % (S_T[0], SCR))
    for blk in range(3):
        for w in range(4):
            A("ds_read_addtid_b32 v%d offset:%d" % (30 + 4 * blk + w, blk * 4096 + w * 256))
    A("s_mul_i32 s%d, s%d, 4608" % (S_T[1], S_C))
    A("s_add_u32 s%d, s%d, s%d" % (S_T[1], S_T[1], s_yp))
    A("s_lshl_b32 s%d, s%d, 9" % (S_T[2], S_W))
    A("s_add_u32 s%d, s%d, s%d" % (S_T[1], S_T[1], S_T[2]))
    A("s_add_u32 s%d, s%d, 4096" % (S_T[2], S_T[1]))
    A("s_cmp_eq_u32 s%d, 0" % S_W)
    A("s_cselect_b32 s%d, s%d, 0x%x" % (S_T[2], S_T[2], OOB))
    for blk in range(3):
        A("s_waitcnt lgkmcnt(%d)" % (8 - 4 * blk))
        r = 30 + 4 * blk
        A("v_add_f32 v%d, v%d, v%d" % (r, r, r + 1))
        A("v_add_f32 v%d, v%d, v%d" % (r + 2, r + 2, r + 3))
        A("v_add_f32 v%d, v%d, v%d" % (r, r, r + 2))
        A("v_mov_b32 v%d, s%d" % (r + 1, S_TAG))
    st = []
    for blk in range(3):
        r = 30 + 4 * blk
        so = S_T[2] if blk == 2 else S_T[1]
        st.append("buffer_store_dwordx2 %s, v%d, s[%d:%d], s%d offen%s" % (vr(r, 2), V_N8, S_WS, S_WS + 3, so, " offset:2048" if blk == 1 else ""))
    store_mode(A, st)
    A("s_barrier")

def oproj(A):
    T = 30; ST = 44; t = [26, 27, 28, 29]
    sa = S_T[0:4]
    zero_b(A, B0, B0 + 16)
    def issue():
        A("s_lshl_b32 s%d, s%d, 8" % (sa[0], S_W))
        A("s_add_u32 s%d, s%d, s%d" % (sa[0], sa[0], S_PART))
        for i in range(1, 4):
            A("s_add_u32 s%d, s%d, %d" % (sa[i], sa[0], 4096 * i))
        A("v_and_b32 v%d, 7, v%d" % (t[0], V_LANE))
        A("v_min_u32 v%d, 6, v%d" % (t[0], t[0]))
        A("v_lshlrev_b32 v%d, 11, v%d" % (t[0], t[0]))
        A("buffer_load_dwordx4 %s, v%d, s[%d:%d], s%d offen offset:1024 sc1" % (vr(ST, 4), t[0], S_WS, S_WS + 3, S_PART))
        for s in range(7):
            A("buffer_load_dwordx2 %s, v%d, s[%d:%d], s%d offen%s sc1" % (vr(T + 2 * s, 2), V_ROW8, S_WS, S_WS + 3, sa[s >> 1], " offset:2048" if (s & 1) else ""))
    def check():
        tagcheck(A, [T + 2 * s + 1 for s in range(7)] + [ST + 1, ST + 3], t[0], t[1])
    poll(A, issue, check, 0, None, sleep=1)
    m, Lr = ST, ST + 2
    A("v_mov_b32 v%d, 0xff800000" % t[0])
    A("v_cndmask_b32_e64 v%d, v%d, v%d, s[%d:%d]" % (m, m, t[0], S_M7, S_M7 + 1))
    A("v_mov_b32 v%d, v%d" % (t[1], m))
    for sh in (1, 2, 4):
        A("v_max_f32_dpp v%d, v%d, v%d row_ror:%d row_mask:0xf bank_mask:0xf" % (t[1], t[1], t[1], sh))
    A("v_sub_f32 v%d, v%d, v%d" % (m, m, t[1]))
    A("v_exp_f32 v%d, v%d" % (m, m))
    A("v_mul_f32 v%d, v%d, v%d" % (Lr, m, Lr))
    for sh in (1, 2, 4):
        A("v_add_f32_dpp v%d, v%d, v%d row_ror:%d row_mask:0xf bank_mask:0xf" % (Lr, Lr, Lr, sh))
    A("v_rcp_f32 v%d, v%d" % (Lr, Lr))
    A("v_mul_f32 v%d, v%d, v%d" % (m, m, Lr))
    o = t[2]
    A("v_mul_f32_dpp v%d, v%d, v%d row_newbcast:0 row_mask:0xf bank_mask:0xf" % (o, m, T))
    for s in range(1, 7):
        A("v_fmac_f32_dpp v%d, v%d, v%d row_newbcast:%d row_mask:0xf bank_mask:0xf" % (o, m, T + 2 * s, s))
    A("v_cvt_pk_bf16_f32 v%d, v%d, v%d" % (o, o, o))
    A("v_and_b32 v%d, v%d, v%d" % (V_Y, o, V_HALF))
    for mu in range(4):
        build_b(A, B0 + 4 * mu, V_Y, mu)
    A("s_barrier")
    proj576(A, wo_reg, S_YP1, ext=False)
S_M7 = 76

def red(A, s_yp, bias):
    L1 = 30; L2 = 34; a1, a2, t0, t1 = 36, 37, 38, 39
    so = S_T[0]
    def issue():
        A("s_mul_i32 s%d, s%d, %d" % (so, S_W, 8 * 4608))
        A("s_add_u32 s%d, s%d, s%d" % (so, so, s_yp))
        A("s_mul_i32 s%d, s%d, 144" % (S_T[1], S_C))
        A("s_add_u32 s%d, s%d, s%d" % (so, so, S_T[1]))
        A("v_lshrrev_b32 v%d, 3, v%d" % (t0, V_LANE))
        A("v_mul_u32_u24 v%d, 4608, v%d" % (t0, t0))
        A("v_and_b32 v%d, 7, v%d" % (t1, V_LANE))
        A("v_lshl_add_u32 v%d, v%d, 4, v%d" % (a1, t1, t0))
        A("v_and_b32 v%d, 1, v%d" % (t1, V_LANE))
        A("v_lshl_add_u32 v%d, v%d, 3, v%d" % (a2, t1, t0))
        A("buffer_load_dwordx4 %s, v%d, s[%d:%d], s%d offen sc1" % (vr(L1, 4), a1, S_WS, S_WS + 3, so))
        A("buffer_load_dwordx2 %s, v%d, s[%d:%d], s%d offen offset:128 sc1" % (vr(L2, 2), a2, S_WS, S_WS + 3, so))
    def check():
        tagcheck(A, [L1 + 1, L1 + 3, L2 + 1], t0, t1)
    poll(A, issue, check)
    A("v_lshrrev_b32 v%d, 3, v%d" % (t0, V_LANE))
    A("s_lshl_b32 s%d, s%d, 3" % (so, S_W))
    A("v_add_u32 v%d, s%d, v%d" % (t0, so, t0))
    A("v_lshlrev_b32 v%d, 2, v%d" % (t0, t0))
    A("v_and_b32 v%d, 7, v%d" % (t1, V_LANE))
    A("v_mul_u32_u24 v%d, 288, v%d" % (a1, t1))
    A("v_add_u32 v%d, v%d, v%d" % (a1, a1, t0))
    A("v_and_b32 v%d, 1, v%d" % (t1, V_LANE))
    A("v_mul_u32_u24 v%d, 144, v%d" % (a2, t1))
    A("v_add_u32 v%d, v%d, v%d" % (a2, a2, t0))
    A("ds_write_b32 v%d, v%d offset:%d" % (a1, L1, SCR))
    A("ds_write_b32 v%d, v%d offset:%d" % (a1, L1 + 2, SCR + 144))
    A("ds_write_b32 v%d, v%d offset:%d" % (a2, L2, SCR + 16 * 144))
    A("s_waitcnt lgkmcnt(0)")
    A("s_barrier")
    skip = newlab("red_skip")
    A("s_cmp_lg_u32 s%d, 0" % S_W)
    A.branch("s_cbranch_scc1 %s" % skip)
    A("v_lshrrev_b32 v%d, 1, v%d" % (t0, V_LANE))
    A("v_mul_u32_u24 v%d, 144, v%d" % (t0, t0))
    A("v_and_b32 v%d, 1, v%d" % (t1, V_LANE))
    A("v_lshl_add_u32 v%d, v%d, 6, v%d" % (t0, t1, t0))
    Q = 30
    tt = 46
    A("v_mov_b32 v%d, v%d" % (tt, t0))
    for k in range(4):
        A("ds_read_b128 %s, v%d offset:%d" % (vr(Q + 4 * k, 4), tt, SCR + 16 * k))
    for k in range(4):
        A("s_waitcnt lgkmcnt(%d)" % (3 - k))
        r = Q + 4 * k
        A("v_add_f32 v%d, v%d, v%d" % (r, r, r + 1))
        A("v_add_f32 v%d, v%d, v%d" % (r + 2, r + 2, r + 3))
        A("v_add_f32 v%d, v%d, v%d" % (r, r, r + 2))
    A("v_add_f32 v%d, v%d, v%d" % (Q, Q, Q + 4))
    A("v_add_f32 v%d, v%d, v%d" % (Q + 8, Q + 8, Q + 12))
    A("v_add_f32 v%d, v%d, v%d" % (Q, Q, Q + 8))
    A("v_add_f32_dpp v%d, v%d, v%d %s" % (Q + 1, Q, Q, qp([1, 0, 3, 2])))
    bf16r(A, Q + 1, Q + 1)
    if bias:
        A("v_add_f32 v%d, v%d, v%d" % (Q + 1, Q + 1, V_B2))
        bf16r(A, Q + 1, Q + 1)
    A("v_add_f32 v%d, v%d, v%d" % (V_X, V_X, Q + 1))
    bf16r(A, V_X, V_X)
    A.label(skip)

def mlp(A):
    D = [30, 34]; DL = 38; RL = 46; t1, t2 = 47, 9
    LTMP = [18, 22, 26]
    A("s_barrier")
    zero_b(A, B0, B0 + 8)
    va = 47
    A("s_mul_i32 s%d, s%d, 5120" % (S_T[0], S_W))
    A("s_add_u32 s%d, s%d, %d" % (S_T[0], S_T[0], L_W1L))
    A("v_lshlrev_b32 v%d, 4, v%d" % (va, V_LANE))
    A("v_add_u32 v%d, s%d, v%d" % (va, S_T[0], va))
    order = [b for q in range(4) for b in range(18) if (b & 3) == q]
    P = LdsPipe(A, [(va, (b >> 2) * 1024) for b in order], LTMP)
    P.fill()
    pend = None
    def extract_left(q):
        A("v_add_f32_dpp v%d, v%d, v%d %s" % (DL, DL + 2, DL, qp([2, 3, 2, 3])))
        A("v_add_f32_dpp v%d, v%d, v%d %s" % (DL + 3, DL + 1, DL + 3, qp([0, 1, 0, 1])))
        A("v_cndmask_b32_e64 v%d, v%d, v%d, s[%d:%d]" % (DL, DL, DL + 3, S_MG1, S_MG1 + 1))
        A("v_mov_b32_dpp v%d, v%d quad_perm:[0,1,2,3] row_mask:0x%x bank_mask:0xf" % (RL, DL, 1 << q))
    for n, beta in enumerate(order):
        B = B0 + 4 * (n & 1)
        q = beta & 3
        newq = (n == 0 or (order[n - 1] & 3) != q)
        build_b(A, B, YK[beta >> 2], q)
        mfma(A, D[0], w1_reg(beta, 0), B, n == 0)
        mfma(A, D[1], w1_reg(beta, 1), B, n == 0)
        if newq and n > 0:
            extract_left(order[n - 1] & 3)
        a = P.get()
        mfma(A, DL, a, B, newq)
        P.fill()
    extract_left(3)
    R0, R1, u1, u2 = 42, 43, 44, 45
    g_reduce(A, D[0], u1, u2, R0, S_MG1)
    g_reduce(A, D[1], u1, u2, R1, S_MG1)
    A("s_mul_i32 s%d, s%d, 768" % (S_T[0], S_W))
    A("s_add_u32 m0, s%d, %d" % (S_T[0], SCR))
    A("ds_write_addtid_b32 v%d offset:0" % R0)
    A("ds_write_addtid_b32 v%d offset:256" % R1)
    A("ds_write_addtid_b32 v%d offset:512" % RL)
    xa = 47
    A("v_lshrrev_b32 v%d, 1, v%d" % (xa, V_N8))
    A("s_lshl_b32 s%d, s%d, 8" % (S_T[1], S_W))
    A("v_add_u32 v%d, s%d, v%d" % (xa, S_T[1], xa))
    A("v_bfe_u32 v%d, v%d, 1, 1" % (u1, V_LANE))
    A("v_lshlrev_b32 v%d, 5, v%d" % (u1, u1))
    A("v_bfe_u32 v%d, v%d, 2, 2" % (u2, V_LANE))
    A("v_lshl_add_u32 v%d, v%d, 3, v%d" % (u1, u2, u1))
    A("v_and_b32 v%d, 1, v%d" % (u2, V_LANE))
    A("v_lshl_add_u32 v%d, v%d, 2, v%d" % (u1, u2, u1))
    A("v_add_u32 v%d, 512, v%d" % (u1, u1))
    A("s_cmp_lt_u32 s%d, 2" % S_W)
    A("s_cselect_b64 vcc, -1, 0")
    A("v_cndmask_b32 v%d, v%d, v%d, vcc" % (xa, u1, xa))
    zero_b(A, 18, 30)
    A("s_waitcnt lgkmcnt(0)")
    A("s_barrier")
    A("s_min_u32 s%d, s%d, 2" % (S_T[0], S_W))
    A("s_lshl_b32 s%d, s%d, 8" % (S_T[0], S_T[0]))
    A("s_add_u32 m0, s%d, %d" % (S_T[0], SCR))
    for w in range(4):
        A("ds_read_addtid_b32 v%d offset:%d" % (30 + w, w * 768))
    A("s_waitcnt lgkmcnt(0)")
    A("v_add_f32 v%d, v%d, v%d" % (30, 30, 31))
    A("v_add_f32 v%d, v%d, v%d" % (32, 32, 33))
    A("v_add_f32 v%d, v%d, v%d" % (30, 30, 32))
    A("v_mov_b32 v%d, v%d" % (31, 30))
    xrow_allreduce(A, 31, 32)
    A("s_cmp_lt_u32 s%d, 2" % S_W)
    A("s_cselect_b64 vcc, -1, 0")
    A("v_cndmask_b32 v%d, v%d, v%d, vcc" % (30, 31, 30))
    bf16r(A, 30, 30)
    A("v_add_f32 v%d, v%d, v%d" % (30, 30, V_B1))
    bf16r(A, 30, 30)
    k = math.sqrt(2.0 / math.pi); a = -2.0 * k * math.log2(math.e); b = a * 0.044715
    A("v_mul_f32 v%d, v%d, v%d" % (31, 30, 30))
    A("v_mov_b32 v%d, 0x%x" % (32, f2u(a)))
    A("v_fmac_f32 v%d, 0x%x, v%d" % (32, f2u(b), 31))
    A("v_mul_f32 v%d, v%d, v%d" % (32, 32, 30))
    A("v_exp_f32 v%d, v%d" % (32, 32))
    A("v_add_f32 v%d, 1.0, v%d" % (32, 32))
    A("v_rcp_f32 v%d, v%d" % (32, 32))
    A("v_mul_f32 v%d, v%d, v%d" % (30, 30, 32))
    A("v_cvt_pk_bf16_f32 v%d, v%d, v%d" % (30, 30, 30))
    A("ds_write_b32 v%d, v%d offset:%d" % (xa, 30, XH))
    A("v_lshrrev_b32 v%d, 1, v%d" % (31, V_ROW8))
    A("s_lshl_b32 s%d, s%d, 7" % (S_T[0], S_W))
    A("v_add_u32 v%d, s%d, v%d" % (32, S_T[0], 31))
    A("s_lshr_b32 s%d, s%d, 1" % (S_T[0], S_W))
    A("s_lshl_b32 s%d, s%d, 5" % (S_T[0], S_T[0]))
    A("v_add_u32 v%d, s%d, v%d" % (33, S_T[0], 31))
    A("s_waitcnt lgkmcnt(0)")
    A("s_barrier")
    A("ds_read_b32 v%d, v%d offset:%d" % (34, 32, XH))
    A("ds_read_b32 v%d, v%d offset:%d" % (35, 33, XH + 512))
    A("s_waitcnt lgkmcnt(0)")
    A("v_and_b32 v%d, v%d, v%d" % (V_Y, 34, V_HALF))
    A("v_and_b32 v%d, v%d, v%d" % (35, 35, V_HALF))
    A("v_cndmask_b32_e64 v%d, 0, v%d, s[%d:%d]" % (35, 35, S_MGP, S_MGP + 1))
    for mu in range(4):
        build_b(A, B0 + 4 * mu, V_Y, mu)
    build_b(A, BX, 35, 0)
    proj576(A, w2_reg, S_YP2, ext=True)

class WLoader:
    VOFF = 26; TT = (27, 28)
    def __init__(self, A):
        self.A = A; self.list = []; self.pos = 0; self.cur_srd = None
    def add(self, mat, kind, sbase, off, dest):
        self.list.append((mat, kind, sbase, off, dest))
    def voff(self, kind):
        A = self.A; v = self.VOFF; t0, t1 = self.TT
        if kind == "L":
            A("v_bfe_u32 v%d, v0, 2, 2" % t0)
            A("v_lshlrev_b32 v%d, 3, v%d" % (t0, t0))
            A("v_lshrrev_b32 v%d, 4, v0" % t1)
            A("v_lshl_add_u32 v%d, v%d, 1, v%d" % (t0, t1, t0))
            A("v_bfe_u32 v%d, v0, 1, 1" % t1)
            A("v_add_u32 v%d, v%d, v%d" % (t0, t0, t1))
            A("v_mul_u32_u24 v%d, 9216, v%d" % (v, t0))
            A("v_and_b32 v%d, 1, v0" % t1)
            A("v_lshl_add_u32 v%d, v%d, 4, v%d" % (v, t1, v))
        else:
            A("v_lshrrev_b32 v%d, 4, v0" % t0)
            A("v_bfe_u32 v%d, v0, 3, 1" % t1)
            A("v_lshl_add_u32 v%d, v%d, 1, v%d" % (t0, t0, t1))
            A("v_mul_u32_u24 v%d, %d, v%d" % (v, kind, t0))
            A("v_and_b32 v%d, 7, v0" % t1)
            A("v_lshl_add_u32 v%d, v%d, 4, v%d" % (v, t1, v))
    def issue(self, n):
        A = self.A
        sizes = {"wq": (S_P + 2, 4718592), "wo": (S_P + 4, 4718592), "w1": (S_P + 6, 5308416), "w2": (S_P + 10, 5308416)}
        curk = None
        for _ in range(n):
            if self.pos >= len(self.list): return
            mat, kind, sbase, off, dest = self.list[self.pos]; self.pos += 1
            if mat != self.cur_srd:
                srd(A, S_SRD, *sizes[mat]); self.cur_srd = mat
            if kind != curk:
                self.voff(kind); curk = kind
            if dest[0] == "r":
                A("s_add_u32 s%d, s%d, 0x%x" % (S_T[8], sbase, off))
                A("buffer_load_dwordx4 %s, v%d, s[%d:%d], s%d offen nt" % (vr(dest[1], 4), self.VOFF, S_SRD, S_SRD + 3, S_T[8]))
            else:
                A("s_add_u32 m0, s%d, 0x%x" % (dest[1], dest[2]))
                A("s_add_u32 s%d, s%d, 0x%x" % (S_T[8], sbase, off))
                A("buffer_load_dwordx4 v%d, s[%d:%d], s%d offen%s lds" % (self.VOFF, S_SRD, S_SRD + 3, S_T[8], "" if kind == "L" else " nt"))
    def left(self): return len(self.list) - self.pos

def gen_chain(A, cfg):
    A.comment("chain setup")
    A("s_lshr_b32 s%d, s2, 3" % S_C)
    A("s_load_dwordx2 s[%d:%d], s[0:1], 0" % (S_P, S_P + 1))
    A("s_load_dwordx4 s[%d:%d], s[0:1], 24" % (S_P + 2 + 2, S_P + 2 + 5) if False else "s_load_dwordx2 s[%d:%d], s[0:1], 24" % (S_P + 2, S_P + 3))
    A("s_load_dwordx2 s[%d:%d], s[0:1], 32" % (S_P + 4, S_P + 5))
    A("s_load_dwordx2 s[%d:%d], s[0:1], 48" % (S_P + 6, S_P + 7))
    A("s_load_dwordx2 s[%d:%d], s[0:1], 56" % (S_P + 8, S_P + 9))
    A("s_load_dwordx2 s[%d:%d], s[0:1], 64" % (S_P + 10, S_P + 11))
    A("s_load_dwordx2 s[%d:%d], s[0:1], 72" % (S_P + 12, S_P + 13))
    A("s_load_dwordx2 s[%d:%d], s[0:1], 80" % (S_P + 14, S_P + 15))
    def m64(s, v):
        A("s_mov_b32 s%d, 0x%x" % (s, v & 0xffffffff)); A("s_mov_b32 s%d, 0x%x" % (s + 1, (v >> 32) & 0xffffffff))
    m64(S_MG1, 0xcccccccccccccccc); m64(S_MODD, 0xaaaaaaaaaaaaaaaa); m64(S_ML36, (1 << 36) - 1)
    m64(S_MMU2, 0x00ff00ff00ff00ff); m64(S_M7, 0x8080808080808080); m64(S_ML32, 0xffffffff)
    A("s_and_b32 s%d, s%d, 1" % (S_T[0], S_W))
    A("s_cmp_eq_u32 s%d, 1" % S_T[0])
    A("s_mov_b32 s%d, 0x33333333" % S_MGP)
    A("s_cselect_b32 s%d, 0xcccccccc, s%d" % (S_MGP, S_MGP))
    A("s_mov_b32 s%d, s%d" % (S_MGP + 1, S_MGP))
    A("s_mov_b32 s%d, 0" % S_FAST)
    t0, t1, t2, t3 = 30, 31, 32, 33
    A("v_and_b32 v%d, 1, v0" % t0)
    A("v_lshlrev_b32 v%d, 4, v%d" % (t0, t0))
    A("v_mov_b32 v%d, 0xffff" % t1)
    A("v_lshlrev_b32 v%d, v%d, v%d" % (V_HALF, t0, t1))
    A("v_bfe_u32 v%d, v0, 2, 2" % t0)
    A("v_lshlrev_b32 v%d, 3, v%d" % (V_ROW8, t0))
    A("v_lshrrev_b32 v%d, 4, v0" % t0)
    A("v_lshl_add_u32 v%d, v%d, 1, v%d" % (V_ROW8, t0, V_ROW8))
    A("v_bfe_u32 v%d, v0, 1, 1" % t0)
    A("v_add_u32 v%d, v%d, v%d" % (V_ROW8, V_ROW8, t0))
    A("v_lshlrev_b32 v%d, 3, v%d" % (V_ROW8, V_ROW8))
    A("v_bfe_u32 v%d, v0, 4, 1" % t0)
    A("v_lshlrev_b32 v%d, 5, v%d" % (V_N8, t0))
    A("v_bfe_u32 v%d, v0, 1, 1" % t0)
    A("v_lshl_add_u32 v%d, v%d, 4, v%d" % (V_N8, t0, V_N8))
    A("v_lshrrev_b32 v%d, 5, v0" % t0)
    A("v_lshl_add_u32 v%d, v%d, 3, v%d" % (V_N8, t0, V_N8))
    A("v_bfe_u32 v%d, v0, 2, 2" % t0)
    A("v_lshl_add_u32 v%d, v%d, 1, v%d" % (V_N8, t0, V_N8))
    A("v_and_b32 v%d, 1, v0" % t0)
    A("v_add_u32 v%d, v%d, v%d" % (V_N8, V_N8, t0))
    A("v_lshlrev_b32 v%d, 3, v%d" % (V_N8, V_N8))
    A("s_waitcnt lgkmcnt(0)")
    SQ, SO, S1, S2, S2X, LQ, L1L, L2X = S_T[9:16] + [78]
    S1L = 77 + 19
    A("s_mul_i32 s%d, s%d, %d" % (SQ, S_W, 144 * 8192))
    A("s_lshl_b32 s%d, s%d, 8" % (S_T[0], S_C))
    A("s_add_u32 s%d, s%d, s%d" % (SQ, SQ, S_T[0]))
    A("s_mul_i32 s%d, s%d, %d" % (SO, S_C, 128 * 1152))
    A("s_mul_i32 s%d, s%d, %d" % (S_T[0], S_W, 32 * 1152))
    A("s_add_u32 s%d, s%d, s%d" % (SO, SO, S_T[0]))
    A("s_mul_i32 s%d, s%d, %d" % (S1, S_W, 144 * 9216))
    A("s_lshl_b32 s%d, s%d, 5" % (S_T[1], S_C))
    A("s_add_u32 s%d, s%d, s%d" % (S1L, S1, S_T[1]))
    A("s_add_u32 s%d, s%d, 8192" % (S1L, S1L))
    A("s_lshl_b32 s%d, s%d, 8" % (S_T[1], S_C))
    A("s_add_u32 s%d, s%d, s%d" % (S1, S1, S_T[1]))
    A("s_mul_i32 s%d, s%d, %d" % (S2, S_C, 128 * 1152))
    A("s_lshr_b32 s%d, s%d, 1" % (S_T[1], S_W))
    A("s_mul_i32 s%d, s%d, %d" % (S2X, S_T[1], 8 * 1152))
    A("s_mul_i32 s%d, s%d, %d" % (S_T[2], S_C, 16 * 1152))
    A("s_add_u32 s%d, s%d, s%d" % (S2X, S2X, S_T[2]))
    A("s_add_u32 s%d, s%d, %d" % (S2X, S2X, 4096 * 1152))
    A("s_add_u32 s%d, s%d, s%d" % (S2, S2, S_T[0]))
    A("s_mul_i32 s%d, s%d, 28672" % (LQ, S_W))
    A("s_add_u32 s%d, s%d, %d" % (LQ, LQ, L_WQ))
    A("s_mul_i32 s%d, s%d, 5120" % (L1L, S_W))
    A("s_add_u32 s%d, s%d, %d" % (L1L, L1L, L_W1L))
    A("s_mul_i32 s%d, s%d, 9216" % (L2X, S_T[1]))
    A("s_add_u32 s%d, s%d, %d" % (L2X, L2X, L_W2X))
    A("s_and_b32 s%d, s%d, 1" % (S_T[1], S_W))
    A("s_mul_i32 s%d, s%d, %d" % (S_T[2], S_T[1], 5 * 1024))
    A("s_add_u32 s%d, s%d, s%d" % (L2X, L2X, S_T[2]))
    A("s_mul_i32 s%d, s%d, %d" % (S_T[2], S_T[1], 5 * 128))
    A("s_add_u32 s%d, s%d, s%d" % (S2X, S2X, S_T[2]))
    srd(A, S_OUT, S_P, 2304)
    FL = {1: 30, 0: 35}; YL = {1: 10, 0: 15}
    A("v_lshlrev_b32 v%d, 2, v0" % 20)
    A("v_lshrrev_b32 v%d, 2, v%d" % (21, V_ROW8))
    A("s_mul_i32 s%d, s%d, 288" % (S_T[1], S_W))
    for b in (1, 0):
        for k in range(5):
            A("buffer_load_dword v%d, v20, s[%d:%d], 0 offen offset:%d" % (FL[b] + k, S_OUT, S_OUT + 3, b * 1152 + 256 * k))
        for k in range(5):
            A("buffer_load_ushort v%d, v21, s[%d:%d], s%d offen offset:%d" % (YL[b] + k, S_OUT, S_OUT + 3, S_T[1], b * 1152 + 64 * k))
    WL = WLoader(A)
    for beta in range(18):
        for cb in range(2):
            off = beta * 65536 + cb * 128
            if cfg.get("wq_test") == 1:
                WL.add("wq", 8192, SQ, off, ("r", WREG0 + 4 * (80 + 2 * beta + cb)))
            elif cfg.get("wq_test") == 2:
                WL.add("wo", 1152, SO, (beta // 5) * 8 * 1152 + ((2 * beta + cb) % 9) * 128, ("l", LQ, (2 * beta + cb) * 1024) if beta < 14 else ("r", wq_reg(beta, cb)))
            else:
                WL.add("wq", 8192, SQ, off, ("l", LQ, (2 * beta + cb) * 1024) if beta < 14 else ("r", wq_reg(beta, cb)))
    for mu in range(4):
        for cb in range(9):
            WL.add("wo", 1152, SO, mu * 8 * 1152 + cb * 128, ("r", wo_reg(mu, cb)))
    for beta in range(18):
        for cb in range(2):
            WL.add("w1", 9216, S1, beta * 8 * 9216 + cb * 128, ("r", w1_reg(beta, cb)))
    for i in range(5):
        WL.add("w1", "L", S1L, i * 32 * 9216, ("l", L1L, i * 1024))
    for mu in range(4):
        for cb in range(9):
            WL.add("w2", 1152, S2, mu * 8 * 1152 + cb * 128, ("r", w2_reg(mu, cb)))
    for j in range(4):
        WL.add("w2", 1152, S2X, j * 128, ("l", L2X, j * 1024))
    ist = lambda k: chain_stamp(A, cfg, 8 + k)
    ist(0)
    WL.issue(36)
    npf = 0
    if cfg.get("pf_chain"):
        npf = cfg["code_prefetch"](A, "L_chain", "L_end", cfg["pf_chain"], 508, 20)
    A("s_getreg_b32 s%d, hwreg(HW_REG_XCC_ID)" % S_T[0])
    A("s_and_b32 s%d, s%d, 15" % (S_T[0], S_T[0]))
    A("s_mov_b32 s%d, s%d" % (S_XCC, S_T[0]))
    A("v_mov_b32 v22, s%d" % S_T[0])
    A("v_mov_b32 v23, s%d" % S_TAG)
    A("s_lshl_b32 s%d, s%d, 3" % (S_T[0], S_C))
    A("s_add_u32 s%d, s%d, 0x%x" % (S_T[0], S_T[0], OFF_XC))
    A("v_mov_b32 v24, 0")
    A("buffer_store_dwordx2 v[22:23], v24, s[%d:%d], s%d offen sc1" % (S_WS, S_WS + 3, S_T[0]))
    A("s_waitcnt vmcnt(%d)" % (36 + npf + 1))
    ist(1)
    YKB = {1: YK, 0: [5, 6, 7, 8, 47]}
    for b in (1, 0):
        f = FL[b]; sx, sq, t = 40, 41, 46
        A("v_cndmask_b32_e64 v%d, 0, v%d, s[%d:%d]" % (f + 4, f + 4, S_ML32, S_ML32 + 1))
        for k in range(5):
            A("v_lshlrev_b32 v%d, 16, v%d" % (t, f + k))
            A("v_and_b32 v%d, 0xffff0000, v%d" % (f + k, f + k))
            if k == 0:
                A("v_add_f32 v%d, v%d, v%d" % (sx, t, f + k))
                A("v_mul_f32 v%d, v%d, v%d" % (sq, t, t))
            else:
                A("v_add_f32 v%d, v%d, v%d" % (sx, sx, t))
                A("v_fmac_f32 v%d, v%d, v%d" % (sq, t, t))
                A("v_add_f32 v%d, v%d, v%d" % (sx, sx, f + k))
            A("v_fmac_f32 v%d, v%d, v%d" % (sq, f + k, f + k))
        A("v_add_f32_dpp v%d, v%d, v%d %s" % (sx, sx, sx, qp([1, 0, 3, 2])))
        A("v_add_f32_dpp v%d, v%d, v%d %s" % (sq, sq, sq, qp([1, 0, 3, 2])))
        A("v_cndmask_b32_e64 v%d, v%d, v%d, s[%d:%d]" % (sx, sx, sq, S_MODD, S_MODD + 1))
        parity_allreduce(A, sx, t)
        for k in range(5):
            A("v_lshlrev_b32 v%d, 16, v%d" % (YL[b] + k, YL[b] + k))
        ln_tail(A, sx, [YL[b] + k for k in range(5)], YKB[b], 41, 46)
    WL.issue(20)
    A("s_waitcnt vmcnt(%d)" % (20 + npf + 1))
    ist(2)
    for b in (1, 0):
        A("s_lshl_b32 s%d, s%d, 9" % (S_QO, S_C))
        A("s_add_u32 s%d, s%d, 0x%x" % (S_QO, S_QO, OFF_Q + b * 16384))
        qproj(A, S_QO, YKB[b])
        ist(3 if b == 1 else 4)
        if b == 1:
            A("s_waitcnt vmcnt(20)")
            WL.issue(30)
    srd(A, S_OUT, S_P, 2304)
    A("v_lshrrev_b32 v%d, 1, v0" % t0)
    A("s_mul_i32 s%d, s%d, 18" % (S_T[1], S_C))
    A("v_add_u32 v%d, s%d, v%d" % (t0, S_T[1], t0))
    A("v_lshlrev_b32 v%d, 1, v%d" % (t0, t0))
    A("buffer_load_ushort v%d, v%d, s[%d:%d], 0 offen offset:1152" % (V_X, t0, S_OUT, S_OUT + 3))
    A("buffer_load_ushort v%d, v%d, s[%d:%d], 0 offen" % (V_XO, t0, S_OUT, S_OUT + 3))
    srd(A, S_SRD, S_P + 12, 1152)
    A("buffer_load_ushort v%d, v%d, s[%d:%d], 0 offen" % (V_B2, t0, S_SRD, S_SRD + 3))
    A("v_lshrrev_b32 v%d, 3, v%d" % (t1, V_N8))
    A("s_lshl_b32 s%d, s%d, 6" % (S_T[1], S_W))
    A("v_add_u32 v%d, s%d, v%d" % (t1, S_T[1], t1))
    A("v_bfe_u32 v%d, v0, 1, 1" % t2)
    A("v_lshlrev_b32 v%d, 3, v%d" % (t2, t2))
    A("v_bfe_u32 v%d, v0, 2, 2" % t3)
    A("v_lshl_add_u32 v%d, v%d, 1, v%d" % (t2, t3, t2))
    A("v_and_b32 v%d, 1, v0" % t3)
    A("v_add_u32 v%d, v%d, v%d" % (t2, t2, t3))
    A("s_lshl_b32 s%d, s%d, 4" % (S_T[1], S_C))
    A("s_add_u32 s%d, s%d, 4096" % (S_T[1], S_T[1]))
    A("v_add_u32 v%d, s%d, v%d" % (t2, S_T[1], t2))
    A("s_lshl_b32 s%d, s%d, 7" % (S_T[1], S_C))
    A("v_add_u32 v%d, s%d, v%d" % (t1, S_T[1], t1))
    A("s_cmp_lt_u32 s%d, 2" % S_W)
    A("s_cselect_b64 vcc, -1, 0")
    A("v_cndmask_b32 v%d, v%d, v%d, vcc" % (t1, t2, t1))
    A("v_lshlrev_b32 v%d, 1, v%d" % (t1, t1))
    srd(A, S_SRD, S_P + 8, 9216)
    A("buffer_load_ushort v%d, v%d, s[%d:%d], 0 offen" % (V_B1, t1, S_SRD, S_SRD + 3))
    A("v_lshlrev_b32 v%d, 2, v%d" % (V_PX, t0))
    A("v_mov_b32 v%d, 0x%x" % (t2, OOB))
    A("v_cndmask_b32_e64 v%d, v%d, v%d, s[%d:%d]" % (V_PX, V_PX, t2, S_MODD, S_MODD + 1))
    A("v_cndmask_b32_e64 v%d, v%d, v%d, s[%d:%d]" % (V_PX, t2, V_PX, S_ML36, S_ML36 + 1))
    A("v_and_b32 v%d, 1, v0" % t3)
    A("s_lshl_b32 s%d, s%d, 1" % (S_T[1], S_C))
    A("v_add_u32 v%d, s%d, v%d" % (t3, S_T[1], t3))
    A("v_lshlrev_b32 v%d, 3, v%d" % (t3, t3))
    A("v_add_u32 v%d, 4608, v%d" % (t3, t3))
    A("v_and_b32 v%d, 62, v0" % t2)
    A("v_cmp_eq_u32 vcc, 40, v%d" % t2)
    A("v_cndmask_b32 v%d, v%d, v%d, vcc" % (V_PX, V_PX, t3))
    def xc_issue():
        A("v_and_b32 v34, 31, v0")
        A("v_lshlrev_b32 v34, 3, v34")
        A("s_mov_b32 s%d, 0x%x" % (S_T[0], OFF_XC))
        A("buffer_load_dwordx2 v[36:37], v34, s[%d:%d], s%d offen sc1" % (S_WS, S_WS + 3, S_T[0]))
    xc_issue()
    WL.cur_srd = None
    ist(5)
    while WL.left() > 0:
        A("s_waitcnt vmcnt(30)")
        WL.issue(min(30, WL.left()))
    assert WL.cur_srd == "w2"
    sk = newlab("w2x")
    A("s_waitcnt vmcnt(40)")
    WL.voff(1152)
    A("s_and_b32 s%d, s%d, 1" % (S_T[0], S_W))
    A("s_cmp_eq_u32 s%d, 1" % S_T[0])
    A("s_cbranch_scc1 %s" % sk)
    A("s_add_u32 m0, s%d, 0x%x" % (L2X, 4 * 1024))
    A("s_add_u32 s%d, s%d, 0x%x" % (S_T[8], S2X, 4 * 128))
    A("buffer_load_dwordx4 v%d, s[%d:%d], s%d offen nt lds" % (WL.VOFF, S_SRD, S_SRD + 3, S_T[8]))
    A.label(sk)
    ist(6)
    A("s_waitcnt vmcnt(0)")
    for r in (V_X, V_XO, V_B1, V_B2):
        A("v_lshlrev_b32 v%d, 16, v%d" % (r, r))
    srd(A, S_OUT, S_P + 14, 2304)
    okx = newlab("xok"); rtx = newlab("xrt")
    A("v_cmp_ne_u32 vcc, s%d, v37" % S_TAG)
    A.branch("s_cbranch_vccz %s" % okx)
    A("s_mov_b32 s%d, 0x2000" % S_SPIN)
    A.label(rtx)
    A("s_sleep 2")
    xc_issue()
    A("s_waitcnt vmcnt(0)")
    A("v_cmp_ne_u32 vcc, s%d, v37" % S_TAG)
    A("s_sub_u32 s%d, s%d, 1" % (S_SPIN, S_SPIN))
    A.branch("s_cbranch_scc1 %s" % okx)
    A.branch("s_cbranch_vccnz %s" % rtx)
    A.label(okx)
    A("v_cmp_ne_u32 vcc, s%d, v36" % S_XCC)
    A("s_cmp_eq_u64 vcc, 0")
    A("s_cselect_b32 s%d, %d, 0" % (S_FAST, 0 if cfg.get("force_slow") else 1))
    ist(7)
    if cfg.get("stamps"):
        A("s_lshl_b32 s%d, s2, 2" % S_T[0])
        A("s_add_u32 s%d, s%d, s%d" % (S_T[0], S_T[0], S_W))
        A("s_lshl_b32 s%d, s%d, 5" % (S_T[0], S_T[0]))
        A("s_add_u32 s%d, s%d, 0x780000" % (S_T[0], S_T[0]))
        A("v_mov_b32 v30, 0")
        for k in range(8):
            A("v_mov_b32 v31, s%d" % (S_CST + 8 + k))
            A("buffer_store_dword v31, v30, s[%d:%d], s%d offen offset:%d" % (S_WS, S_WS + 3, S_T[0], 4 * k))
            A("s_nop 1")
    if cfg.get("initonly"):
        A.branch("s_branch L_end")
    A("s_mov_b32 s%d, 2" % S_STEP)
    A.label("L_ch_loop")
    A("s_lshr_b32 s%d, 0xd, s%d" % (S_B, S_STEP))
    A("s_and_b32 s%d, s%d, 1" % (S_B, S_B))
    A("s_lshr_b32 s%d, 0x28, s%d" % (S_L, S_STEP))
    A("s_and_b32 s%d, s%d, 1" % (S_L, S_L))
    A("s_lshl_b32 s%d, s%d, 1" % (S_T[0], S_L))
    A("s_add_u32 s%d, s%d, s%d" % (S_T[0], S_T[0], S_B))
    A("s_lshl_b32 s%d, s%d, 5" % (S_PART, S_T[0]))
    A("s_add_u32 s%d, s%d, s%d" % (S_PART, S_PART, S_C))
    A("s_lshl_b32 s%d, s%d, 14" % (S_PART, S_PART))
    A("s_add_u32 s%d, s%d, 0x%x" % (S_PART, S_PART, OFF_PART))
    A("s_mul_i32 s%d, s%d, 0x%x" % (S_YP1, S_T[0], 2 * YP_STRIDE))
    A("s_add_u32 s%d, s%d, 0x%x" % (S_YP1, S_YP1, OFF_YP))
    A("s_add_u32 s%d, s%d, 0x%x" % (S_YP2, S_YP1, YP_STRIDE))
    A("s_mul_i32 s%d, s%d, 0x%x" % (S_X1, S_T[0], 2 * X_STRIDE))
    A("s_add_u32 s%d, s%d, 0x%x" % (S_X1, S_X1, OFF_X))
    A("s_add_u32 s%d, s%d, 0x%x" % (S_X2, S_X1, X_STRIDE))
    A("s_lshl_b32 s%d, s%d, 14" % (S_QO, S_B))
    A("s_lshl_b32 s%d, s%d, 9" % (S_T[1], S_C))
    A("s_add_u32 s%d, s%d, s%d" % (S_QO, S_QO, S_T[1]))
    A("s_add_u32 s%d, s%d, 0x%x" % (S_QO, S_QO, OFF_Q + 2 * 16384))
    st = lambda k: chain_stamp(A, cfg, k)
    st(0)
    oproj(A)
    st(1)
    red(A, S_YP1, bias=False)
    pubx(A, S_X1)
    st(2)
    gath_ln(A, S_X1)
    st(3)
    mlp(A)
    st(4)
    red(A, S_YP2, bias=True)
    st(5)
    A("s_cmp_eq_u32 s%d, 1" % S_L)
    A.branch("s_cbranch_scc1 L_ch_out")
    pubx(A, S_X2)
    gath_ln(A, S_X2)
    st(6)
    qproj(A, S_QO)
    st(7)
    A.branch("s_branch L_ch_next")
    A.label("L_ch_out")
    A("s_cmp_lg_u32 s%d, 0" % S_W)
    A.branch("s_cbranch_scc1 L_ch_next")
    A("v_lshrrev_b32 v30, 16, v%d" % V_X)
    A("v_lshrrev_b32 v31, 2, v%d" % V_PX)
    A("s_mul_i32 s%d, s%d, 1152" % (S_T[0], S_B))
    A("s_mov_b32 s%d, 0x55555555" % S_EX)
    A("s_mov_b32 s%d, 0x5" % (S_EX + 1))
    A("s_mov_b64 exec, s[%d:%d]" % (S_EX, S_EX + 1))
    A("buffer_store_short v30, v31, s[%d:%d], s%d offen" % (S_OUT, S_OUT + 3, S_T[0]))
    A("s_mov_b64 exec, -1")
    A.label("L_ch_next")
    A("s_cmp_eq_u32 s%d, 3" % S_STEP)
    A("s_cbranch_scc0 L_ch_noswap")
    A("v_swap_b32 v%d, v%d" % (V_X, V_XO))
    A.label("L_ch_noswap")
    if cfg.get("stamps"):
        chain_dump(A, cfg)
    A("s_add_u32 s%d, s%d, 1" % (S_STEP, S_STEP))
    A("s_cmp_lt_u32 s%d, 6" % S_STEP)
    A.branch("s_cbranch_scc1 L_ch_loop")
    A("s_or_b32 s%d, s%d, s%d" % (S_T[0], S_C, S_W))
    A("s_cmp_lg_u32 s%d, 0" % S_T[0])
    A.branch("s_cbranch_scc1 L_end")
    A("s_add_u32 s%d, s%d, 1" % (S_T[0], S_EPOCH))
    A("v_mov_b32 v30, s%d" % S_T[0])
    A("v_mov_b32 v31, 0")
    A("s_mov_b64 exec, 1")
    A("buffer_store_dword v30, v31, s[%d:%d], 0 offen" % (S_WS, S_WS + 3))
    A("s_waitcnt vmcnt(0)")

S_XCC = 79
S_ML32 = 100
S_CST = 80
def chain_stamp(A, cfg, k):
    if not cfg.get("stamps"): return
    A("s_memrealtime s[%d:%d]" % (S_EX, S_EX + 1))
    A("s_waitcnt lgkmcnt(0)")
    A("s_mov_b32 s%d, s%d" % (S_CST + k, S_EX))

def chain_dump(A, cfg):
    A("s_lshl_b32 s%d, s2, 2" % S_T[0])
    A("s_add_u32 s%d, s%d, s%d" % (S_T[0], S_T[0], S_W))
    A("s_lshl_b32 s%d, s%d, 7" % (S_T[0], S_T[0]))
    A("s_sub_u32 s%d, s%d, 2" % (S_T[1], S_STEP))
    A("s_lshl_b32 s%d, s%d, 5" % (S_T[1], S_T[1]))
    A("s_add_u32 s%d, s%d, s%d" % (S_T[0], S_T[0], S_T[1]))
    A("s_add_u32 s%d, s%d, 0x700000" % (S_T[0], S_T[0]))
    A("v_mov_b32 v30, 0")
    for k in range(8):
        A("v_mov_b32 v31, s%d" % (S_CST + k))
        A("buffer_store_dword v31, v30, s[%d:%d], s%d offen offset:%d" % (S_WS, S_WS + 3, S_T[0], 4 * k))
        A("s_nop 1")
```

```python
import re

TRANS = ("v_exp_f32", "v_log_f32", "v_rcp_f32", "v_rsq_f32", "v_sqrt_f32", "v_sin_f32", "v_cos_f32")
REG_RE = re.compile(r"^(-|\|)?(v|a|s)(?:\[(\d+):(\d+)\]|(\d+))\|?$")

def regs_of(op):
    op = op.strip()
    if op.startswith("abs(") and op.endswith(")"):
        op = op[4:-1]
    if op in ("vcc",):
        return [("s", "vcc")]
    if op == "exec":
        return [("s", "exec")]
    if op == "m0":
        return [("s", "m0")]
    m = REG_RE.match(op)
    if not m:
        return []
    k = m.group(2)
    if m.group(3) is not None:
        lo, hi = int(m.group(3)), int(m.group(4))
    else:
        lo = hi = int(m.group(5))
    if k == "a":
        return [("v", 256 + i) for i in range(lo, hi + 1)]
    return [(k, i) for i in range(lo, hi + 1)]

class Ins:
    __slots__ = ("text", "mn", "cls", "wr", "rd", "dpp", "trans", "srcC", "srcAB", "slots", "dppsrc", "lds_dma", "store_data", "sconst")

def split_ops(s):
    out = []; depth = 0; cur = ""
    for ch in s:
        if ch == "[": depth += 1
        if ch == "]": depth -= 1
        if ch == "," and depth == 0:
            out.append(cur.strip()); cur = ""
        else:
            cur += ch
    if cur.strip(): out.append(cur.strip())
    return out

def parse(text):
    t = text.strip()
    parts = t.split(None, 1)
    mn = parts[0]
    rest = parts[1] if len(parts) > 1 else ""
    ops = split_ops(rest)
    mods = ""
    if ops:
        last = ops[-1].split()
        if len(last) > 1:
            ops[-1] = last[0]; mods = " ".join(last[1:])
    I = Ins(); I.text = t; I.mn = mn; I.wr = set(); I.rd = set(); I.dpp = False; I.trans = False
    I.srcC = set(); I.srcAB = set(); I.slots = 1; I.dppsrc = set(); I.lds_dma = False; I.store_data = set(); I.sconst = set()
    base = mn
    for suf in ("_e32", "_e64", "_dpp"):
        if base.endswith(suf): base = base[:-len(suf)]
    if mn.startswith("v_mfma"):
        I.cls = "mfma"
        I.wr = set(regs_of(ops[0])); I.srcAB = set(regs_of(ops[1])) | set(regs_of(ops[2])); I.srcC = set(regs_of(ops[3]))
        I.rd = I.srcAB | I.srcC
    elif mn.startswith("v_"):
        I.cls = "valu"
        I.dpp = ("quad_perm" in t or "row_" in t)
        I.trans = base in TRANS
        if base.startswith("v_cmp"):
            I.wr = set(regs_of(ops[0])); srcs = ops[1:]
        elif base in ("v_readlane_b32", "v_readfirstlane_b32"):
            I.cls = "readlane"
            I.wr = set(regs_of(ops[0])); srcs = ops[1:]
        elif base.startswith("v_permlane"):
            I.cls = "permlane"
            I.wr = set(regs_of(ops[0])) | set(regs_of(ops[1])); srcs = ops
        else:
            I.wr = set(regs_of(ops[0])); srcs = ops[1:]
            if base in ("v_fmac_f32", "v_dot2c_f32_bf16") or I.dpp:
                srcs = ops
            if base == "v_cndmask_b32" and len(ops) == 3:
                srcs = srcs + ["vcc"]
        for o in srcs:
            for r in regs_of(o):
                I.rd.add(r)
                if r[0] == "s": I.sconst.add(r)
        if I.dpp:
            I.dppsrc = set(regs_of(ops[1]))
    elif mn.startswith("buffer_") or mn.startswith("global_"):
        I.cls = "vmem"
        is_lds = (" lds" in (" " + mods))
        if "load" in mn and not is_lds:
            I.wr = set(regs_of(ops[0])); srcs = ops[1:]
        elif is_lds:
            I.lds_dma = True; srcs = ops + ["m0"]
        else:
            srcs = ops
            if "x3" in mn or "x4" in mn:
                I.store_data = set(regs_of(ops[0] if mn.startswith("buffer_") else ops[1]))
        for o in srcs:
            for r in regs_of(o): I.rd.add(r)
    elif mn.startswith("ds_"):
        I.cls = "ds"
        if "read" in mn or "bpermute" in mn or "swizzle" in mn:
            I.wr = set(regs_of(ops[0])); srcs = ops[1:]
        else:
            srcs = ops
        if "addtid" in mn: srcs = srcs + ["m0"]
        for o in srcs:
            for r in regs_of(o): I.rd.add(r)
    elif mn == "s_nop":
        I.cls = "nop"; I.slots = int(ops[0], 0) + 1
    elif mn.startswith("s_"):
        I.cls = "salu"
        nodst = ("s_cmp", "s_cbranch", "s_branch", "s_waitcnt", "s_barrier", "s_sleep", "s_endpgm", "s_setprio", "s_bitcmp", "s_setpc")
        if any(mn.startswith(x) for x in nodst):
            srcs = ops
        else:
            I.wr = set(regs_of(ops[0])) if ops else set(); srcs = ops[1:]
        for o in srcs:
            for r in regs_of(o): I.rd.add(r)
    else:
        raise ValueError("cannot parse: " + text)
    return I

def need_gap(p, c):
    g = 0
    pv = {r for r in p.wr if r[0] == "v"}
    ps = {r for r in p.wr if r[0] == "s"}
    is_valu_p = p.cls in ("valu", "readlane", "permlane")
    is_valu_c = c.cls in ("valu", "readlane", "permlane")
    if is_valu_p:
        if c.cls == "mfma" and pv & c.rd: g = max(g, 2)
        if c.dpp and pv & c.rd: g = max(g, 2)
        if p.trans and is_valu_c and not c.trans and pv & c.rd: g = max(g, 1)
        if p.trans and c.cls in ("vmem", "ds") and pv & c.rd: g = max(g, 1)
        if c.cls == "readlane" and pv & c.rd: g = max(g, 1)
        if c.cls == "permlane" and pv & (c.rd | c.wr): g = max(g, 2)
        if ps:
            if is_valu_c and ps & c.sconst: g = max(g, 4 if c.cls == "readlane" else 2)
            if c.cls == "vmem" and ps & c.rd: g = max(g, 5)
            if c.cls == "salu" and ps & c.rd: g = max(g, 1)
            if ("s", "exec") in ps: g = max(g, 5)
    if p.cls == "mfma":
        if c.cls == "mfma":
            if pv & c.srcC:
                g = max(g, 0 if (c.srcC == p.wr) else 6)
            if pv & c.srcAB: g = max(g, 8)
            if (pv & c.wr) and not (c.srcC == p.wr): g = max(g, 6)
        elif is_valu_c or c.cls in ("vmem", "ds"):
            if pv & (c.rd | c.wr): g = max(g, 8)
        if is_valu_c and (p.srcC & c.wr): g = max(g, 3)
    if p.cls == "salu" and ("s", "m0") in ps:
        if c.lds_dma or (c.cls == "ds" and ("s", "m0") in c.rd): g = max(g, 1)
    if p.cls == "vmem" and p.store_data:
        if is_valu_c and p.store_data & c.wr: g = max(g, 2)
        elif p.store_data & c.wr: g = max(g, 1)
    return g

class Asm:
    def __init__(self):
        self.lines = []
        self.hist = []
        self.nnops = 0
        self.nins = 0
    def raw(self, text):
        self.lines.append(text)
    def comment(self, text):
        self.lines.append("  ; " + text)
    def _push(self, I):
        self.lines.append("  " + I.text)
        self.hist.append(I)
        if len(self.hist) > 24: self.hist.pop(0)
        self.nins += 1
    def nop(self, n):
        while n > 0:
            k = min(n, 16)
            self._push(parse("s_nop %d" % (k - 1)))
            self.nnops += 1
            n -= k
    def __call__(self, text):
        I = parse(text)
        dist = 0; need = 0
        for p in reversed(self.hist):
            g = need_gap(p, I)
            if g > dist: need = max(need, g - dist)
            dist += p.slots
            if dist >= 12: break
        if need > 0: self.nop(need)
        self._push(I)
    def flush(self):
        dist = 0; need = 0
        for p in reversed(self.hist):
            g = 0
            if p.cls == "mfma": g = 8
            elif p.cls in ("valu", "readlane", "permlane"):
                g = 5 if any(r[0] == "s" for r in p.wr) else 2
            elif p.cls == "salu" and ("s", "m0") in p.wr: g = 1
            elif p.cls == "vmem" and p.store_data: g = 2
            if g > dist: need = max(need, g - dist)
            dist += p.slots
            if dist >= 12: break
        if need > 0: self.nop(need)
    def label(self, name):
        self.flush()
        self.lines.append(name + ":")
    def branch(self, text):
        self.flush()
        self(text)
    def text(self):
        return "\n".join(self.lines) + "\n"

def vr(base, n=1):
    if base >= 256:
        b = base - 256
        return "a%d" % b if n == 1 else "a[%d:%d]" % (b, b + n - 1)
    return "v%d" % base if n == 1 else "v[%d:%d]" % (base, base + n - 1)

def sr(base, n=1):
    return "s%d" % base if n == 1 else "s[%d:%d]" % (base, base + n - 1)
```

```python
KN = "interleave_layers__mha_block_cached__dense_activation_gelu__decode"
WS_SIZE = 0x800000
OFF_EPOCH = 0
OFF_XC = 0x100
OFF_Q = 0x1000
OFF_PART = 0x100000
OFF_YP = 0x400000
YP_STRIDE = 0x28000
OFF_X = 0x600000
X_STRIDE = 0x2000
HASH_MUL = 0x9E3779B1
HASH_ADD = 0x85EBCA6B
def tag_of(e):
    return (e * HASH_MUL + HASH_ADD) & 0xFFFFFFFF
import math, struct
def f2u(x):
    return struct.unpack("<I", struct.pack("<f", x))[0]
SCALE_C = math.log2(math.e) / math.sqrt(128.0)
LOG2E = math.log2(math.e)
```

```python
import sys
sys.path.insert(0, "gen")
from emit import *
from layout import *
import attn, chain

HEADER = """; Kernarg layout (104 bytes): A_x, A_k_cache, A_v_cache, A_wq, A_wo, B_x, B_w1, B_b1, B_w2, B_b2, d_out, d_debug, d_ws
; Generated by gen/main.py (own generator). Persistent kernel: 32 chain workgroups + 224 attention workgroups.
; @launch grid=(256,1,1) block=(256,1,1) lds=163840
.amdgcn_target "amdgcn-amd-amdhsa--gfx950"
.text
.globl %(kn)s_kernel
.p2align 8
.type %(kn)s_kernel,@function
%(kn)s_kernel:
""" % {"kn": KN}
FOOTER = """L_end:
  s_endpgm
.section .rodata,"a"
.p2align 6
.amdhsa_kernel %(kn)s_kernel
  .amdhsa_next_free_vgpr 512
  .amdhsa_next_free_sgpr 102
  .amdhsa_accum_offset 256
  .amdhsa_group_segment_fixed_size 0
  .amdhsa_kernarg_size 104
  .amdhsa_user_sgpr_count 2
  .amdhsa_user_sgpr_kernarg_segment_ptr 1
  .amdhsa_system_sgpr_workgroup_id_x 1
.end_amdhsa_kernel
""" % {"kn": KN}

def prologue(A, cfg={}):
    if cfg.get("stamps"):
        A("s_memrealtime s[90:91]")
    A("s_cmp_ge_u32 s2, 256")
    A("s_cbranch_scc1 L_end")
    A("s_load_dwordx4 s[8:11], s[0:1], 8")
    A("s_load_dwordx2 s[4:5], s[0:1], 96")
    A("v_lshrrev_b32 v1, 6, v0")
    A("v_and_b32 v0, 63, v0")
    A("v_readfirstlane_b32 s17, v1")
    A("s_waitcnt lgkmcnt(0)")
    if cfg.get("stamps"):
        A("s_mov_b32 s%d, s90" % (64 + cfg["stamps"] - 1))
    A("s_load_dword s16, s[4:5], 0")
    A("s_mov_b32 s12, s10")
    A("s_and_b32 s13, s11, 0xffff")
    A("s_mov_b32 s14, 0x08000000")
    A("s_mov_b32 s15, 0x00020000")
    A("s_and_b32 s9, s9, 0xffff")
    A("s_mov_b32 s10, 0x08000000")
    A("s_mov_b32 s11, 0x00020000")
    A("s_mov_b32 s6, 0x%x" % WS_SIZE)
    A("s_mov_b32 s7, 0x00020000")
    A("s_waitcnt lgkmcnt(0)")
    A("s_and_b32 s5, s5, 0xffff")
    A("s_mov_b32 s99, s16")
    A("s_mul_i32 s16, s16, 0x%x" % HASH_MUL)
    A("s_add_u32 s16, s16, 0x%x" % HASH_ADD)
    A("s_and_b32 s3, s2, 7")
    A("s_cmp_eq_u32 s3, 0")
    A.branch("s_cbranch_scc1 L_chain")
    A.lines.append("L_attn:")

def code_prefetch(A, start, end, nbytes, dst, vtmp, wreg=17):
    A("s_getpc_b64 s[92:93]")
    lab = "L_pc_%s" % start
    A.lines.append(lab + ":")
    A("v_lshlrev_b32 v%d, 4, v0" % vtmp)
    A("s_lshl_b32 s94, s%d, 10" % wreg)
    A("v_add_u32 v%d, s94, v%d" % (vtmp, vtmp))
    n = (nbytes + 4095) // 4096
    for i in range(n):
        A("v_min_u32 v%d, %s-%s-16, v%d" % (vtmp + 1, end, lab, vtmp))
        A("global_load_dwordx4 %s, v%d, s[92:93]" % (vr(dst, 4), vtmp + 1))
        A("v_add_u32 v%d, 0x1000, v%d" % (vtmp, vtmp))
    return n

def build(cfg):
    A = Asm()
    prologue(A, cfg)
    npf = 0
    if cfg.get("pf_attn"):
        npf = code_prefetch(A, "L_attn", "L_chain", cfg["pf_attn"], 46, 50)
    cfg["npf"] = npf
    if cfg.get("noattn"):
        A.branch("s_branch L_end")
    S = attn.gen_attn(A, cfg)
    A.label("L_chain")
    cfg["code_prefetch"] = code_prefetch
    if cfg.get("chain"):
        cfg["chain"](A, cfg)
    A.branch("s_branch L_end")
    return HEADER + A.text() + FOOTER, A, S

if __name__ == "__main__":
    cfg = dict(nlds=attn.NLDS, nreg=112, cap0=16, cap1=16, npre=76, sched=attn.sched_pipe, la=3, stamps=12, ring=12, chain=chain.gen_chain, pf_attn=28672, pf_chain=20480)
    for a in sys.argv[2:]:
        k, v = a.split("=")
        cfg[k] = int(v) if v.lstrip("-").isdigit() else v
    txt, A, S = build(cfg)
    out = sys.argv[1] if len(sys.argv) > 1 else "k.s"
    open(out, "w").write(txt)
    print("instructions", A.nins, "nops", A.nnops, "loads", S.nloads, "bytes", len(txt))
```

```python
from collections import deque
from emit import *
from layout import *

V_KOFF, V_VOFF, V_VOFF9, V_HALF, V_LDSRD, V_PUB, V_T7 = 1, 2, 3, 4, 5, 6, 7
R1 = 8
QB = R1
BV = [R1, R1 + 4]
DV = [R1 + 8, R1 + 12]
R2 = 24
DK = [R2, R2 + 4]
YR = [R2, R2 + 1]
PQ = 28
TA, TB, TC, TD = 32, 33, 34, 35
SP = {1: 36, 0: 41}
LT = [46, 50, 54, 58]
V_X0, V_X1 = 62, 63
SLOT0 = 64
S_WS = 4; S_K = 8; S_V = 12
S_TAG, S_W, S_H, S_SUB = 16, 17, 18, 19
S_BASE = {0: 20, 1: 21}
S_O18 = {0: 22, 1: 23}
S_OT = [24, 25, 26, 27]
S_C = 28
S_SPIN = 29
S_MASK = [30, 32, 34, 36]
S_M18 = 38
S_MG1 = 40
S_M = {0: 42, 1: 43}
S_L = {0: 44, 1: 45}
S_Q = 46; S_P = 47
S_T0, S_T1 = 48, 49
S_EX = 50
S_T2 = 52
S_SC = 53
LDS_SCR = 0
LDS_STAT = 2048
LDS_SLOTS = 8192
NLDS = 38
NT = 19

class Sched:
    def __init__(self, A, cfg):
        self.A = A; self.cfg = cfg
        self.items = []
        self.fifo_n = 0
        self.done = 0
        self.lg_n = 0; self.lg_done = 0
        self.slot_of = {}; self.load_idx = {}
        self.soff_cache = {}
        self.soff_rr = 0
        self.nloads = 0
    def vm_issue(self, text):
        self.A(text); idx = self.fifo_n; self.fifo_n += 1; return idx
    def vm_wait(self, idx):
        if idx < self.done: return
        n = self.fifo_n - 1 - idx
        assert n <= 63, n
        self.A("s_waitcnt vmcnt(%d)" % n)
        self.done = idx + 1
    def vm_all_done(self):
        self.done = self.fifo_n
    def lg_issue(self, text):
        self.A(text); idx = self.lg_n; self.lg_n += 1; return idx
    def lg_wait(self, idx):
        if idx < self.lg_done: return
        n = self.lg_n - 1 - idx
        assert n <= 15, n
        self.A("s_waitcnt lgkmcnt(%d)" % n)
        self.lg_done = idx + 1
    def lg_all(self):
        if self.lg_done < self.lg_n:
            self.A("s_waitcnt lgkmcnt(0)")
        self.lg_done = self.lg_n
    def soff(self, b, tile, extra=0):
        key = (b, tile, extra)
        if key in self.soff_cache: return self.soff_cache[key]
        if tile == 18 and extra == 0: return S_O18[b]
        if tile == 0 and extra == 0: return S_BASE[b]
        r = S_OT[self.soff_rr % len(S_OT)]; self.soff_rr += 1
        for k in [k for k, v in self.soff_cache.items() if v == r]: del self.soff_cache[k]
        if tile == 18:
            self.A("s_add_u32 s%d, s%d, 0x%x" % (r, S_O18[b], extra))
        else:
            self.A("s_add_u32 s%d, s%d, 0x%x" % (r, S_BASE[b], tile * 16384 + extra))
        self.soff_cache[key] = r
        return r
    def emit_load(self, p, slot, pol):
        if p[1] == "K":
            b, _, j, m = p; tile = j; imm = m * 1024; voff = V_KOFF; srd = S_K
        else:
            b, _, pi, mu, cb = p; tile = 2 * pi; imm = mu * 1024 + cb * 128; srd = S_V
            voff = V_VOFF9 if pi == 9 else V_VOFF
        polx = (" " + pol) if pol else ""
        if slot[0] == "r":
            so = self.soff(b, tile)
            t = "buffer_load_dwordx4 %s, v%d, s[%d:%d], s%d offen%s%s" % (vr(slot[1], 4), voff, srd, srd + 3, so, (" offset:%d" % imm) if imm else "", polx)
        else:
            self.A("s_add_u32 m0, s%d, 0x%x" % (S_T2, slot[1] * 1024))
            so = self.soff(b, tile, imm)
            t = "buffer_load_dwordx4 v%d, s[%d:%d], s%d offen%s lds" % (voff, srd, srd + 3, so, polx)
        self.nloads += 1
        return self.vm_issue(t)

    def run(self):
        A = self.A; cfg = self.cfg; items = self.items
        uses = [i for i, it in enumerate(items) if it[0] == "use"]
        kept = set(); loadq = deque()
        for i in uses:
            _, p, keep, fn = items[i][:4]
            if p not in kept: loadq.append((i, p))
            if keep: kept.add(p)
            else: kept.discard(p)
        free = deque([("l", s) for s in range(cfg["nlds"])] + [("r", SLOT0 + 4 * s) for s in range(cfg["nreg"])])
        if cfg.get("reg_first"):
            free = deque([("r", SLOT0 + 4 * s) for s in range(cfg["nreg"])] + [("l", s) for s in range(cfg["nlds"])])
        temps = deque(LT)
        ldsread = {}
        state = {"cap": cfg["cap0"], "pol": cfg.get("pol", "nt")}
        def issue_loads():
            while loadq and free and (self.fifo_n - self.done) < state["cap"]:
                i, p = loadq.popleft()
                slot = free.popleft()
                self.slot_of[p] = slot
                self.load_idx[p] = self.emit_load(p, slot, state["pol"])
                self.loaded_for[i] = True
        self.loaded_for = {}
        resident_use = {}
        LA = cfg.get("la", 3)
        def prefetch_lds(pos):
            cnt = 0
            for q in range(pos, min(pos + 8, len(uses))):
                ui = uses[q]
                if ui in ldsread:
                    cnt += 1; continue
                p = items[ui][1]
                if not (ui in self.loaded_for or self.kept_ok(ui)): break
                if self.slot_of[p][0] != "l": continue
                if cnt >= LA or not temps: break
                if any(items[x][0] == "code" and len(items[x]) > 2 and items[x][2] == "fence" for x in range(uses[pos], ui)): break
                self.vm_wait(self.load_idx[p])
                t = temps.popleft()
                li = self.lg_issue("ds_read_b128 %s, v%d offset:%d" % (vr(t, 4), V_LDSRD, self.slot_of[p][1] * 1024))
                ldsread[ui] = (t, li); cnt += 1
        lastkeep = {}
        self.keptset = set()
        self.kept_ok = lambda ui: items[ui][1] in self.keptset
        pos = 0
        for f in cfg.get("pre", []): f(self)
        issue_loads()
        for i, it in enumerate(items):
            if it[0] == "use":
                _, p, keep, fn = it[:4]
                assert (i in self.loaded_for) or (p in self.keptset), ("piece not loaded before use (deadlock)", i, p)
                prefetch_lds(pos)
                slot = self.slot_of[p]
                if slot[0] == "r":
                    self.vm_wait(self.load_idx[p])
                    fn(slot[1])
                else:
                    t, li = ldsread.pop(i)
                    self.lg_wait(li)
                    fn(t)
                    temps.append(t)
                if keep: self.keptset.add(p)
                else:
                    self.keptset.discard(p); free.append(slot)
                pos += 1
                issue_loads()
            elif it[0] == "code":
                it[1](self)
                issue_loads()
            elif it[0] == "drain":
                if self.fifo_n - self.done > it[1]:
                    self.vm_wait(self.fifo_n - 1 - it[1])
                issue_loads()
            elif it[0] == "loadall":
                while loadq and free:
                    n = self.fifo_n - self.done
                    tgt = max(0, state["cap"] - 4)
                    if n > tgt:
                        self.vm_wait(self.fifo_n - 1 - tgt)
                    issue_loads()
            elif it[0] == "cap":
                state["cap"] = it[1]; issue_loads()
            elif it[0] == "pol":
                state["pol"] = it[1]
        assert not loadq

def gen_setup1(A):
    A.comment("attention setup (part 1: what the first loads need)")
    A("s_lshr_b32 s%d, s2, 3" % S_H)
    A("s_and_b32 s%d, s2, 7" % S_SUB)
    A("s_sub_u32 s%d, s%d, 1" % (S_SUB, S_SUB))
    A("s_mul_i32 s%d, s%d, 73" % (S_T0, S_SUB))
    A("s_add_u32 s%d, s%d, s%d" % (S_T0, S_T0, S_W))
    A("s_lshl_b32 s%d, s%d, 12" % (S_T0, S_T0))
    A("s_lshl_b32 s%d, s%d, 21" % (S_T1, S_H))
    A("s_add_u32 s%d, s%d, s%d" % (S_BASE[0], S_T0, S_T1))
    A("s_add_u32 s%d, s%d, 0x4000000" % (S_BASE[1], S_BASE[0]))
    A("s_mul_i32 s%d, s%d, %d" % (S_T2, S_W, NLDS * 1024))
    A("s_add_u32 s%d, s%d, %d" % (S_T2, S_T2, LDS_SLOTS))
    A("v_bfe_u32 v%d, v0, 2, 2" % TA)
    A("v_lshlrev_b32 v%d, 8, v%d" % (V_KOFF, TA))
    A("v_lshrrev_b32 v%d, 4, v0" % TB)
    A("v_lshl_add_u32 v%d, v%d, 6, v%d" % (V_KOFF, TB, V_KOFF))
    A("v_and_b32 v%d, 3, v0" % TC)
    A("v_lshl_add_u32 v%d, v%d, 4, v%d" % (V_KOFF, TC, V_KOFF))

def gen_setup2(A):
    A.comment("attention setup (part 2)")
    A("s_cmp_eq_u32 s%d, 6" % S_SUB)
    A("s_cselect_b32 s%d, 2, 1" % S_T0)
    A("s_cmp_lt_u32 s%d, s%d" % (S_W, S_T0))
    A("s_cselect_b32 s%d, 1, 0" % S_T1)
    for b in (0, 1):
        A("s_add_u32 s%d, s%d, 0x%x" % (S_O18[b], S_BASE[b], 18 * 16384))
        A("s_cmp_eq_u32 s%d, 1" % S_T1)
        A("s_cselect_b32 s%d, s%d, 0x80000000" % (S_O18[b], S_O18[b]))
    for u in range(4):
        A("s_mov_b32 s%d, 0x%x" % (S_MASK[u], 0x11111111 << u))
        A("s_mov_b32 s%d, 0x%x" % (S_MASK[u] + 1, 0x11111111 << u))
    A("s_cmp_eq_u32 s%d, 1" % S_T1)
    A("s_cselect_b32 s%d, 0x44444444, 0" % S_M18)
    A("s_mov_b32 s%d, s%d" % (S_M18 + 1, S_M18))
    A("s_mov_b32 s%d, 0xcccccccc" % S_MG1)
    A("s_mov_b32 s%d, 0xcccccccc" % (S_MG1 + 1))
    A("s_mov_b32 s%d, 0x%x" % (S_C, f2u(LOG2E)))
    A("s_mov_b32 s%d, 0x%x" % (S_SC, f2u(128.0 ** -0.5)))
    A("s_lshl_b32 s%d, s%d, 9" % (S_Q, S_H))
    A("s_add_u32 s%d, s%d, 0x%x" % (S_Q, S_Q, OFF_Q))
    A("s_lshl_b32 s%d, s%d, 3" % (S_P, S_H))
    A("s_add_u32 s%d, s%d, s%d" % (S_P, S_P, S_SUB))
    A("s_lshl_b32 s%d, s%d, 11" % (S_P, S_P))
    A("s_add_u32 s%d, s%d, 0x%x" % (S_P, S_P, OFF_PART))
    A("v_lshrrev_b32 v%d, 4, v0" % TB)
    A("v_and_b32 v%d, 7, v0" % TC)
    A("v_lshlrev_b32 v%d, 4, v%d" % (TC, TC))
    A("v_lshl_add_u32 v%d, v%d, 8, v%d" % (TC, TB, TC))
    A("v_bfe_u32 v%d, v0, 3, 1" % TA)
    A("v_lshl_add_u32 v%d, v%d, 14, v%d" % (V_VOFF, TA, TC))
    A("v_lshl_add_u32 v%d, v%d, 30, v%d" % (V_VOFF9, TA, TC))
    A("v_and_b32 v%d, 1, v0" % TA)
    A("v_mov_b32 v%d, 0xffff" % TB)
    A("v_lshlrev_b32 v%d, 4, v%d" % (TC, TA))
    A("v_lshlrev_b32 v%d, v%d, v%d" % (V_HALF, TC, TB))
    A("v_lshlrev_b32 v%d, 4, v0" % V_LDSRD)
    A("v_add_u32 v%d, s%d, v%d" % (V_LDSRD, S_T2, V_LDSRD))
    A("v_bfe_u32 v%d, v0, 4, 1" % TA)
    A("v_lshlrev_b32 v%d, 5, v%d" % (V_PUB, TA))
    A("v_bfe_u32 v%d, v0, 1, 1" % TA)
    A("v_lshl_add_u32 v%d, v%d, 4, v%d" % (V_PUB, TA, V_PUB))
    A("v_lshrrev_b32 v%d, 5, v0" % TA)
    A("v_lshl_add_u32 v%d, v%d, 3, v%d" % (V_PUB, TA, V_PUB))
    A("v_bfe_u32 v%d, v0, 2, 2" % TA)
    A("v_lshl_add_u32 v%d, v%d, 1, v%d" % (V_PUB, TA, V_PUB))
    A("v_and_b32 v%d, 1, v0" % TA)
    A("v_add_u32 v%d, v%d, v%d" % (V_PUB, TA, V_PUB))
    A("s_lshl_b32 s%d, s%d, 6" % (S_T0, S_W))
    A("v_add_u32 v%d, s%d, v%d" % (V_PUB, S_T0, V_PUB))
    A("v_lshlrev_b32 v%d, 3, v%d" % (V_PUB, V_PUB))
    A("v_lshlrev_b32 v%d, 3, v0" % TA)
    A("v_add_u32 v%d, 1024, v%d" % (TA, TA))
    A("v_mov_b32 v%d, 0x7f000000" % TB)
    A("v_cmp_gt_u32 vcc, 2, v0")
    A("v_cndmask_b32 v%d, v%d, v%d, vcc" % (TA, TB, TA))
    A("s_cmp_eq_u32 s%d, 2" % S_W)
    A("s_cselect_b64 vcc, -1, 0")
    A("v_cndmask_b32 v%d, v%d, v%d, vcc" % (V_PUB, V_PUB, TA))
    A("s_cmp_eq_u32 s%d, 3" % S_W)
    A("s_cselect_b64 vcc, -1, 0")
    A("v_cndmask_b32 v%d, v%d, v%d, vcc" % (V_PUB, V_PUB, TB))
    gen_bank_masks(A)
    A("s_mov_b32 s%d, 0xaaaaaaaa" % S_MODD)
    A("s_mov_b32 s%d, 0xaaaaaaaa" % (S_MODD + 1))
    A("s_waitcnt lgkmcnt(0)")
    A("s_mul_i32 s%d, s%d, 0x%x" % (S_TAG, S_TAG, HASH_MUL))
    A("s_add_u32 s%d, s%d, 0x%x" % (S_TAG, S_TAG, HASH_ADD))

_lab = [0]
def newlab(p):
    _lab[0] += 1
    return "L_%s_%d" % (p, _lab[0])

def poll_issue(L, b):
    def f(S):
        A = S.A
        A("v_and_b32 v%d, 0xff, v%d" % (V_T7, V_KOFF))
        A("v_lshlrev_b32 v%d, 1, v%d" % (V_T7, V_T7))
        A("s_add_u32 s%d, s%d, 0x%x" % (S_T0, S_Q, (L * 2 + b) * 16384))
        S.vm_issue("buffer_load_dwordx4 %s, v%d, s[%d:%d], s%d offen sc1" % (vr(PQ, 4), V_T7, S_WS, S_WS + 3, S_T0))
        S.poll_idx = S.vm_issue("buffer_load_dwordx4 %s, v%d, s[%d:%d], s%d offen offset:16 sc1" % (vr(PQ + 4, 4), V_T7, S_WS, S_WS + 3, S_T0))
    return f

def poll_check(L, b):
    def chk(A):
        A("v_min3_u32 v%d, v%d, v%d, v%d" % (V_X0, PQ + 1, PQ + 3, PQ + 5))
        A("v_max3_u32 v%d, v%d, v%d, v%d" % (V_X1, PQ + 1, PQ + 3, PQ + 5))
        A("v_min_u32 v%d, v%d, v%d" % (V_X0, V_X0, PQ + 7))
        A("v_max_u32 v%d, v%d, v%d" % (V_X1, V_X1, PQ + 7))
        A("v_cmp_ne_u32 vcc, s%d, v%d" % (S_TAG, V_X0))
        A("v_cmp_ne_u32 s[%d:%d], s%d, v%d" % (S_EX, S_EX + 1, S_TAG, V_X1))
        A("s_or_b64 vcc, vcc, s[%d:%d]" % (S_EX, S_EX + 1))
    def f(S):
        A = S.A
        ok = newlab("qok"); retry = newlab("qretry")
        S.vm_wait(S.poll_idx)
        chk(A)
        A.branch("s_cbranch_vccz %s" % ok)
        A("s_mov_b32 s%d, 0x2000" % S_SPIN)
        A.label(retry)
        A("s_sleep 2")
        A("v_and_b32 v%d, 0xff, v%d" % (V_T7, V_KOFF))
        A("v_lshlrev_b32 v%d, 1, v%d" % (V_T7, V_T7))
        A("s_add_u32 s%d, s%d, 0x%x" % (S_T0, S_Q, (L * 2 + b) * 16384))
        A("buffer_load_dwordx4 %s, v%d, s[%d:%d], s%d offen sc1" % (vr(PQ, 4), V_T7, S_WS, S_WS + 3, S_T0))
        A("buffer_load_dwordx4 %s, v%d, s[%d:%d], s%d offen offset:16 sc1" % (vr(PQ + 4, 4), V_T7, S_WS, S_WS + 3, S_T0))
        A("s_waitcnt vmcnt(0)")
        chk(A)
        A("s_sub_u32 s%d, s%d, 1" % (S_SPIN, S_SPIN))
        A.branch("s_cbranch_scc1 %s" % ok)
        A.branch("s_cbranch_vccnz %s" % retry)
        A.label(ok)
        for m in range(4):
            for k in range(4):
                A("v_cndmask_b32_e64 v%d, 0, v%d, s[%d:%d]" % (QB + 4 * m + k, PQ + 2 * k, S_BANK[m], S_BANK[m] + 1))
    return f

S_BANK = [54, 56, 58, 60]

def gen_bank_masks(A):
    for m in range(4):
        v = (0xF << (4 * m)) * 0x00010001
        A("s_mov_b32 s%d, 0x%x" % (S_BANK[m], v))
        A("s_mov_b32 s%d, 0x%x" % (S_BANK[m] + 1, v))

def qp(a): return "quad_perm:[%d,%d,%d,%d] row_mask:0xf bank_mask:0xf" % tuple(a)

def extract(A, j, b):
    D = DK[j & 1]; u = j & 3; sp = SP[b] + (j >> 2)
    if u == 0:
        A("v_add_f32_dpp v%d, v%d, v%d %s" % (V_X0, D + 1, D + 0, qp([1] * 4)))
    else:
        A("v_add_f32_dpp v%d, v%d, v%d %s" % (V_X0, D + 0, D + 1, qp([0] * 4)))
    if u == 2:
        A("v_add_f32_dpp v%d, v%d, v%d %s" % (V_X1, D + 3, D + 2, qp([3] * 4)))
    else:
        A("v_add_f32_dpp v%d, v%d, v%d %s" % (V_X1, D + 2, D + 3, qp([2] * 4)))
    direct = (u == 0 and j < 16)
    dst = sp if direct else V_X0
    if u in (0, 1):
        A("v_add_f32_dpp v%d, v%d, v%d %s" % (dst, V_X1, V_X0, qp([3] * 4)))
    else:
        A("v_add_f32_dpp v%d, v%d, v%d %s" % (dst, V_X0, V_X1, qp([1] * 4)))
    if not direct:
        mk = S_M18 if j == 18 else S_MASK[u]
        A("v_cndmask_b32_e64 v%d, v%d, v%d, s[%d:%d]" % (sp, sp, V_X0, mk, mk + 1))

def k_phase(items, L, b, keepfn, j0=0, j1=NT, first=True, last=True):
    if first:
        items.append(("code", lambda S: S.A("v_mov_b32 v%d, 0xff800000" % (SP[b] + 4))))
    for j in range(j0, j1):
        for m in range(4):
            def fn(areg, j=j, m=m):
                def g(S_A):
                    pass
                D = DK[j & 1]
                return "v_mfma_f32_16x16x32_bf16 %s, %s, %s, %s" % (vr(D, 4), vr(areg, 4), vr(QB + 4 * m, 4), "0" if m == 0 else vr(D, 4))
            items.append(("use", (b, "K", j, m), keepfn((b, "K", j, m)), fn))
        if j > j0:
            items.append(("code", lambda S, j=j: extract(S.A, j - 1, b)))
    items.append(("code", lambda S: extract(S.A, j1 - 1, b)))

def wave_reduce(A, reg, op):
    for sh in (1, 2, 4, 8):
        A("%s_dpp v%d, v%d, v%d row_shr:%d row_mask:0xf bank_mask:0xf" % (op, reg, reg, reg, sh))
    A("%s_dpp v%d, v%d, v%d row_bcast:15 row_mask:0xa bank_mask:0xf" % (op, reg, reg, reg))
    A("%s_dpp v%d, v%d, v%d row_bcast:31 row_mask:0xc bank_mask:0xf" % (op, reg, reg, reg))

def softmax(b):
    def f(S):
        A = S.A; sp = SP[b]
        for k in range(5): A("v_cvt_pk_bf16_f32 v%d, v%d, v%d" % (sp + k, sp + k, sp + k))
        for k in range(5): A("v_and_b32 v%d, 0xffff0000, v%d" % (sp + k, sp + k))
        for k in range(5): A("v_mul_f32 v%d, s%d, v%d" % (sp + k, S_SC, sp + k))
        for k in range(5): A("v_cvt_pk_bf16_f32 v%d, v%d, v%d" % (sp + k, sp + k, sp + k))
        for k in range(5): A("v_and_b32 v%d, 0xffff0000, v%d" % (sp + k, sp + k))
        A("v_max3_f32 v%d, v%d, v%d, v%d" % (V_X0, sp, sp + 1, sp + 2))
        A("v_max3_f32 v%d, v%d, v%d, v%d" % (V_X0, V_X0, sp + 3, sp + 4))
        wave_reduce(A, V_X0, "v_max_f32")
        A("v_readlane_b32 s%d, v%d, 63" % (S_M[b], V_X0))
        A("v_mov_b32 v%d, s%d" % (V_X1, S_M[b]))
        A("v_mul_f32 v%d, s%d, v%d" % (V_X1, S_C, V_X1))
        for k in range(5):
            A("v_fma_f32 v%d, v%d, s%d, -v%d" % (sp + k, sp + k, S_C, V_X1))
        for k in range(5):
            A("v_exp_f32 v%d, v%d" % (sp + k, sp + k))
        A("v_add_f32 v%d, v%d, v%d" % (V_X0, sp, sp + 1))
        A("v_add_f32 v%d, v%d, v%d" % (V_X1, sp + 2, sp + 3))
        A("v_add_f32 v%d, v%d, v%d" % (V_X0, V_X0, sp + 4))
        A("v_add_f32 v%d, v%d, v%d" % (V_X0, V_X0, V_X1))
        for k in range(5):
            A("v_cvt_pk_bf16_f32 v%d, v%d, v%d" % (sp + k, sp + k, sp + k))
        wave_reduce(A, V_X0, "v_add_f32")
        A("v_readlane_b32 s%d, v%d, 63" % (S_L[b], V_X0))
    return f

def build_b(A, B, Y, mu):
    for rho in range(4):
        sh = 4 * ((rho - mu) & 3)
        ctl = "quad_perm:[0,1,2,3]" if sh == 0 else "row_ror:%d" % sh
        A("v_mov_b32_dpp v%d, v%d %s row_mask:0xf bank_mask:0x%x" % (B + rho, Y, ctl, 1 << rho))

def v_phase(items, L, b, keepfn):
    def zero(S):
        for r in range(8):
            S.A("v_mov_b32 v%d, 0" % (BV[0] + r))
    items.append(("code", zero))
    for pi in range(10):
        k = pi >> 1
        Y = YR[pi & 1]
        items.append(("code", lambda S, k=k, Y=Y, pi=pi: S.A("v_and_b32_dpp v%d, v%d, v%d %s" % (Y, SP[b] + k, V_HALF, qp([2, 2, 3, 3] if (pi & 1) else [0, 0, 1, 1])))))
        for mu in range(4):
            par = (pi * 4 + mu) & 1
            items.append(("code", lambda S, par=par, Y=Y, mu=mu: build_b(S.A, BV[par], Y, mu)))
            for cb in range(2):
                first = (pi == 0 and mu == 0)
                def fn(areg, par=par, cb=cb, first=first):
                    return "v_mfma_f32_16x16x32_bf16 %s, %s, %s, %s" % (vr(DV[cb], 4), vr(areg, 4), vr(BV[par], 4), "0" if first else vr(DV[cb], 4))
                p = (b, "V", pi, mu, cb)
                items.append(("use", p, keepfn(p), fn))

def g_reduce(A, D, t1, t2, R, smask):
    A("v_permlane32_swap_b32 v%d, v%d" % (D, D + 1))
    A("v_permlane32_swap_b32 v%d, v%d" % (D + 2, D + 3))
    A("v_add_f32_dpp v%d, v%d, v%d %s" % (t1, D + 1, D, qp([2, 3, 2, 3])))
    A("v_add_f32_dpp v%d, v%d, v%d %s" % (t2, D + 2, D + 3, qp([0, 1, 0, 1])))
    A("v_cndmask_b32_e64 v%d, v%d, v%d, s[%d:%d]" % (R, t1, t2, smask, smask + 1))

def combine(L, b):
    inst = L * 2 + b
    def f(S):
        A = S.A
        t = BV[0]
        S.lg_all()
        g_reduce(A, DV[0], t, t + 1, t + 2, S_MG1)
        g_reduce(A, DV[1], t + 3, t + 4, t + 5, S_MG1)
        A("s_lshl_b32 s%d, s%d, 9" % (S_T0, S_W))
        A("s_add_u32 m0, s%d, %d" % (S_T0, LDS_SCR))
        A("ds_write_addtid_b32 v%d offset:0" % (t + 2))
        A("ds_write_addtid_b32 v%d offset:256" % (t + 5))
        A("v_mov_b32 v%d, s%d" % (t, S_M[b]))
        A("v_mov_b32 v%d, s%d" % (t + 1, S_L[b]))
        A("s_lshl_b32 s%d, s%d, 3" % (S_T0, S_W))
        A("s_add_u32 s%d, s%d, %d" % (S_T0, S_T0, LDS_STAT))
        A("v_mov_b32 v%d, s%d" % (t + 3, S_T0))
        A("ds_write_b64 v%d, %s" % (t + 3, vr(t, 2)))
        A("s_waitcnt lgkmcnt(0)")
        A("s_barrier")
        st = DV[0]
        A("v_mov_b32 v%d, %d" % (t + 3, LDS_STAT))
        A("ds_read_b128 %s, v%d" % (vr(st, 4), t + 3))
        A("ds_read_b128 %s, v%d offset:16" % (vr(st + 4, 4), t + 3))
        A("s_and_b32 s%d, s%d, 1" % (S_T0, S_W))
        A("s_lshl_b32 s%d, s%d, 8" % (S_T0, S_T0))
        A("s_add_u32 m0, s%d, %d" % (S_T0, LDS_SCR))
        for w in range(4):
            A("ds_read_addtid_b32 v%d offset:%d" % (t + 4 + w, w * 512))
        A("s_waitcnt lgkmcnt(4)")
        A("v_max3_f32 v%d, v%d, v%d, v%d" % (t, st, st + 2, st + 4))
        A("v_max_f32 v%d, v%d, v%d" % (t, t, st + 6))
        for w in range(4):
            A("v_sub_f32 v%d, v%d, v%d" % (st + 2 * w, st + 2 * w, t))
            A("v_mul_f32 v%d, s%d, v%d" % (st + 2 * w, S_C, st + 2 * w))
        for w in range(4):
            A("v_exp_f32 v%d, v%d" % (st + 2 * w, st + 2 * w))
        A("v_mul_f32 v%d, v%d, v%d" % (t + 1, st, st + 1))
        for w in range(1, 4):
            A("v_fmac_f32 v%d, v%d, v%d" % (t + 1, st + 2 * w, st + 2 * w + 1))
        A("v_mul_f32 v%d, s%d, v%d" % (t, S_C, t))
        A("s_waitcnt lgkmcnt(0)")
        A("v_mul_f32 v%d, v%d, v%d" % (t + 2, st, t + 4))
        for w in range(1, 4):
            A("v_fmac_f32 v%d, v%d, v%d" % (t + 2, st + 2 * w, t + 4 + w))
        A("v_cndmask_b32_e64 v%d, v%d, v%d, s[%d:%d]" % (t, t, t + 1, S_MODD, S_MODD + 1))
        A("s_cmp_lt_u32 s%d, 2" % S_W)
        A("s_cselect_b64 vcc, -1, 0")
        A("v_cndmask_b32 v%d, v%d, v%d, vcc" % (t + 2, t, t + 2))
        A("v_mov_b32 v%d, s%d" % (t + 3, S_TAG))
        A("s_add_u32 s%d, s%d, 0x%x" % (S_T0, S_P, inst * 32 * 8 * 2048))
        S.vm_issue("buffer_store_dwordx2 %s, v%d, s[%d:%d], s%d offen sc1" % (vr(t + 2, 2), V_PUB, S_WS, S_WS + 3, S_T0))
        A("s_barrier")
        S.lg_done = S.lg_n
    return f
S_MODD = 62

S_STAMP = 64
def stamp(k):
    def f(S):
        if not S.cfg.get("stamps"): return
        A = S.A
        A("s_memrealtime s[%d:%d]" % (S_EX, S_EX + 1))
        A("s_waitcnt lgkmcnt(0)")
        A("s_mov_b32 s%d, s%d" % (S_STAMP + k, S_EX))
        S.lg_done = S.lg_n
    return f

OFF_STAMP = 0x700000
def dump_stamps(A, n):
    A("s_lshl_b32 s%d, s2, 2" % S_T0)
    A("s_add_u32 s%d, s%d, s%d" % (S_T0, S_T0, S_W))
    A("s_lshl_b32 s%d, s%d, 7" % (S_T0, S_T0))
    A("s_add_u32 s%d, s%d, 0x%x" % (S_T0, S_T0, OFF_STAMP))
    A("v_mov_b32 v1, 0")
    for k in range(n):
        A("v_mov_b32 v2, s%d" % (S_STAMP + k))
        A("buffer_store_dword v2, v1, s[%d:%d], s%d offen offset:%d" % (S_WS, S_WS + 3, S_T0, 4 * k))
        A("s_nop 1")

def gen_attn(A, cfg):
    gen_setup1(A)
    S = Sched(A, cfg)
    it = S.items
    def first(S):
        if cfg.get("pf_attn"):
            S.fifo_n += cfg["code_prefetch"](A, "L_attn", "L_chain", cfg["pf_attn"], LT[0], LT[1])
        gen_setup2(A)
    it.append(("code", first))
    wrap = lambda lst: None
    sched = cfg["sched"]
    sched(S, it)
    for i, x in enumerate(it):
        if x[0] == "use":
            fn = x[3]
            it[i] = ("use", x[1], x[2], (lambda areg, fn=fn: A(fn(areg))))
    S.run()
    if cfg.get("stamps"):
        dump_stamps(A, cfg["stamps"])
    A("s_waitcnt vmcnt(0)")
    A.branch("s_branch L_end")
    return S

def sched_simple(S, it):
    drop = lambda p: False
    for (L, b) in ((0, 1), (0, 0), (1, 1), (1, 0)):
        it.append(("code", poll_issue(L, b)))
        it.append(("code", poll_check(L, b), "fence"))
        k_phase(it, L, b, drop)
        it.append(("code", softmax(b)))
        v_phase(it, L, b, drop)
        it.append(("code", combine(L, b), "fence"))

def sched_pipe(S, it):
    cfg = S.cfg
    C = cfg["nlds"] + cfg["nreg"]; R = cfg.get("ring", 12)
    order = [(1, "K", j, m) for j in range(18) for m in range(4)] + [(1, "V", pi, mu, cb) for pi in range(9) for mu in range(4) for cb in range(2)]
    keep1 = set(order[:C - R])
    drop = lambda p: False
    F = "fence"
    it.append(("code", stamp(0), F))
    cap = cfg["cap0"]
    step = 4
    for _ in range(max(0, (cfg.get("npre", 76) - cap) // step)):
        it.append(("drain", cap - step))
    it.append(("code", poll_issue(0, 1)))
    it.append(("code", poll_check(0, 1), F))
    it.append(("code", stamp(1), F))
    k_phase(it, 0, 1, lambda p: p in keep1)
    it.append(("code", softmax(1)))
    it.append(("code", stamp(2), F))
    it.append(("code", poll_issue(0, 0)))
    v_phase(it, 0, 1, lambda p: p in keep1)
    it.append(("code", combine(0, 1), F))
    it.append(("code", stamp(3), F))
    it.append(("code", poll_check(0, 0), F))
    k_phase(it, 0, 0, drop)
    it.append(("code", softmax(0)))
    it.append(("code", stamp(4), F))
    it.append(("loadall",))
    it.append(("code", poll_issue(1, 1)))
    it.append(("code", poll_check(1, 1), F))
    it.append(("code", stamp(5), F))
    it.append(("cap", cfg.get("cap1", 60)))
    k_phase(it, 1, 1, drop)
    it.append(("code", softmax(1)))
    v_phase(it, 1, 1, drop)
    it.append(("code", combine(1, 1), F))
    it.append(("code", stamp(6), F))
    v_phase(it, 0, 0, lambda p: p[2] < 9)
    it.append(("code", combine(0, 0), F))
    it.append(("code", stamp(7), F))
    it.append(("loadall",))
    it.append(("code", poll_issue(1, 0)))
    it.append(("code", poll_check(1, 0), F))
    it.append(("code", stamp(8), F))
    k_phase(it, 1, 0, drop)
    it.append(("code", softmax(0)))
    it.append(("code", stamp(9), F))
    v_phase(it, 1, 0, drop)
    it.append(("code", combine(1, 0), F))
    it.append(("code", stamp(10), F))
```

```python
from emit import *
from layout import *
import math
from attn import qp, build_b, g_reduce, newlab

V_LANE, V_HALF, V_ROW8, V_N8, V_PX, V_X, V_XO, V_B1, V_B2, V_Y = 0, 1, 2, 3, 4, 5, 6, 7, 8, 9
B0 = 10
BX = 26
W0 = 30
YK = [9, 42, 43, 44, 45]
WREG0 = 48
def wq_reg(beta, cb):  return WREG0 + 4 * ((beta - 14) * 2 + cb)
def wo_reg(mu, cb):    return WREG0 + 4 * (8 + mu * 9 + cb)
def w1_reg(beta, cb):  return WREG0 + 4 * (8 + 36 + beta * 2 + cb)
def w2_reg(mu, cb):    return WREG0 + 4 * (8 + 72 + mu * 9 + cb)
SCR = 0
XH = 9216
L_WQ = 10240
L_W1L = L_WQ + 4 * 28672
L_W2X = L_W1L + 4 * 5120
assert L_W2X + 18 * 1024 == 163840
S_WS = 4; S_SRD = 8; S_OUT = 12
S_TAG, S_W, S_C, S_STEP = 16, 17, 18, 19
S_PART, S_YP1, S_YP2, S_X1, S_X2, S_QO, S_B, S_L, S_FAST, S_SPIN = 20, 21, 22, 23, 24, 25, 26, 27, 28, 29
S_MG1, S_MODD, S_ML36, S_MMU2, S_MGP = 30, 32, 34, 36, 38
S_T = list(range(40, 56))
S_EX = 56
S_P = 60
S_EPOCH = 99
OOB = 0x7f000000

def srd(A, base, ptr, size):
    A("s_mov_b32 s%d, s%d" % (base, ptr))
    A("s_and_b32 s%d, s%d, 0xffff" % (base + 1, ptr + 1))
    A("s_mov_b32 s%d, 0x%x" % (base + 2, size))
    A("s_mov_b32 s%d, 0x00020000" % (base + 3))

def bf16r(A, d, s):
    A("v_cvt_pk_bf16_f32 v%d, v%d, v%d" % (d, s, s))
    A("v_and_b32 v%d, 0xffff0000, v%d" % (d, d))

def poll(A, issue, check, first_wait=0, extra=None, sleep=0):
    ok = newlab("ok"); retry = newlab("rt")
    issue()
    if extra: extra()
    A("s_waitcnt vmcnt(%d)" % first_wait)
    check()
    A.branch("s_cbranch_vccz %s" % ok)
    A("s_mov_b32 s%d, 0x2000" % S_SPIN)
    A.label(retry)
    if sleep: A("s_sleep %d" % sleep)
    issue()
    A("s_waitcnt vmcnt(0)")
    check()
    A("s_sub_u32 s%d, s%d, 1" % (S_SPIN, S_SPIN))
    A.branch("s_cbranch_scc1 %s" % ok)
    A.branch("s_cbranch_vccnz %s" % retry)
    A.label(ok)

def tagcheck(A, regs, t0, t1):
    regs = list(regs)
    if len(regs) == 1: regs = regs * 2
    def fold(op3, op2, dst):
        r = regs[:]
        if len(r) >= 3:
            A("%s v%d, v%d, v%d, v%d" % (op3, dst, r[0], r[1], r[2])); r = r[3:]
        else:
            A("%s v%d, v%d, v%d" % (op2, dst, r[0], r[1])); r = r[2:]
        while len(r) >= 2:
            A("%s v%d, v%d, v%d, v%d" % (op3, dst, dst, r[0], r[1])); r = r[2:]
        if r: A("%s v%d, v%d, v%d" % (op2, dst, dst, r[0]))
    fold("v_min3_u32", "v_min_u32", t0)
    fold("v_max3_u32", "v_max_u32", t1)
    A("v_cmp_ne_u32 vcc, s%d, v%d" % (S_TAG, t0))
    A("v_cmp_ne_u32 s[%d:%d], s%d, v%d" % (S_EX, S_EX + 1, S_TAG, t1))
    A("s_or_b64 vcc, vcc, s[%d:%d]" % (S_EX, S_EX + 1))

def store_mode(A, texts, always_sc1=False):
    if always_sc1:
        for t in texts: A(t + " sc1")
        return
    slow = newlab("slow"); done = newlab("sdone")
    A("s_cmp_eq_u32 s%d, 1" % S_FAST)
    A("s_cbranch_scc0 %s" % slow)
    for t in texts: A(t)
    A("s_branch %s" % done)
    A.lines.append(slow + ":")
    for t in texts: A(t + " sc1")
    A.lines.append(done + ":")

def xrow_allreduce(A, z, t):
    A("v_mov_b32 v%d, v%d" % (t, z))
    A("v_permlane16_swap_b32 v%d, v%d" % (z, t))
    A("v_add_f32 v%d, v%d, v%d" % (z, z, t))
    A("v_mov_b32 v%d, v%d" % (t, z))
    A("v_permlane32_swap_b32 v%d, v%d" % (z, t))
    A("v_add_f32 v%d, v%d, v%d" % (z, z, t))

def parity_allreduce(A, z, t):
    for sh in (2, 4, 8):
        A("v_add_f32_dpp v%d, v%d, v%d row_ror:%d row_mask:0xf bank_mask:0xf" % (z, z, z, sh))
    xrow_allreduce(A, z, t)

def pubx(A, s_xoff, always_sc1=False):
    skip = newlab("pubx_skip")
    A("s_cmp_lg_u32 s%d, 0" % S_W)
    A.branch("s_cbranch_scc1 %s" % skip)
    z, t, d = W0, W0 + 1, W0 + 2
    A("v_mul_f32 v%d, v%d, v%d" % (t, V_X, V_X))
    A("v_cndmask_b32_e64 v%d, v%d, v%d, s[%d:%d]" % (z, V_X, t, S_MODD, S_MODD + 1))
    A("v_cndmask_b32_e64 v%d, 0, v%d, s[%d:%d]" % (z, z, S_ML36, S_ML36 + 1))
    parity_allreduce(A, z, t)
    A("v_cndmask_b32_e64 v%d, v%d, v%d, s[%d:%d]" % (d, z, V_X, S_ML36, S_ML36 + 1))
    A("v_mov_b32 v%d, s%d" % (d + 1, S_TAG))
    store_mode(A, ["buffer_store_dwordx2 %s, v%d, s[%d:%d], s%d offen" % (vr(d, 2), V_PX, S_WS, S_WS + 3, s_xoff)], always_sc1)
    A.label(skip)

def gath_ln(A, s_xoff, first_wait=0, extra=None):
    G = W0
    ST = W0 + 10
    t0, t1 = 46, 47
    sa, sb = S_T[0], S_T[1]
    def issue():
        A("s_mul_i32 s%d, s%d, 1152" % (sa, S_W))
        A("s_add_u32 s%d, s%d, s%d" % (sa, sa, s_xoff))
        A("s_add_u32 s%d, s%d, 4608" % (sb, s_xoff))
        A("v_lshlrev_b32 v%d, 3, v%d" % (t0, V_LANE))
        for k in range(5):
            A("buffer_load_dwordx2 %s, v%d, s[%d:%d], s%d offen offset:%d sc1" % (vr(G + 2 * k, 2), V_ROW8, S_WS, S_WS + 3, sa, 256 * k))
        A("buffer_load_dwordx2 %s, v%d, s[%d:%d], s%d offen sc1" % (vr(ST, 2), t0, S_WS, S_WS + 3, sb))
    def check():
        A("v_mov_b32 v%d, s%d" % (t0, S_TAG))
        A("v_cndmask_b32_e64 v%d, v%d, v%d, s[%d:%d]" % (42, t0, G + 9, S_MMU2, S_MMU2 + 1))
        tagcheck(A, [G + 1, G + 3, G + 5, G + 7, 42, ST + 1], t0, t1)
    poll(A, issue, check, first_wait, extra)
    parity_allreduce(A, ST, t0)
    ln_tail(A, ST, [G + 2 * k for k in range(5)], YK, 46, 47)

def ln_tail(A, z, xs, yk, mean, ex2):
    A("v_mov_b32_dpp v%d, v%d %s" % (mean, z, qp([0, 0, 2, 2])))
    A("v_mov_b32_dpp v%d, v%d %s" % (ex2, z, qp([1, 1, 3, 3])))
    A("v_mul_f32 v%d, 0x%x, v%d" % (mean, f2u(1.0 / 576), mean))
    A("v_mul_f32 v%d, 0x%x, v%d" % (ex2, f2u(1.0 / 576), ex2))
    A("v_fma_f32 v%d, -v%d, v%d, v%d" % (ex2, mean, mean, ex2))
    A("v_max_f32 v%d, 0, v%d" % (ex2, ex2))
    bf16r(A, mean, mean)
    bf16r(A, ex2, ex2)
    A("v_add_f32 v%d, 0x%x, v%d" % (ex2, f2u(1e-5), ex2))
    bf16r(A, ex2, ex2)
    A("v_sqrt_f32 v%d, v%d" % (ex2, ex2))
    bf16r(A, ex2, ex2)
    A("v_rcp_f32 v%d, v%d" % (ex2, ex2))
    for x in xs: A("v_sub_f32 v%d, v%d, v%d" % (x, x, mean))
    for x in xs: A("v_cvt_pk_bf16_f32 v%d, v%d, v%d" % (x, x, x))
    for x in xs: A("v_and_b32 v%d, 0xffff0000, v%d" % (x, x))
    for x in xs: A("v_mul_f32 v%d, v%d, v%d" % (x, x, ex2))
    for x in xs: A("v_cvt_pk_bf16_f32 v%d, v%d, v%d" % (x, x, x))
    for x, y in zip(xs, yk): A("v_and_b32 v%d, v%d, v%d" % (y, x, V_HALF))

class LdsPipe:
    def __init__(self, A, reads, temps, depth=None):
        self.A = A; self.reads = reads; self.temps = temps; self.n = 0; self.used = 0
        self.depth = depth or len(temps)
    def fill(self):
        while self.n < len(self.reads) and self.n - self.used < self.depth:
            a, off = self.reads[self.n]
            self.A("ds_read_b128 %s, v%d offset:%d" % (vr(self.temps[self.n % len(self.temps)], 4), a, off))
            self.n += 1
    def get(self):
        out = self.n - 1 - self.used
        self.A("s_waitcnt lgkmcnt(%d)" % out)
        t = self.temps[self.used % len(self.temps)]
        self.used += 1
        return t

def mfma(A, D, a, b, first):
    A("v_mfma_f32_16x16x32_bf16 %s, %s, %s, %s" % (vr(D, 4), vr(a, 4), vr(b, 4), "0" if first else vr(D, 4)))

def zero_b(A, lo, hi):
    for r in range(lo, hi): A("v_mov_b32 v%d, 0" % r)

def qproj(A, s_qoff, YK=YK):
    D = [30, 34]; t1, t2, R0, R1 = 38, 39, 40, 41
    LTMP = [18, 22, 26]; va = 46
    A("s_barrier")
    zero_b(A, B0, B0 + 8)
    A("s_mul_i32 s%d, s%d, 28672" % (S_T[0], S_W))
    A("s_add_u32 s%d, s%d, %d" % (S_T[0], S_T[0], L_WQ))
    A("v_lshlrev_b32 v%d, 4, v%d" % (va, V_LANE))
    A("v_add_u32 v%d, s%d, v%d" % (va, S_T[0], va))
    P = LdsPipe(A, [(va, i * 1024) for i in range(28)], LTMP)
    P.fill()
    for beta in range(18):
        B = B0 + 4 * (beta & 1)
        build_b(A, B, YK[beta >> 2], beta & 3)
        for cb in range(2):
            if beta < 14:
                a = P.get()
            else:
                a = wq_reg(beta, cb)
            mfma(A, D[cb], a, B, beta == 0)
            if beta < 14: P.fill()
    g_reduce(A, D[0], t1, t2, R0, S_MG1)
    g_reduce(A, D[1], t1, t2, R1, S_MG1)
    A("s_lshl_b32 s%d, s%d, 9" % (S_T[0], S_W))
    A("s_add_u32 m0, s%d, %d" % (S_T[0], SCR))
    A("ds_write_addtid_b32 v%d offset:0" % R0)
    A("ds_write_addtid_b32 v%d offset:256" % R1)
    A("s_waitcnt lgkmcnt(0)")
    A("s_barrier")
    skip = newlab("q_skip")
    A("s_cmp_ge_u32 s%d, 2" % S_W)
    A.branch("s_cbranch_scc1 %s" % skip)
    A("s_lshl_b32 s%d, s%d, 8" % (S_T[0], S_W))
    A("s_add_u32 m0, s%d, %d" % (S_T[0], SCR))
    for w in range(4):
        A("ds_read_addtid_b32 v%d offset:%d" % (30 + w, w * 512))
    A("v_lshrrev_b32 v%d, 1, v%d" % (36, V_N8))
    A("v_add_u32 v%d, s%d, v%d" % (36, S_T[0], 36))
    A("v_mov_b32 v%d, %d" % (37, 0))
    A("v_mov_b32 v%d, 0x%x" % (37, OOB))
    A("v_cndmask_b32_e64 v%d, v%d, v%d, s[%d:%d]" % (36, 36, 37, S_MODD, S_MODD + 1))
    A("s_waitcnt lgkmcnt(0)")
    A("v_add_f32 v%d, v%d, v%d" % (30, 30, 31))
    A("v_add_f32 v%d, v%d, v%d" % (32, 32, 33))
    A("v_add_f32 v%d, v%d, v%d" % (30, 30, 32))
    A("v_mov_b32_dpp v%d, v%d %s" % (31, 30, qp([1, 0, 3, 2])))
    A("v_cvt_pk_bf16_f32 v%d, v%d, v%d" % (32, 30, 31))
    A("v_mov_b32 v%d, s%d" % (33, S_TAG))
    A("buffer_store_dwordx2 %s, v%d, s[%d:%d], s%d offen sc1" % (vr(32, 2), 36, S_WS, S_WS + 3, s_qoff))
    A.label(skip)

def proj576(A, wreg, s_yp, ext=False):
    D = [30, 34]; t1, t2, R = 38, 39, 40
    LTMP = [44]; va = 43
    A("s_lshl_b32 s%d, s%d, 8" % (S_T[0], S_W))
    if ext:
        A("s_lshr_b32 s%d, s%d, 1" % (S_T[1], S_W))
        A("s_mul_i32 s%d, s%d, 9216" % (S_T[1], S_T[1]))
        A("s_add_u32 s%d, s%d, %d" % (S_T[1], S_T[1], L_W2X))
        A("v_lshlrev_b32 v%d, 4, v%d" % (va, V_LANE))
        A("v_add_u32 v%d, s%d, v%d" % (va, S_T[1], va))
        P = LdsPipe(A, [(va, i * 1024) for i in range(9)], LTMP)
        P.fill()
    A("s_add_u32 m0, s%d, %d" % (S_T[0], SCR))
    def finish(cb):
        g_reduce(A, D[cb & 1], t1, t2, R, S_MG1)
        A("ds_write_addtid_b32 v%d offset:%d" % (R, cb * 1024))
    for cb in range(9):
        for mu in range(4):
            mfma(A, D[cb & 1], wreg(mu, cb), B0 + 4 * mu, mu == 0)
        if ext:
            A("s_waitcnt lgkmcnt(0)")
            a = LTMP[0]
            mfma(A, D[cb & 1], a, BX, False)
            if cb < 8:
                A("ds_read_b128 %s, v%d offset:%d" % (vr(a, 4), va, (cb + 1) * 1024))
        if cb > 0: finish(cb - 1)
    finish(8)
    A("s_waitcnt lgkmcnt(0)")
    A("s_barrier")
    A("s_lshl_b32 s%d, s%d, 10" % (S_T[0], S_W))
    A("s_add_u32 m0, s%d, %d" % (S_T[0], SCR))
    for blk in range(3):
        for w in range(4):
            A("ds_read_addtid_b32 v%d offset:%d" % (30 + 4 * blk + w, blk * 4096 + w * 256))
    A("s_mul_i32 s%d, s%d, 4608" % (S_T[1], S_C))
    A("s_add_u32 s%d, s%d, s%d" % (S_T[1], S_T[1], s_yp))
    A("s_lshl_b32 s%d, s%d, 9" % (S_T[2], S_W))
    A("s_add_u32 s%d, s%d, s%d" % (S_T[1], S_T[1], S_T[2]))
    A("s_add_u32 s%d, s%d, 4096" % (S_T[2], S_T[1]))
    A("s_cmp_eq_u32 s%d, 0" % S_W)
    A("s_cselect_b32 s%d, s%d, 0x%x" % (S_T[2], S_T[2], OOB))
    for blk in range(3):
        A("s_waitcnt lgkmcnt(%d)" % (8 - 4 * blk))
        r = 30 + 4 * blk
        A("v_add_f32 v%d, v%d, v%d" % (r, r, r + 1))
        A("v_add_f32 v%d, v%d, v%d" % (r + 2, r + 2, r + 3))
        A("v_add_f32 v%d, v%d, v%d" % (r, r, r + 2))
        A("v_mov_b32 v%d, s%d" % (r + 1, S_TAG))
    st = []
    for blk in range(3):
        r = 30 + 4 * blk
        so = S_T[2] if blk == 2 else S_T[1]
        st.append("buffer_store_dwordx2 %s, v%d, s[%d:%d], s%d offen%s" % (vr(r, 2), V_N8, S_WS, S_WS + 3, so, " offset:2048" if blk == 1 else ""))
    store_mode(A, st)
    A("s_barrier")

def oproj(A):
    T = 30; ST = 44; t = [26, 27, 28, 29]
    sa = S_T[0:4]
    zero_b(A, B0, B0 + 16)
    def issue():
        A("s_lshl_b32 s%d, s%d, 8" % (sa[0], S_W))
        A("s_add_u32 s%d, s%d, s%d" % (sa[0], sa[0], S_PART))
        for i in range(1, 4):
            A("s_add_u32 s%d, s%d, %d" % (sa[i], sa[0], 4096 * i))
        A("v_and_b32 v%d, 7, v%d" % (t[0], V_LANE))
        A("v_min_u32 v%d, 6, v%d" % (t[0], t[0]))
        A("v_lshlrev_b32 v%d, 11, v%d" % (t[0], t[0]))
        A("buffer_load_dwordx4 %s, v%d, s[%d:%d], s%d offen offset:1024 sc1" % (vr(ST, 4), t[0], S_WS, S_WS + 3, S_PART))
        for s in range(7):
            A("buffer_load_dwordx2 %s, v%d, s[%d:%d], s%d offen%s sc1" % (vr(T + 2 * s, 2), V_ROW8, S_WS, S_WS + 3, sa[s >> 1], " offset:2048" if (s & 1) else ""))
    def check():
        tagcheck(A, [T + 2 * s + 1 for s in range(7)] + [ST + 1, ST + 3], t[0], t[1])
    poll(A, issue, check, 0, None, sleep=1)
    m, Lr = ST, ST + 2
    A("v_mov_b32 v%d, 0xff800000" % t[0])
    A("v_cndmask_b32_e64 v%d, v%d, v%d, s[%d:%d]" % (m, m, t[0], S_M7, S_M7 + 1))
    A("v_mov_b32 v%d, v%d" % (t[1], m))
    for sh in (1, 2, 4):
        A("v_max_f32_dpp v%d, v%d, v%d row_ror:%d row_mask:0xf bank_mask:0xf" % (t[1], t[1], t[1], sh))
    A("v_sub_f32 v%d, v%d, v%d" % (m, m, t[1]))
    A("v_exp_f32 v%d, v%d" % (m, m))
    A("v_mul_f32 v%d, v%d, v%d" % (Lr, m, Lr))
    for sh in (1, 2, 4):
        A("v_add_f32_dpp v%d, v%d, v%d row_ror:%d row_mask:0xf bank_mask:0xf" % (Lr, Lr, Lr, sh))
    A("v_rcp_f32 v%d, v%d" % (Lr, Lr))
    A("v_mul_f32 v%d, v%d, v%d" % (m, m, Lr))
    o = t[2]
    A("v_mul_f32_dpp v%d, v%d, v%d row_newbcast:0 row_mask:0xf bank_mask:0xf" % (o, m, T))
    for s in range(1, 7):
        A("v_fmac_f32_dpp v%d, v%d, v%d row_newbcast:%d row_mask:0xf bank_mask:0xf" % (o, m, T + 2 * s, s))
    A("v_cvt_pk_bf16_f32 v%d, v%d, v%d" % (o, o, o))
    A("v_and_b32 v%d, v%d, v%d" % (V_Y, o, V_HALF))
    for mu in range(4):
        build_b(A, B0 + 4 * mu, V_Y, mu)
    A("s_barrier")
    proj576(A, wo_reg, S_YP1, ext=False)
S_M7 = 76

def red(A, s_yp, bias):
    L1 = 30; L2 = 34; a1, a2, t0, t1 = 36, 37, 38, 39
    so = S_T[0]
    def issue():
        A("s_mul_i32 s%d, s%d, %d" % (so, S_W, 8 * 4608))
        A("s_add_u32 s%d, s%d, s%d" % (so, so, s_yp))
        A("s_mul_i32 s%d, s%d, 144" % (S_T[1], S_C))
        A("s_add_u32 s%d, s%d, s%d" % (so, so, S_T[1]))
        A("v_lshrrev_b32 v%d, 3, v%d" % (t0, V_LANE))
        A("v_mul_u32_u24 v%d, 4608, v%d" % (t0, t0))
        A("v_and_b32 v%d, 7, v%d" % (t1, V_LANE))
        A("v_lshl_add_u32 v%d, v%d, 4, v%d" % (a1, t1, t0))
        A("v_and_b32 v%d, 1, v%d" % (t1, V_LANE))
        A("v_lshl_add_u32 v%d, v%d, 3, v%d" % (a2, t1, t0))
        A("buffer_load_dwordx4 %s, v%d, s[%d:%d], s%d offen sc1" % (vr(L1, 4), a1, S_WS, S_WS + 3, so))
        A("buffer_load_dwordx2 %s, v%d, s[%d:%d], s%d offen offset:128 sc1" % (vr(L2, 2), a2, S_WS, S_WS + 3, so))
    def check():
        tagcheck(A, [L1 + 1, L1 + 3, L2 + 1], t0, t1)
    poll(A, issue, check)
    A("v_lshrrev_b32 v%d, 3, v%d" % (t0, V_LANE))
    A("s_lshl_b32 s%d, s%d, 3" % (so, S_W))
    A("v_add_u32 v%d, s%d, v%d" % (t0, so, t0))
    A("v_lshlrev_b32 v%d, 2, v%d" % (t0, t0))
    A("v_and_b32 v%d, 7, v%d" % (t1, V_LANE))
    A("v_mul_u32_u24 v%d, 288, v%d" % (a1, t1))
    A("v_add_u32 v%d, v%d, v%d" % (a1, a1, t0))
    A("v_and_b32 v%d, 1, v%d" % (t1, V_LANE))
    A("v_mul_u32_u24 v%d, 144, v%d" % (a2, t1))
    A("v_add_u32 v%d, v%d, v%d" % (a2, a2, t0))
    A("ds_write_b32 v%d, v%d offset:%d" % (a1, L1, SCR))
    A("ds_write_b32 v%d, v%d offset:%d" % (a1, L1 + 2, SCR + 144))
    A("ds_write_b32 v%d, v%d offset:%d" % (a2, L2, SCR + 16 * 144))
    A("s_waitcnt lgkmcnt(0)")
    A("s_barrier")
    skip = newlab("red_skip")
    A("s_cmp_lg_u32 s%d, 0" % S_W)
    A.branch("s_cbranch_scc1 %s" % skip)
    A("v_lshrrev_b32 v%d, 1, v%d" % (t0, V_LANE))
    A("v_mul_u32_u24 v%d, 144, v%d" % (t0, t0))
    A("v_and_b32 v%d, 1, v%d" % (t1, V_LANE))
    A("v_lshl_add_u32 v%d, v%d, 6, v%d" % (t0, t1, t0))
    Q = 30
    tt = 46
    A("v_mov_b32 v%d, v%d" % (tt, t0))
    for k in range(4):
        A("ds_read_b128 %s, v%d offset:%d" % (vr(Q + 4 * k, 4), tt, SCR + 16 * k))
    for k in range(4):
        A("s_waitcnt lgkmcnt(%d)" % (3 - k))
        r = Q + 4 * k
        A("v_add_f32 v%d, v%d, v%d" % (r, r, r + 1))
        A("v_add_f32 v%d, v%d, v%d" % (r + 2, r + 2, r + 3))
        A("v_add_f32 v%d, v%d, v%d" % (r, r, r + 2))
    A("v_add_f32 v%d, v%d, v%d" % (Q, Q, Q + 4))
    A("v_add_f32 v%d, v%d, v%d" % (Q + 8, Q + 8, Q + 12))
    A("v_add_f32 v%d, v%d, v%d" % (Q, Q, Q + 8))
    A("v_add_f32_dpp v%d, v%d, v%d %s" % (Q + 1, Q, Q, qp([1, 0, 3, 2])))
    bf16r(A, Q + 1, Q + 1)
    if bias:
        A("v_add_f32 v%d, v%d, v%d" % (Q + 1, Q + 1, V_B2))
        bf16r(A, Q + 1, Q + 1)
    A("v_add_f32 v%d, v%d, v%d" % (V_X, V_X, Q + 1))
    bf16r(A, V_X, V_X)
    A.label(skip)

def mlp(A):
    D = [30, 34]; DL = 38; RL = 46; t1, t2 = 47, 9
    LTMP = [18, 22, 26]
    A("s_barrier")
    zero_b(A, B0, B0 + 8)
    va = 47
    A("s_mul_i32 s%d, s%d, 5120" % (S_T[0], S_W))
    A("s_add_u32 s%d, s%d, %d" % (S_T[0], S_T[0], L_W1L))
    A("v_lshlrev_b32 v%d, 4, v%d" % (va, V_LANE))
    A("v_add_u32 v%d, s%d, v%d" % (va, S_T[0], va))
    order = [b for q in range(4) for b in range(18) if (b & 3) == q]
    P = LdsPipe(A, [(va, (b >> 2) * 1024) for b in order], LTMP)
    P.fill()
    pend = None
    def extract_left(q):
        A("v_add_f32_dpp v%d, v%d, v%d %s" % (DL, DL + 2, DL, qp([2, 3, 2, 3])))
        A("v_add_f32_dpp v%d, v%d, v%d %s" % (DL + 3, DL + 1, DL + 3, qp([0, 1, 0, 1])))
        A("v_cndmask_b32_e64 v%d, v%d, v%d, s[%d:%d]" % (DL, DL, DL + 3, S_MG1, S_MG1 + 1))
        A("v_mov_b32_dpp v%d, v%d quad_perm:[0,1,2,3] row_mask:0x%x bank_mask:0xf" % (RL, DL, 1 << q))
    for n, beta in enumerate(order):
        B = B0 + 4 * (n & 1)
        q = beta & 3
        newq = (n == 0 or (order[n - 1] & 3) != q)
        build_b(A, B, YK[beta >> 2], q)
        mfma(A, D[0], w1_reg(beta, 0), B, n == 0)
        mfma(A, D[1], w1_reg(beta, 1), B, n == 0)
        if newq and n > 0:
            extract_left(order[n - 1] & 3)
        a = P.get()
        mfma(A, DL, a, B, newq)
        P.fill()
    extract_left(3)
    R0, R1, u1, u2 = 42, 43, 44, 45
    g_reduce(A, D[0], u1, u2, R0, S_MG1)
    g_reduce(A, D[1], u1, u2, R1, S_MG1)
    A("s_mul_i32 s%d, s%d, 768" % (S_T[0], S_W))
    A("s_add_u32 m0, s%d, %d" % (S_T[0], SCR))
    A("ds_write_addtid_b32 v%d offset:0" % R0)
    A("ds_write_addtid_b32 v%d offset:256" % R1)
    A("ds_write_addtid_b32 v%d offset:512" % RL)
    xa = 47
    A("v_lshrrev_b32 v%d, 1, v%d" % (xa, V_N8))
    A("s_lshl_b32 s%d, s%d, 8" % (S_T[1], S_W))
    A("v_add_u32 v%d, s%d, v%d" % (xa, S_T[1], xa))
    A("v_bfe_u32 v%d, v%d, 1, 1" % (u1, V_LANE))
    A("v_lshlrev_b32 v%d, 5, v%d" % (u1, u1))
    A("v_bfe_u32 v%d, v%d, 2, 2" % (u2, V_LANE))
    A("v_lshl_add_u32 v%d, v%d, 3, v%d" % (u1, u2, u1))
    A("v_and_b32 v%d, 1, v%d" % (u2, V_LANE))
    A("v_lshl_add_u32 v%d, v%d, 2, v%d" % (u1, u2, u1))
    A("v_add_u32 v%d, 512, v%d" % (u1, u1))
    A("s_cmp_lt_u32 s%d, 2" % S_W)
    A("s_cselect_b64 vcc, -1, 0")
    A("v_cndmask_b32 v%d, v%d, v%d, vcc" % (xa, u1, xa))
    zero_b(A, 18, 30)
    A("s_waitcnt lgkmcnt(0)")
    A("s_barrier")
    A("s_min_u32 s%d, s%d, 2" % (S_T[0], S_W))
    A("s_lshl_b32 s%d, s%d, 8" % (S_T[0], S_T[0]))
    A("s_add_u32 m0, s%d, %d" % (S_T[0], SCR))
    for w in range(4):
        A("ds_read_addtid_b32 v%d offset:%d" % (30 + w, w * 768))
    A("s_waitcnt lgkmcnt(0)")
    A("v_add_f32 v%d, v%d, v%d" % (30, 30, 31))
    A("v_add_f32 v%d, v%d, v%d" % (32, 32, 33))
    A("v_add_f32 v%d, v%d, v%d" % (30, 30, 32))
    A("v_mov_b32 v%d, v%d" % (31, 30))
    xrow_allreduce(A, 31, 32)
    A("s_cmp_lt_u32 s%d, 2" % S_W)
    A("s_cselect_b64 vcc, -1, 0")
    A("v_cndmask_b32 v%d, v%d, v%d, vcc" % (30, 31, 30))
    bf16r(A, 30, 30)
    A("v_add_f32 v%d, v%d, v%d" % (30, 30, V_B1))
    bf16r(A, 30, 30)
    k = math.sqrt(2.0 / math.pi); a = -2.0 * k * math.log2(math.e); b = a * 0.044715
    A("v_mul_f32 v%d, v%d, v%d" % (31, 30, 30))
    A("v_mov_b32 v%d, 0x%x" % (32, f2u(a)))
    A("v_fmac_f32 v%d, 0x%x, v%d" % (32, f2u(b), 31))
    A("v_mul_f32 v%d, v%d, v%d" % (32, 32, 30))
    A("v_exp_f32 v%d, v%d" % (32, 32))
    A("v_add_f32 v%d, 1.0, v%d" % (32, 32))
    A("v_rcp_f32 v%d, v%d" % (32, 32))
    A("v_mul_f32 v%d, v%d, v%d" % (30, 30, 32))
    A("v_cvt_pk_bf16_f32 v%d, v%d, v%d" % (30, 30, 30))
    A("ds_write_b32 v%d, v%d offset:%d" % (xa, 30, XH))
    A("v_lshrrev_b32 v%d, 1, v%d" % (31, V_ROW8))
    A("s_lshl_b32 s%d, s%d, 7" % (S_T[0], S_W))
    A("v_add_u32 v%d, s%d, v%d" % (32, S_T[0], 31))
    A("s_lshr_b32 s%d, s%d, 1" % (S_T[0], S_W))
    A("s_lshl_b32 s%d, s%d, 5" % (S_T[0], S_T[0]))
    A("v_add_u32 v%d, s%d, v%d" % (33, S_T[0], 31))
    A("s_waitcnt lgkmcnt(0)")
    A("s_barrier")
    A("ds_read_b32 v%d, v%d offset:%d" % (34, 32, XH))
    A("ds_read_b32 v%d, v%d offset:%d" % (35, 33, XH + 512))
    A("s_waitcnt lgkmcnt(0)")
    A("v_and_b32 v%d, v%d, v%d" % (V_Y, 34, V_HALF))
    A("v_and_b32 v%d, v%d, v%d" % (35, 35, V_HALF))
    A("v_cndmask_b32_e64 v%d, 0, v%d, s[%d:%d]" % (35, 35, S_MGP, S_MGP + 1))
    for mu in range(4):
        build_b(A, B0 + 4 * mu, V_Y, mu)
    build_b(A, BX, 35, 0)
    proj576(A, w2_reg, S_YP2, ext=True)

class WLoader:
    VOFF = 26; TT = (27, 28)
    def __init__(self, A):
        self.A = A; self.list = []; self.pos = 0; self.cur_srd = None
    def add(self, mat, kind, sbase, off, dest):
        self.list.append((mat, kind, sbase, off, dest))
    def voff(self, kind):
        A = self.A; v = self.VOFF; t0, t1 = self.TT
        if kind == "L":
            A("v_bfe_u32 v%d, v0, 2, 2" % t0)
            A("v_lshlrev_b32 v%d, 3, v%d" % (t0, t0))
            A("v_lshrrev_b32 v%d, 4, v0" % t1)
            A("v_lshl_add_u32 v%d, v%d, 1, v%d" % (t0, t1, t0))
            A("v_bfe_u32 v%d, v0, 1, 1" % t1)
            A("v_add_u32 v%d, v%d, v%d" % (t0, t0, t1))
            A("v_mul_u32_u24 v%d, 9216, v%d" % (v, t0))
            A("v_and_b32 v%d, 1, v0" % t1)
            A("v_lshl_add_u32 v%d, v%d, 4, v%d" % (v, t1, v))
        else:
            A("v_lshrrev_b32 v%d, 4, v0" % t0)
            A("v_bfe_u32 v%d, v0, 3, 1" % t1)
            A("v_lshl_add_u32 v%d, v%d, 1, v%d" % (t0, t0, t1))
            A("v_mul_u32_u24 v%d, %d, v%d" % (v, kind, t0))
            A("v_and_b32 v%d, 7, v0" % t1)
            A("v_lshl_add_u32 v%d, v%d, 4, v%d" % (v, t1, v))
    def issue(self, n):
        A = self.A
        sizes = {"wq": (S_P + 2, 4718592), "wo": (S_P + 4, 4718592), "w1": (S_P + 6, 5308416), "w2": (S_P + 10, 5308416)}
        curk = None
        for _ in range(n):
            if self.pos >= len(self.list): return
            mat, kind, sbase, off, dest = self.list[self.pos]; self.pos += 1
            if mat != self.cur_srd:
                srd(A, S_SRD, *sizes[mat]); self.cur_srd = mat
            if kind != curk:
                self.voff(kind); curk = kind
            if dest[0] == "r":
                A("s_add_u32 s%d, s%d, 0x%x" % (S_T[8], sbase, off))
                A("buffer_load_dwordx4 %s, v%d, s[%d:%d], s%d offen nt" % (vr(dest[1], 4), self.VOFF, S_SRD, S_SRD + 3, S_T[8]))
            else:
                A("s_add_u32 m0, s%d, 0x%x" % (dest[1], dest[2]))
                A("s_add_u32 s%d, s%d, 0x%x" % (S_T[8], sbase, off))
                A("buffer_load_dwordx4 v%d, s[%d:%d], s%d offen%s lds" % (self.VOFF, S_SRD, S_SRD + 3, S_T[8], "" if kind == "L" else " nt"))
    def left(self): return len(self.list) - self.pos

def gen_chain(A, cfg):
    A.comment("chain setup")
    A("s_lshr_b32 s%d, s2, 3" % S_C)
    A("s_load_dwordx2 s[%d:%d], s[0:1], 0" % (S_P, S_P + 1))
    A("s_load_dwordx4 s[%d:%d], s[0:1], 24" % (S_P + 2 + 2, S_P + 2 + 5) if False else "s_load_dwordx2 s[%d:%d], s[0:1], 24" % (S_P + 2, S_P + 3))
    A("s_load_dwordx2 s[%d:%d], s[0:1], 32" % (S_P + 4, S_P + 5))
    A("s_load_dwordx2 s[%d:%d], s[0:1], 48" % (S_P + 6, S_P + 7))
    A("s_load_dwordx2 s[%d:%d], s[0:1], 56" % (S_P + 8, S_P + 9))
    A("s_load_dwordx2 s[%d:%d], s[0:1], 64" % (S_P + 10, S_P + 11))
    A("s_load_dwordx2 s[%d:%d], s[0:1], 72" % (S_P + 12, S_P + 13))
    A("s_load_dwordx2 s[%d:%d], s[0:1], 80" % (S_P + 14, S_P + 15))
    def m64(s, v):
        A("s_mov_b32 s%d, 0x%x" % (s, v & 0xffffffff)); A("s_mov_b32 s%d, 0x%x" % (s + 1, (v >> 32) & 0xffffffff))
    m64(S_MG1, 0xcccccccccccccccc); m64(S_MODD, 0xaaaaaaaaaaaaaaaa); m64(S_ML36, (1 << 36) - 1)
    m64(S_MMU2, 0x00ff00ff00ff00ff); m64(S_M7, 0x8080808080808080); m64(S_ML32, 0xffffffff)
    A("s_and_b32 s%d, s%d, 1" % (S_T[0], S_W))
    A("s_cmp_eq_u32 s%d, 1" % S_T[0])
    A("s_mov_b32 s%d, 0x33333333" % S_MGP)
    A("s_cselect_b32 s%d, 0xcccccccc, s%d" % (S_MGP, S_MGP))
    A("s_mov_b32 s%d, s%d" % (S_MGP + 1, S_MGP))
    A("s_mov_b32 s%d, 0" % S_FAST)
    t0, t1, t2, t3 = 30, 31, 32, 33
    A("v_and_b32 v%d, 1, v0" % t0)
    A("v_lshlrev_b32 v%d, 4, v%d" % (t0, t0))
    A("v_mov_b32 v%d, 0xffff" % t1)
    A("v_lshlrev_b32 v%d, v%d, v%d" % (V_HALF, t0, t1))
    A("v_bfe_u32 v%d, v0, 2, 2" % t0)
    A("v_lshlrev_b32 v%d, 3, v%d" % (V_ROW8, t0))
    A("v_lshrrev_b32 v%d, 4, v0" % t0)
    A("v_lshl_add_u32 v%d, v%d, 1, v%d" % (V_ROW8, t0, V_ROW8))
    A("v_bfe_u32 v%d, v0, 1, 1" % t0)
    A("v_add_u32 v%d, v%d, v%d" % (V_ROW8, V_ROW8, t0))
    A("v_lshlrev_b32 v%d, 3, v%d" % (V_ROW8, V_ROW8))
    A("v_bfe_u32 v%d, v0, 4, 1" % t0)
    A("v_lshlrev_b32 v%d, 5, v%d" % (V_N8, t0))
    A("v_bfe_u32 v%d, v0, 1, 1" % t0)
    A("v_lshl_add_u32 v%d, v%d, 4, v%d" % (V_N8, t0, V_N8))
    A("v_lshrrev_b32 v%d, 5, v0" % t0)
    A("v_lshl_add_u32 v%d, v%d, 3, v%d" % (V_N8, t0, V_N8))
    A("v_bfe_u32 v%d, v0, 2, 2" % t0)
    A("v_lshl_add_u32 v%d, v%d, 1, v%d" % (V_N8, t0, V_N8))
    A("v_and_b32 v%d, 1, v0" % t0)
    A("v_add_u32 v%d, v%d, v%d" % (V_N8, V_N8, t0))
    A("v_lshlrev_b32 v%d, 3, v%d" % (V_N8, V_N8))
    A("s_waitcnt lgkmcnt(0)")
    SQ, SO, S1, S2, S2X, LQ, L1L, L2X = S_T[9:16] + [78]
    S1L = 77 + 19
    A("s_mul_i32 s%d, s%d, %d" % (SQ, S_W, 144 * 8192))
    A("s_lshl_b32 s%d, s%d, 8" % (S_T[0], S_C))
    A("s_add_u32 s%d, s%d, s%d" % (SQ, SQ, S_T[0]))
    A("s_mul_i32 s%d, s%d, %d" % (SO, S_C, 128 * 1152))
    A("s_mul_i32 s%d, s%d, %d" % (S_T[0], S_W, 32 * 1152))
    A("s_add_u32 s%d, s%d, s%d" % (SO, SO, S_T[0]))
    A("s_mul_i32 s%d, s%d, %d" % (S1, S_W, 144 * 9216))
    A("s_lshl_b32 s%d, s%d, 5" % (S_T[1], S_C))
    A("s_add_u32 s%d, s%d, s%d" % (S1L, S1, S_T[1]))
    A("s_add_u32 s%d, s%d, 8192" % (S1L, S1L))
    A("s_lshl_b32 s%d, s%d, 8" % (S_T[1], S_C))
    A("s_add_u32 s%d, s%d, s%d" % (S1, S1, S_T[1]))
    A("s_mul_i32 s%d, s%d, %d" % (S2, S_C, 128 * 1152))
    A("s_lshr_b32 s%d, s%d, 1" % (S_T[1], S_W))
    A("s_mul_i32 s%d, s%d, %d" % (S2X, S_T[1], 8 * 1152))
    A("s_mul_i32 s%d, s%d, %d" % (S_T[2], S_C, 16 * 1152))
    A("s_add_u32 s%d, s%d, s%d" % (S2X, S2X, S_T[2]))
    A("s_add_u32 s%d, s%d, %d" % (S2X, S2X, 4096 * 1152))
    A("s_add_u32 s%d, s%d, s%d" % (S2, S2, S_T[0]))
    A("s_mul_i32 s%d, s%d, 28672" % (LQ, S_W))
    A("s_add_u32 s%d, s%d, %d" % (LQ, LQ, L_WQ))
    A("s_mul_i32 s%d, s%d, 5120" % (L1L, S_W))
    A("s_add_u32 s%d, s%d, %d" % (L1L, L1L, L_W1L))
    A("s_mul_i32 s%d, s%d, 9216" % (L2X, S_T[1]))
    A("s_add_u32 s%d, s%d, %d" % (L2X, L2X, L_W2X))
    A("s_and_b32 s%d, s%d, 1" % (S_T[1], S_W))
    A("s_mul_i32 s%d, s%d, %d" % (S_T[2], S_T[1], 5 * 1024))
    A("s_add_u32 s%d, s%d, s%d" % (L2X, L2X, S_T[2]))
    A("s_mul_i32 s%d, s%d, %d" % (S_T[2], S_T[1], 5 * 128))
    A("s_add_u32 s%d, s%d, s%d" % (S2X, S2X, S_T[2]))
    srd(A, S_OUT, S_P, 2304)
    FL = {1: 30, 0: 35}; YL = {1: 10, 0: 15}
    A("v_lshlrev_b32 v%d, 2, v0" % 20)
    A("v_lshrrev_b32 v%d, 2, v%d" % (21, V_ROW8))
    A("s_mul_i32 s%d, s%d, 288" % (S_T[1], S_W))
    for b in (1, 0):
        for k in range(5):
            A("buffer_load_dword v%d, v20, s[%d:%d], 0 offen offset:%d" % (FL[b] + k, S_OUT, S_OUT + 3, b * 1152 + 256 * k))
        for k in range(5):
            A("buffer_load_ushort v%d, v21, s[%d:%d], s%d offen offset:%d" % (YL[b] + k, S_OUT, S_OUT + 3, S_T[1], b * 1152 + 64 * k))
    WL = WLoader(A)
    for beta in range(18):
        for cb in range(2):
            off = beta * 65536 + cb * 128
            if cfg.get("wq_test") == 1:
                WL.add("wq", 8192, SQ, off, ("r", WREG0 + 4 * (80 + 2 * beta + cb)))
            elif cfg.get("wq_test") == 2:
                WL.add("wo", 1152, SO, (beta // 5) * 8 * 1152 + ((2 * beta + cb) % 9) * 128, ("l", LQ, (2 * beta + cb) * 1024) if beta < 14 else ("r", wq_reg(beta, cb)))
            else:
                WL.add("wq", 8192, SQ, off, ("l", LQ, (2 * beta + cb) * 1024) if beta < 14 else ("r", wq_reg(beta, cb)))
    for mu in range(4):
        for cb in range(9):
            WL.add("wo", 1152, SO, mu * 8 * 1152 + cb * 128, ("r", wo_reg(mu, cb)))
    for beta in range(18):
        for cb in range(2):
            WL.add("w1", 9216, S1, beta * 8 * 9216 + cb * 128, ("r", w1_reg(beta, cb)))
    for i in range(5):
        WL.add("w1", "L", S1L, i * 32 * 9216, ("l", L1L, i * 1024))
    for mu in range(4):
        for cb in range(9):
            WL.add("w2", 1152, S2, mu * 8 * 1152 + cb * 128, ("r", w2_reg(mu, cb)))
    for j in range(4):
        WL.add("w2", 1152, S2X, j * 128, ("l", L2X, j * 1024))
    ist = lambda k: chain_stamp(A, cfg, 8 + k)
    ist(0)
    WL.issue(36)
    npf = 0
    if cfg.get("pf_chain"):
        npf = cfg["code_prefetch"](A, "L_chain", "L_end", cfg["pf_chain"], 508, 20)
    A("s_mov_b32 s%d, s%d" % (S_EPOCH, S_TAG))
    A("s_mul_i32 s%d, s%d, 0x%x" % (S_TAG, S_TAG, HASH_MUL))
    A("s_add_u32 s%d, s%d, 0x%x" % (S_TAG, S_TAG, HASH_ADD))
    A("s_getreg_b32 s%d, hwreg(HW_REG_XCC_ID)" % S_T[0])
    A("s_and_b32 s%d, s%d, 15" % (S_T[0], S_T[0]))
    A("s_mov_b32 s%d, s%d" % (S_XCC, S_T[0]))
    A("v_mov_b32 v22, s%d" % S_T[0])
    A("v_mov_b32 v23, s%d" % S_TAG)
    A("s_lshl_b32 s%d, s%d, 3" % (S_T[0], S_C))
    A("s_add_u32 s%d, s%d, 0x%x" % (S_T[0], S_T[0], OFF_XC))
    A("v_mov_b32 v24, 0")
    A("buffer_store_dwordx2 v[22:23], v24, s[%d:%d], s%d offen sc1" % (S_WS, S_WS + 3, S_T[0]))
    A("s_waitcnt vmcnt(%d)" % (36 + npf + 1))
    ist(1)
    YKB = {1: YK, 0: [5, 6, 7, 8, 47]}
    for b in (1, 0):
        f = FL[b]; sx, sq, t = 40, 41, 46
        A("v_cndmask_b32_e64 v%d, 0, v%d, s[%d:%d]" % (f + 4, f + 4, S_ML32, S_ML32 + 1))
        for k in range(5):
            A("v_lshlrev_b32 v%d, 16, v%d" % (t, f + k))
            A("v_and_b32 v%d, 0xffff0000, v%d" % (f + k, f + k))
            if k == 0:
                A("v_add_f32 v%d, v%d, v%d" % (sx, t, f + k))
                A("v_mul_f32 v%d, v%d, v%d" % (sq, t, t))
            else:
                A("v_add_f32 v%d, v%d, v%d" % (sx, sx, t))
                A("v_fmac_f32 v%d, v%d, v%d" % (sq, t, t))
                A("v_add_f32 v%d, v%d, v%d" % (sx, sx, f + k))
            A("v_fmac_f32 v%d, v%d, v%d" % (sq, f + k, f + k))
        A("v_add_f32_dpp v%d, v%d, v%d %s" % (sx, sx, sx, qp([1, 0, 3, 2])))
        A("v_add_f32_dpp v%d, v%d, v%d %s" % (sq, sq, sq, qp([1, 0, 3, 2])))
        A("v_cndmask_b32_e64 v%d, v%d, v%d, s[%d:%d]" % (sx, sx, sq, S_MODD, S_MODD + 1))
        parity_allreduce(A, sx, t)
        for k in range(5):
            A("v_lshlrev_b32 v%d, 16, v%d" % (YL[b] + k, YL[b] + k))
        ln_tail(A, sx, [YL[b] + k for k in range(5)], YKB[b], 41, 46)
    WL.issue(20)
    A("s_waitcnt vmcnt(%d)" % (20 + npf + 1))
    ist(2)
    for b in (1, 0):
        A("s_lshl_b32 s%d, s%d, 9" % (S_QO, S_C))
        A("s_add_u32 s%d, s%d, 0x%x" % (S_QO, S_QO, OFF_Q + b * 16384))
        qproj(A, S_QO, YKB[b])
        ist(3 if b == 1 else 4)
        if b == 1:
            A("s_waitcnt vmcnt(20)")
            WL.issue(30)
    srd(A, S_OUT, S_P, 2304)
    A("v_lshrrev_b32 v%d, 1, v0" % t0)
    A("s_mul_i32 s%d, s%d, 18" % (S_T[1], S_C))
    A("v_add_u32 v%d, s%d, v%d" % (t0, S_T[1], t0))
    A("v_lshlrev_b32 v%d, 1, v%d" % (t0, t0))
    A("buffer_load_ushort v%d, v%d, s[%d:%d], 0 offen offset:1152" % (V_X, t0, S_OUT, S_OUT + 3))
    A("buffer_load_ushort v%d, v%d, s[%d:%d], 0 offen" % (V_XO, t0, S_OUT, S_OUT + 3))
    srd(A, S_SRD, S_P + 12, 1152)
    A("buffer_load_ushort v%d, v%d, s[%d:%d], 0 offen" % (V_B2, t0, S_SRD, S_SRD + 3))
    A("v_lshrrev_b32 v%d, 3, v%d" % (t1, V_N8))
    A("s_lshl_b32 s%d, s%d, 6" % (S_T[1], S_W))
    A("v_add_u32 v%d, s%d, v%d" % (t1, S_T[1], t1))
    A("v_bfe_u32 v%d, v0, 1, 1" % t2)
    A("v_lshlrev_b32 v%d, 3, v%d" % (t2, t2))
    A("v_bfe_u32 v%d, v0, 2, 2" % t3)
    A("v_lshl_add_u32 v%d, v%d, 1, v%d" % (t2, t3, t2))
    A("v_and_b32 v%d, 1, v0" % t3)
    A("v_add_u32 v%d, v%d, v%d" % (t2, t2, t3))
    A("s_lshl_b32 s%d, s%d, 4" % (S_T[1], S_C))
    A("s_add_u32 s%d, s%d, 4096" % (S_T[1], S_T[1]))
    A("v_add_u32 v%d, s%d, v%d" % (t2, S_T[1], t2))
    A("s_lshl_b32 s%d, s%d, 7" % (S_T[1], S_C))
    A("v_add_u32 v%d, s%d, v%d" % (t1, S_T[1], t1))
    A("s_cmp_lt_u32 s%d, 2" % S_W)
    A("s_cselect_b64 vcc, -1, 0")
    A("v_cndmask_b32 v%d, v%d, v%d, vcc" % (t1, t2, t1))
    A("v_lshlrev_b32 v%d, 1, v%d" % (t1, t1))
    srd(A, S_SRD, S_P + 8, 9216)
    A("buffer_load_ushort v%d, v%d, s[%d:%d], 0 offen" % (V_B1, t1, S_SRD, S_SRD + 3))
    A("v_lshlrev_b32 v%d, 2, v%d" % (V_PX, t0))
    A("v_mov_b32 v%d, 0x%x" % (t2, OOB))
    A("v_cndmask_b32_e64 v%d, v%d, v%d, s[%d:%d]" % (V_PX, V_PX, t2, S_MODD, S_MODD + 1))
    A("v_cndmask_b32_e64 v%d, v%d, v%d, s[%d:%d]" % (V_PX, t2, V_PX, S_ML36, S_ML36 + 1))
    A("v_and_b32 v%d, 1, v0" % t3)
    A("s_lshl_b32 s%d, s%d, 1" % (S_T[1], S_C))
    A("v_add_u32 v%d, s%d, v%d" % (t3, S_T[1], t3))
    A("v_lshlrev_b32 v%d, 3, v%d" % (t3, t3))
    A("v_add_u32 v%d, 4608, v%d" % (t3, t3))
    A("v_and_b32 v%d, 62, v0" % t2)
    A("v_cmp_eq_u32 vcc, 40, v%d" % t2)
    A("v_cndmask_b32 v%d, v%d, v%d, vcc" % (V_PX, V_PX, t3))
    def xc_issue():
        A("v_and_b32 v34, 31, v0")
        A("v_lshlrev_b32 v34, 3, v34")
        A("s_mov_b32 s%d, 0x%x" % (S_T[0], OFF_XC))
        A("buffer_load_dwordx2 v[36:37], v34, s[%d:%d], s%d offen sc1" % (S_WS, S_WS + 3, S_T[0]))
    xc_issue()
    WL.cur_srd = None
    ist(5)
    while WL.left() > 0:
        A("s_waitcnt vmcnt(30)")
        WL.issue(min(30, WL.left()))
    assert WL.cur_srd == "w2"
    sk = newlab("w2x")
    A("s_waitcnt vmcnt(40)")
    WL.voff(1152)
    A("s_and_b32 s%d, s%d, 1" % (S_T[0], S_W))
    A("s_cmp_eq_u32 s%d, 1" % S_T[0])
    A("s_cbranch_scc1 %s" % sk)
    A("s_add_u32 m0, s%d, 0x%x" % (L2X, 4 * 1024))
    A("s_add_u32 s%d, s%d, 0x%x" % (S_T[8], S2X, 4 * 128))
    A("buffer_load_dwordx4 v%d, s[%d:%d], s%d offen nt lds" % (WL.VOFF, S_SRD, S_SRD + 3, S_T[8]))
    A.label(sk)
    ist(6)
    A("s_waitcnt vmcnt(0)")
    for r in (V_X, V_XO, V_B1, V_B2):
        A("v_lshlrev_b32 v%d, 16, v%d" % (r, r))
    srd(A, S_OUT, S_P + 14, 2304)
    okx = newlab("xok"); rtx = newlab("xrt")
    A("v_cmp_ne_u32 vcc, s%d, v37" % S_TAG)
    A.branch("s_cbranch_vccz %s" % okx)
    A("s_mov_b32 s%d, 0x2000" % S_SPIN)
    A.label(rtx)
    A("s_sleep 2")
    xc_issue()
    A("s_waitcnt vmcnt(0)")
    A("v_cmp_ne_u32 vcc, s%d, v37" % S_TAG)
    A("s_sub_u32 s%d, s%d, 1" % (S_SPIN, S_SPIN))
    A.branch("s_cbranch_scc1 %s" % okx)
    A.branch("s_cbranch_vccnz %s" % rtx)
    A.label(okx)
    A("v_cmp_ne_u32 vcc, s%d, v36" % S_XCC)
    A("s_cmp_eq_u64 vcc, 0")
    A("s_cselect_b32 s%d, %d, 0" % (S_FAST, 0 if cfg.get("force_slow") else 1))
    ist(7)
    if cfg.get("stamps"):
        A("s_lshl_b32 s%d, s2, 2" % S_T[0])
        A("s_add_u32 s%d, s%d, s%d" % (S_T[0], S_T[0], S_W))
        A("s_lshl_b32 s%d, s%d, 5" % (S_T[0], S_T[0]))
        A("s_add_u32 s%d, s%d, 0x780000" % (S_T[0], S_T[0]))
        A("v_mov_b32 v30, 0")
        for k in range(8):
            A("v_mov_b32 v31, s%d" % (S_CST + 8 + k))
            A("buffer_store_dword v31, v30, s[%d:%d], s%d offen offset:%d" % (S_WS, S_WS + 3, S_T[0], 4 * k))
            A("s_nop 1")
    if cfg.get("initonly"):
        A.branch("s_branch L_end")
    A("s_mov_b32 s%d, 2" % S_STEP)
    A.label("L_ch_loop")
    A("s_lshr_b32 s%d, 0xd, s%d" % (S_B, S_STEP))
    A("s_and_b32 s%d, s%d, 1" % (S_B, S_B))
    A("s_lshr_b32 s%d, 0x28, s%d" % (S_L, S_STEP))
    A("s_and_b32 s%d, s%d, 1" % (S_L, S_L))
    A("s_lshl_b32 s%d, s%d, 1" % (S_T[0], S_L))
    A("s_add_u32 s%d, s%d, s%d" % (S_T[0], S_T[0], S_B))
    A("s_lshl_b32 s%d, s%d, 5" % (S_PART, S_T[0]))
    A("s_add_u32 s%d, s%d, s%d" % (S_PART, S_PART, S_C))
    A("s_lshl_b32 s%d, s%d, 14" % (S_PART, S_PART))
    A("s_add_u32 s%d, s%d, 0x%x" % (S_PART, S_PART, OFF_PART))
    A("s_mul_i32 s%d, s%d, 0x%x" % (S_YP1, S_T[0], 2 * YP_STRIDE))
    A("s_add_u32 s%d, s%d, 0x%x" % (S_YP1, S_YP1, OFF_YP))
    A("s_add_u32 s%d, s%d, 0x%x" % (S_YP2, S_YP1, YP_STRIDE))
    A("s_mul_i32 s%d, s%d, 0x%x" % (S_X1, S_T[0], 2 * X_STRIDE))
    A("s_add_u32 s%d, s%d, 0x%x" % (S_X1, S_X1, OFF_X))
    A("s_add_u32 s%d, s%d, 0x%x" % (S_X2, S_X1, X_STRIDE))
    A("s_lshl_b32 s%d, s%d, 14" % (S_QO, S_B))
    A("s_lshl_b32 s%d, s%d, 9" % (S_T[1], S_C))
    A("s_add_u32 s%d, s%d, s%d" % (S_QO, S_QO, S_T[1]))
    A("s_add_u32 s%d, s%d, 0x%x" % (S_QO, S_QO, OFF_Q + 2 * 16384))
    st = lambda k: chain_stamp(A, cfg, k)
    st(0)
    oproj(A)
    st(1)
    red(A, S_YP1, bias=False)
    pubx(A, S_X1)
    st(2)
    gath_ln(A, S_X1)
    st(3)
    mlp(A)
    st(4)
    red(A, S_YP2, bias=True)
    st(5)
    A("s_cmp_eq_u32 s%d, 1" % S_L)
    A.branch("s_cbranch_scc1 L_ch_out")
    pubx(A, S_X2)
    gath_ln(A, S_X2)
    st(6)
    qproj(A, S_QO)
    st(7)
    A.branch("s_branch L_ch_next")
    A.label("L_ch_out")
    A("s_cmp_lg_u32 s%d, 0" % S_W)
    A.branch("s_cbranch_scc1 L_ch_next")
    if cfg.get("perturb"):
        A("s_cmp_eq_u32 s%d, 0" % S_C)
        A("s_cselect_b32 s%d, 0x%x, 0" % (S_T[0], f2u(float(cfg["perturb"]) / 1000.0)))
        A("v_add_f32 v30, s%d, v%d" % (S_T[0], V_X))
        A("v_lshrrev_b32 v30, 16, v30")
    else:
        A("v_lshrrev_b32 v30, 16, v%d" % V_X)
    A("v_lshrrev_b32 v31, 2, v%d" % V_PX)
    A("s_mul_i32 s%d, s%d, 1152" % (S_T[0], S_B))
    A("s_mov_b32 s%d, 0x55555555" % S_EX)
    A("s_mov_b32 s%d, 0x5" % (S_EX + 1))
    A("s_mov_b64 exec, s[%d:%d]" % (S_EX, S_EX + 1))
    A("buffer_store_short v30, v31, s[%d:%d], s%d offen" % (S_OUT, S_OUT + 3, S_T[0]))
    A("s_mov_b64 exec, -1")
    A.label("L_ch_next")
    A("s_cmp_eq_u32 s%d, 3" % S_STEP)
    A("s_cbranch_scc0 L_ch_noswap")
    A("v_swap_b32 v%d, v%d" % (V_X, V_XO))
    A.label("L_ch_noswap")
    if cfg.get("stamps"):
        chain_dump(A, cfg)
    A("s_add_u32 s%d, s%d, 1" % (S_STEP, S_STEP))
    A("s_cmp_lt_u32 s%d, 6" % S_STEP)
    A.branch("s_cbranch_scc1 L_ch_loop")
    A("s_or_b32 s%d, s%d, s%d" % (S_T[0], S_C, S_W))
    A("s_cmp_lg_u32 s%d, 0" % S_T[0])
    A.branch("s_cbranch_scc1 L_end")
    A("s_add_u32 s%d, s%d, 1" % (S_T[0], S_EPOCH))
    A("v_mov_b32 v30, s%d" % S_T[0])
    A("v_mov_b32 v31, 0")
    A("s_mov_b64 exec, 1")
    A("buffer_store_dword v30, v31, s[%d:%d], 0 offen" % (S_WS, S_WS + 3))
    A("s_waitcnt vmcnt(0)")

S_XCC = 79
S_ML32 = 100
S_CST = 80
def chain_stamp(A, cfg, k):
    if not cfg.get("stamps"): return
    A("s_memrealtime s[%d:%d]" % (S_EX, S_EX + 1))
    A("s_waitcnt lgkmcnt(0)")
    A("s_mov_b32 s%d, s%d" % (S_CST + k, S_EX))

def chain_dump(A, cfg):
    A("s_lshl_b32 s%d, s2, 2" % S_T[0])
    A("s_add_u32 s%d, s%d, s%d" % (S_T[0], S_T[0], S_W))
    A("s_lshl_b32 s%d, s%d, 7" % (S_T[0], S_T[0]))
    A("s_sub_u32 s%d, s%d, 2" % (S_T[1], S_STEP))
    A("s_lshl_b32 s%d, s%d, 5" % (S_T[1], S_T[1]))
    A("s_add_u32 s%d, s%d, s%d" % (S_T[0], S_T[0], S_T[1]))
    A("s_add_u32 s%d, s%d, 0x700000" % (S_T[0], S_T[0]))
    A("v_mov_b32 v30, 0")
    for k in range(8):
        A("v_mov_b32 v31, s%d" % (S_CST + k))
        A("buffer_store_dword v31, v30, s[%d:%d], s%d offen offset:%d" % (S_WS, S_WS + 3, S_T[0], 4 * k))
        A("s_nop 1")
```

```python
import sys
sys.path.insert(0, "gen")
from emit import *
from layout import *
import attn, chain

HEADER = """; Kernarg layout (104 bytes): A_x, A_k_cache, A_v_cache, A_wq, A_wo, B_x, B_w1, B_b1, B_w2, B_b2, d_out, d_debug, d_ws
; Generated by gen/main.py (own generator). Persistent kernel: 32 chain workgroups + 224 attention workgroups.
; @launch grid=(256,1,1) block=(256,1,1) lds=163840
.amdgcn_target "amdgcn-amd-amdhsa--gfx950"
.text
.globl %(kn)s_kernel
.p2align 8
.type %(kn)s_kernel,@function
%(kn)s_kernel:
""" % {"kn": KN}
FOOTER = """L_end:
  s_endpgm
.section .rodata,"a"
.p2align 6
.amdhsa_kernel %(kn)s_kernel
  .amdhsa_next_free_vgpr 512
  .amdhsa_next_free_sgpr 102
  .amdhsa_accum_offset 256
  .amdhsa_group_segment_fixed_size 0
  .amdhsa_kernarg_size 104
  .amdhsa_user_sgpr_count 2
  .amdhsa_user_sgpr_kernarg_segment_ptr 1
  .amdhsa_system_sgpr_workgroup_id_x 1
.end_amdhsa_kernel
""" % {"kn": KN}

def prologue(A, cfg={}):
    if cfg.get("stamps"):
        A("s_memrealtime s[90:91]")
    A("s_cmp_ge_u32 s2, 256")
    A("s_cbranch_scc1 L_end")
    A("s_load_dwordx4 s[8:11], s[0:1], 8")
    A("s_load_dwordx2 s[4:5], s[0:1], 96")
    A("v_lshrrev_b32 v1, 6, v0")
    A("v_and_b32 v0, 63, v0")
    A("v_readfirstlane_b32 s17, v1")
    A("s_waitcnt lgkmcnt(0)")
    if cfg.get("stamps"):
        A("s_mov_b32 s%d, s90" % (64 + cfg["stamps"] - 1))
    A("s_and_b32 s5, s5, 0xffff")
    A("s_load_dword s16, s[4:5], 0")
    A("s_mov_b32 s12, s10")
    A("s_and_b32 s13, s11, 0xffff")
    A("s_mov_b32 s14, 0x08000000")
    A("s_mov_b32 s15, 0x00020000")
    A("s_and_b32 s9, s9, 0xffff")
    A("s_mov_b32 s10, 0x08000000")
    A("s_mov_b32 s11, 0x00020000")
    A("s_mov_b32 s6, 0x%x" % WS_SIZE)
    A("s_mov_b32 s7, 0x00020000")
    A("s_and_b32 s3, s2, 7")
    A("s_cmp_eq_u32 s3, 0")
    A.branch("s_cbranch_scc1 L_chain")
    A.lines.append("L_attn:")

def code_prefetch(A, start, end, nbytes, dst, vtmp, wreg=17):
    A("s_getpc_b64 s[92:93]")
    lab = "L_pc_%s" % start
    A.lines.append(lab + ":")
    A("v_lshlrev_b32 v%d, 4, v0" % vtmp)
    A("s_lshl_b32 s94, s%d, 10" % wreg)
    A("v_add_u32 v%d, s94, v%d" % (vtmp, vtmp))
    n = (nbytes + 4095) // 4096
    for i in range(n):
        A("v_min_u32 v%d, %s-%s-16, v%d" % (vtmp + 1, end, lab, vtmp))
        A("global_load_dwordx4 %s, v%d, s[92:93]" % (vr(dst, 4), vtmp + 1))
        A("v_add_u32 v%d, 0x1000, v%d" % (vtmp, vtmp))
    return n

def build(cfg):
    A = Asm()
    prologue(A, cfg)
    cfg["code_prefetch"] = code_prefetch
    if cfg.get("noattn"):
        A.branch("s_branch L_end")
    S = attn.gen_attn(A, cfg)
    A.label("L_chain")
    cfg["code_prefetch"] = code_prefetch
    if cfg.get("chain"):
        cfg["chain"](A, cfg)
    A.branch("s_branch L_end")
    return HEADER + A.text() + FOOTER, A, S

if __name__ == "__main__":
    cfg = dict(nlds=attn.NLDS, nreg=112, cap0=16, cap1=16, npre=76, sched=attn.sched_pipe, la=3, stamps=12, ring=12, chain=chain.gen_chain, pf_attn=28672, pf_chain=20480)
    for a in sys.argv[2:]:
        k, v = a.split("=")
        cfg[k] = int(v) if v.lstrip("-").isdigit() else v
    txt, A, S = build(cfg)
    out = sys.argv[1] if len(sys.argv) > 1 else "k.s"
    open(out, "w").write(txt)
    print("instructions", A.nins, "nops", A.nnops, "loads", S.nloads, "bytes", len(txt))
```

```python
from emit import *
from layout import *
import math
from attn import qp, build_b, g_reduce, newlab

V_LANE, V_HALF, V_ROW8, V_N8, V_PX, V_X, V_XO, V_B1M, V_B2, V_B1E = 0, 1, 2, 3, 4, 5, 6, 7, 8, 9
B0 = 10
BX = 26
YK = [42, 43, 44, 45, 46]
WREG0 = 48
def wq_reg(beta, cb):  return WREG0 + 4 * ((beta - 14) * 2 + cb)
def wo_reg(mu, cb):    return WREG0 + 4 * (8 + mu * 9 + cb)
def w1_reg(beta, cb):  return WREG0 + 4 * (8 + 36 + beta * 2 + cb)
def w2_reg(mu, cb):    return WREG0 + 4 * (8 + 72 + mu * 9 + cb)
SCR = 0
L_WQ = 10240
L_W1L = L_WQ + 4 * 28672
L_W2X = L_W1L + 4 * 5120
assert L_W2X + 18 * 1024 == 163840
S_WS = 4; S_SRD = 8; S_OUT = 12
S_TAG, S_W, S_C, S_STEP = 16, 17, 18, 19
S_PART, S_YP1, S_YP2, S_X1, S_X2, S_QO, S_B, S_L, S_FAST, S_SPIN = 20, 21, 22, 23, 24, 25, 26, 27, 28, 29
S_MG1, S_MODD, S_ML36, S_MMU2, S_MGP = 30, 32, 34, 36, 38
S_T = list(range(40, 56))
S_EX = 56
S_P = 60
S_M7 = 76
S_XCC = 79
S_CST = 80
S_DBG = 80
S_EPOCH = 99
S_ML32 = 100
S_TL = 97
OOB = 0x7f000000

class Cap:
    def __init__(self): self.l = []
    def __call__(self, t): self.l.append(t)

def weave(A, main, fill, per=1):
    fill = list(fill)
    for m in main:
        A(m)
        for _ in range(per):
            if fill: A(fill.pop(0))
    for f in fill: A(f)

class LG:
    def __init__(self, A): self.A = A; self.n = 0; self.done = 0
    def issue(self, t): self.A(t); self.n += 1; return self.n - 1
    def count(self): self.n += 1; return self.n - 1
    def wait_text(self, idx):
        if idx < self.done: return None
        k = self.n - 1 - idx; self.done = idx + 1
        return "s_waitcnt lgkmcnt(%d)" % k
    def wait(self, idx):
        t = self.wait_text(idx)
        if t: self.A(t)

def srd(A, base, ptr, size):
    A("s_mov_b32 s%d, s%d" % (base, ptr))
    A("s_and_b32 s%d, s%d, 0xffff" % (base + 1, ptr + 1))
    A("s_mov_b32 s%d, 0x%x" % (base + 2, size))
    A("s_mov_b32 s%d, 0x00020000" % (base + 3))

def bf16r(A, d, s):
    A("v_cvt_pk_bf16_f32 v%d, v%d, v%d" % (d, s, s))
    A("v_and_b32 v%d, 0xffff0000, v%d" % (d, d))

def poll(A, issue, check, between=None, sleep=0):
    ok = newlab("ok"); retry = newlab("rt")
    issue()
    if between: between()
    A("s_waitcnt vmcnt(0)")
    check()
    A.branch("s_cbranch_vccz %s" % ok)
    A("s_mov_b32 s%d, 0x2000" % S_SPIN)
    A.label(retry)
    if sleep: A("s_sleep %d" % sleep)
    issue()
    A("s_waitcnt vmcnt(0)")
    check()
    A("s_sub_u32 s%d, s%d, 1" % (S_SPIN, S_SPIN))
    A.branch("s_cbranch_scc1 %s" % ok)
    A.branch("s_cbranch_vccnz %s" % retry)
    A.label(ok)

def tagcheck(A, regs, t0, t1, stag=None):
    stag = S_TL if stag is None else stag
    regs = list(regs)
    def fold(op3, op2, dst):
        r = regs[:]
        A("%s v%d, v%d, v%d, v%d" % (op3, dst, r[0], r[1], r[2])); r = r[3:]
        while len(r) >= 2:
            A("%s v%d, v%d, v%d, v%d" % (op3, dst, dst, r[0], r[1])); r = r[2:]
        if r: A("%s v%d, v%d, v%d" % (op2, dst, dst, r[0]))
    c1, c2 = Cap(), Cap()
    A0 = A
    A = c1; fold("v_min3_u32", "v_min_u32", t0)
    A = c2; fold("v_max3_u32", "v_max_u32", t1)
    A = A0
    weave(A, c1.l, c2.l)
    A("v_cmp_ne_u32 vcc, s%d, v%d" % (stag, t0))
    A("v_cmp_ne_u32 s[%d:%d], s%d, v%d" % (S_EX, S_EX + 1, stag, t1))
    A("s_or_b64 vcc, vcc, s[%d:%d]" % (S_EX, S_EX + 1))

def store_mode(A, texts):
    slow = newlab("slow"); done = newlab("sdone")
    A("s_cmp_eq_u32 s%d, 1" % S_FAST)
    A("s_cbranch_scc0 %s" % slow)
    for t in texts: A(t)
    A("s_branch %s" % done)
    A.lines.append(slow + ":")
    for t in texts: A(t + " sc1")
    A.lines.append(done + ":")

def xrow_allreduce(A, z, t):
    A("v_mov_b32 v%d, v%d" % (t, z))
    A("v_permlane16_swap_b32 v%d, v%d" % (z, t))
    A("v_add_f32 v%d, v%d, v%d" % (z, z, t))
    A("v_mov_b32 v%d, v%d" % (t, z))
    A("v_permlane32_swap_b32 v%d, v%d" % (z, t))
    A("v_add_f32 v%d, v%d, v%d" % (z, z, t))

def parity_allreduce(A, z, t):
    for sh in (2, 4, 8):
        A("v_add_f32_dpp v%d, v%d, v%d row_ror:%d row_mask:0xf bank_mask:0xf" % (z, z, z, sh))
    xrow_allreduce(A, z, t)

def mfma_t(D, a, b, first):
    return "v_mfma_f32_16x16x32_bf16 %s, %s, %s, %s" % (vr(D, 4), vr(a, 4), vr(b, 4), "0" if first else vr(D, 4))

def zero_b(A, lo, hi):
    for r in range(lo, hi): A("v_mov_b32 v%d, 0" % r)

def cap_build(B, Y, mu):
    c = Cap(); build_b(c, B, Y, mu); return c.l

def ln_tail(A, z, xs, yk, mean, ex2, fill=()):
    A("v_mov_b32_dpp v%d, v%d %s" % (mean, z, qp([0, 0, 2, 2])))
    A("v_mov_b32_dpp v%d, v%d %s" % (ex2, z, qp([1, 1, 3, 3])))
    A("v_mul_f32 v%d, 0x%x, v%d" % (mean, f2u(1.0 / 576), mean))
    A("v_mul_f32 v%d, 0x%x, v%d" % (ex2, f2u(1.0 / 576), ex2))
    A("v_fma_f32 v%d, -v%d, v%d, v%d" % (ex2, mean, mean, ex2))
    c1, c2 = Cap(), Cap()
    c1("v_max_f32 v%d, 0, v%d" % (ex2, ex2))
    bf16r(c1, ex2, ex2)
    c1("v_add_f32 v%d, 0x%x, v%d" % (ex2, f2u(1e-5), ex2))
    bf16r(c1, ex2, ex2)
    c1("v_sqrt_f32 v%d, v%d" % (ex2, ex2))
    bf16r(c1, ex2, ex2)
    c1("v_rcp_f32 v%d, v%d" % (ex2, ex2))
    bf16r(c2, mean, mean)
    for x in xs: c2("v_sub_f32 v%d, v%d, v%d" % (x, x, mean))
    for x in xs: c2("v_cvt_pk_bf16_f32 v%d, v%d, v%d" % (x, x, x))
    for x in xs: c2("v_and_b32 v%d, 0xffff0000, v%d" % (x, x))
    weave(A, c1.l, c2.l, per=2)
    for x in xs: A("v_mul_f32 v%d, v%d, v%d" % (x, x, ex2))
    for x in xs: A("v_cvt_pk_bf16_f32 v%d, v%d, v%d" % (x, x, x))
    for x, y in zip(xs, yk): A("v_and_b32 v%d, v%d, v%d" % (y, x, V_HALF))

def pubx(A, s_xoff):
    z, t, d = 30, 31, 32
    A("v_mul_f32 v%d, v%d, v%d" % (t, V_X, V_X))
    A("v_cndmask_b32_e64 v%d, v%d, v%d, s[%d:%d]" % (z, V_X, t, S_MODD, S_MODD + 1))
    A("v_cndmask_b32_e64 v%d, 0, v%d, s[%d:%d]" % (z, z, S_ML36, S_ML36 + 1))
    A("v_mov_b32 v%d, s%d" % (d + 1, S_TL))
    parity_allreduce(A, z, t)
    A("v_cndmask_b32_e64 v%d, v%d, v%d, s[%d:%d]" % (d, z, V_X, S_ML36, S_ML36 + 1))
    store_mode(A, ["buffer_store_dwordx2 %s, v%d, s[%d:%d], s%d offen" % (vr(d, 2), V_PX, S_WS, S_WS + 3, s_xoff)])

def gath_ln(A, s_xoff):
    G = 30; ST = 40
    sa, sb = S_T[0], S_T[1]
    A("s_mul_i32 s%d, s%d, 1152" % (sa, S_W))
    A("s_add_u32 s%d, s%d, s%d" % (sa, sa, s_xoff))
    A("s_add_u32 s%d, s%d, 4608" % (sb, s_xoff))
    A("v_lshlrev_b32 v%d, 3, v%d" % (46, V_LANE))
    def issue():
        A("buffer_load_dwordx2 %s, v%d, s[%d:%d], s%d offen sc1" % (vr(ST, 2), 46, S_WS, S_WS + 3, sb))
        for k in range(5):
            A("buffer_load_dwordx2 %s, v%d, s[%d:%d], s%d offen offset:%d sc1" % (vr(G + 2 * k, 2), V_ROW8, S_WS, S_WS + 3, sa, 256 * k))
    def check():
        A("v_mov_b32 v%d, s%d" % (47, S_TL))
        A("v_cndmask_b32_e64 v%d, v%d, v%d, s[%d:%d]" % (43, 47, G + 9, S_MMU2, S_MMU2 + 1))
        tagcheck(A, [G + 1, G + 3, G + 5, G + 7, 43, ST + 1], 47, 42)
    poll(A, issue, check)
    if FINE.get("g", 0) == 0: fst(A, 5)
    FINE["g"] = FINE.get("g", 0) + 1
    parity_allreduce(A, ST, 47)
    ln_tail(A, ST, [G + 2 * k for k in range(5)], YK, 47, 41)

def qproj(A, s_qoff, YKs=YK, pre_barrier=True):
    D = [30, 34]; t1, t2, R0, R1 = 38, 39, 40, 41
    LT = [18, 22, 26]; va = 47
    if pre_barrier: A("s_barrier")
    A("s_mul_i32 s%d, s%d, 28672" % (S_T[0], S_W))
    A("s_add_u32 s%d, s%d, %d" % (S_T[0], S_T[0], L_WQ))
    A("v_lshlrev_b32 v%d, 4, v%d" % (va, V_LANE))
    A("v_add_u32 v%d, s%d, v%d" % (va, S_T[0], va))
    lg = LG(A); rd = {}
    nxt = [0]
    def rd_text():
        i = nxt[0]
        if i >= 28: return None
        nxt[0] += 1
        rd[i] = lg.count()
        return "ds_read_b128 %s, v%d offset:%d" % (vr(LT[i % 3], 4), va, i * 1024)
    for _ in range(3): A(rd_text())
    for t in cap_build(B0, YKs[0], 0): A(t)
    for beta in range(18):
        B = B0 + 4 * (beta & 1)
        nb = cap_build(B0 + 4 * ((beta + 1) & 1), YKs[(beta + 1) >> 2], (beta + 1) & 3) if beta < 17 else []
        for cb in range(2):
            if beta < 14:
                i = 2 * beta + cb
                lg.wait(rd[i]); a = LT[i % 3]
            else:
                a = wq_reg(beta, cb)
            A(mfma_t(D[cb], a, B, beta == 0))
            if beta < 14:
                t = rd_text()
                if t: A(t)
            for t in nb[2 * cb:2 * cb + 2]: A(t)
    c1, c2 = Cap(), Cap()
    g_reduce(c1, D[0], D[0], D[0] + 3, D[0], S_MG1)
    g_reduce(c2, D[1], D[1], D[1] + 3, D[1], S_MG1)
    A("v_lshrrev_b32 v%d, 1, v%d" % (va, V_N8))
    A("s_lshl_b32 s%d, s%d, 9" % (S_T[0], S_W))
    A("v_add_u32 v%d, s%d, v%d" % (va, S_T[0], va))
    weave(A, c1.l, c2.l)
    A("ds_write_b32 v%d, v%d offset:%d" % (va, D[0], SCR))
    A("ds_write_b32 v%d, v%d offset:%d" % (va, D[1], SCR + 256))
    A("v_lshlrev_b32 v%d, 3, v%d" % (va, V_LANE))
    A("v_mov_b32 v%d, s%d" % (39, S_TAG))
    A("s_waitcnt lgkmcnt(0)")
    A("s_barrier")
    skip = newlab("q_skip")
    A("s_cmp_lg_u32 s%d, 0" % S_W)
    A("s_cbranch_scc1 %s" % skip)
    for w in range(4):
        A("ds_read_b64 %s, v%d offset:%d" % (vr(30 + 2 * w, 2), va, SCR + w * 512))
    A("s_waitcnt lgkmcnt(2)")
    A("v_add_f32 v30, v30, v32")
    A("v_add_f32 v31, v31, v33")
    A("s_waitcnt lgkmcnt(0)")
    A("v_add_f32 v34, v34, v36")
    A("v_add_f32 v35, v35, v37")
    A("v_add_f32 v30, v30, v34")
    A("v_add_f32 v31, v31, v35")
    A("v_cvt_pk_bf16_f32 v38, v30, v31")
    A("buffer_store_dwordx2 v[38:39], v%d, s[%d:%d], s%d offen sc1" % (va, S_WS, S_WS + 3, s_qoff))
    A.label(skip)

def proj576(A, wreg, s_yp, ext=False):
    D = [30, 34, 38]
    LTX = 44; VAX = 42
    lg = LG(A)
    A("s_lshl_b32 s%d, s%d, 8" % (S_T[0], S_W))
    A("s_add_u32 m0, s%d, %d" % (S_T[0], SCR))
    rdx = {}
    def V(cb):
        c = Cap()
        d = D[cb % 3]
        g_reduce(c, d, d, d + 3, d, S_MG1)
        return c.l
    def wr(cb):
        lg.issue("ds_write_addtid_b32 v%d offset:%d" % (D[cb % 3], cb * 1024))
    for cb in range(9):
        d = D[cb % 3]
        fill = V(cb - 2) if cb >= 2 else []
        if ext:
            if cb == 0: A("s_waitcnt lgkmcnt(0)")
            else: lg.wait(rdx[cb])
            A(mfma_t(d, LTX, BX, True))
            if cb < 8:
                rdx[cb + 1] = lg.issue("ds_read_b128 %s, v%d offset:%d" % (vr(LTX, 4), VAX, (cb + 1) * 1024))
        for mu in range(4):
            A(mfma_t(d, wreg(mu, cb), B0 + 4 * mu, (mu == 0 and not ext)))
            for _ in range(2 if mu < 3 else 9):
                if fill: A(fill.pop(0))
        if cb >= 2: wr(cb - 2)
    for cb in (7, 8):
        for t in V(cb): A(t)
        wr(cb)
    A("s_mul_i32 s%d, s%d, 4608" % (S_T[1], S_C))
    A("s_add_u32 s%d, s%d, s%d" % (S_T[1], S_T[1], s_yp))
    A("s_lshl_b32 s%d, s%d, 9" % (S_T[2], S_W))
    A("s_add_u32 s%d, s%d, s%d" % (S_T[1], S_T[1], S_T[2]))
    A("s_add_u32 s%d, s%d, 4096" % (S_T[2], S_T[1]))
    A("s_cmp_eq_u32 s%d, 0" % S_W)
    A("s_cselect_b32 s%d, s%d, 0x%x" % (S_T[2], S_T[2], OOB))
    A("s_lshl_b32 s%d, s%d, 10" % (S_T[0], S_W))
    A("s_waitcnt lgkmcnt(0)")
    A("s_barrier")
    A("s_add_u32 m0, s%d, %d" % (S_T[0], SCR))
    for blk in range(3):
        for w in range(4):
            A("ds_read_addtid_b32 v%d offset:%d" % (30 + 4 * blk + w, blk * 4096 + w * 256))
    for blk in range(3):
        A("s_waitcnt lgkmcnt(%d)" % (8 - 4 * blk))
        r = 30 + 4 * blk
        A("v_add_f32 v%d, v%d, v%d" % (r, r, r + 1))
        A("v_add_f32 v%d, v%d, v%d" % (r + 2, r + 2, r + 3))
        A("v_mov_b32 v%d, s%d" % (r + 1, S_TL))
        A("v_add_f32 v%d, v%d, v%d" % (r, r, r + 2))
    st = []
    for blk in range(3):
        r = 30 + 4 * blk
        so = S_T[2] if blk == 2 else S_T[1]
        st.append("buffer_store_dwordx2 %s, v%d, s[%d:%d], s%d offen%s" % (vr(r, 2), V_N8, S_WS, S_WS + 3, so, " offset:2048" if blk == 1 else ""))
    store_mode(A, st)

def oproj(A):
    T = 30; ST = 44; t = [26, 27, 28, 29]
    sa = S_T[0:4]
    zero_b(A, 18, 26)
    A("s_lshl_b32 s%d, s%d, 8" % (sa[0], S_W))
    A("s_add_u32 s%d, s%d, s%d" % (sa[0], sa[0], S_PART))
    for i in range(1, 4):
        A("s_add_u32 s%d, s%d, %d" % (sa[i], sa[0], 4096 * i))
    A("v_and_b32 v%d, 7, v%d" % (t[3], V_LANE))
    A("v_min_u32 v%d, 6, v%d" % (t[3], t[3]))
    A("v_lshlrev_b32 v%d, 11, v%d" % (t[3], t[3]))
    def issue():
        A("buffer_load_dwordx4 %s, v%d, s[%d:%d], s%d offen offset:1024 sc1" % (vr(ST, 4), t[3], S_WS, S_WS + 3, S_PART))
        for s in range(7):
            A("buffer_load_dwordx2 %s, v%d, s[%d:%d], s%d offen%s sc1" % (vr(T + 2 * s, 2), V_ROW8, S_WS, S_WS + 3, sa[s >> 1], " offset:2048" if (s & 1) else ""))
    def check():
        tagcheck(A, [T + 2 * s + 1 for s in range(7)] + [ST + 1, ST + 3], t[0], t[1], S_TAG)
    poll(A, issue, check)
    m, Lr = ST, ST + 2
    A("v_mov_b32 v%d, 0xff800000" % t[0])
    A("v_cndmask_b32_e64 v%d, v%d, v%d, s[%d:%d]" % (m, m, t[0], S_M7, S_M7 + 1))
    A("v_max_f32_dpp v%d, v%d, v%d row_ror:1 row_mask:0xf bank_mask:0xf" % (t[1], m, m))
    for sh in (2, 4):
        A("v_max_f32_dpp v%d, v%d, v%d row_ror:%d row_mask:0xf bank_mask:0xf" % (t[1], t[1], t[1], sh))
    A("v_sub_f32 v%d, v%d, v%d" % (m, m, t[1]))
    A("v_exp_f32 v%d, v%d" % (m, m))
    A("v_mul_f32 v%d, v%d, v%d" % (Lr, m, Lr))
    o, o2 = t[2], t[0]
    c1, c2 = Cap(), Cap()
    for sh in (1, 2, 4):
        c1("v_add_f32_dpp v%d, v%d, v%d row_ror:%d row_mask:0xf bank_mask:0xf" % (Lr, Lr, Lr, sh))
    c1("v_rcp_f32 v%d, v%d" % (Lr, Lr))
    c2("v_mul_f32_dpp v%d, v%d, v%d row_newbcast:0 row_mask:0xf bank_mask:0xf" % (o, m, T))
    c2("v_mul_f32_dpp v%d, v%d, v%d row_newbcast:1 row_mask:0xf bank_mask:0xf" % (o2, m, T + 2))
    for s in range(2, 7):
        c2("v_fmac_f32_dpp v%d, v%d, v%d row_newbcast:%d row_mask:0xf bank_mask:0xf" % (o if s % 2 == 0 else o2, m, T + 2 * s, s))
    c2("v_add_f32 v%d, v%d, v%d" % (o, o, o2))
    weave(A, c1.l, c2.l, per=2)
    A("v_mul_f32 v%d, v%d, v%d" % (o, o, Lr))
    A("v_cvt_pk_bf16_f32 v%d, v%d, v%d" % (o, o, o))
    A("v_and_b32 v%d, v%d, v%d" % (o, o, V_HALF))
    for mu in range(4):
        build_b(A, B0 + 4 * mu, o, mu)
    A("s_barrier")
    proj576(A, wo_reg, S_YP1, ext=False)

FINE = {"cfg": None}
def fst(A, k):
    cfg = FINE["cfg"]
    if cfg and cfg.get("fine"): chain_stamp(A, cfg, k)

def red(A, s_yp, bias, tail):
    L1 = 30; L2 = 34; a1, a2, w1a, w2a, t0, t1 = 36, 37, 38, 39, 40, 41
    so = S_T[0]
    A("s_mul_i32 s%d, s%d, %d" % (so, S_W, 8 * 4608))
    A("s_add_u32 s%d, s%d, s%d" % (so, so, s_yp))
    A("s_mul_i32 s%d, s%d, 144" % (S_T[1], S_C))
    A("s_add_u32 s%d, s%d, s%d" % (so, so, S_T[1]))
    A("v_lshrrev_b32 v%d, 3, v%d" % (t0, V_LANE))
    A("v_mul_u32_u24 v%d, 4608, v%d" % (a2, t0))
    A("v_and_b32 v%d, 7, v%d" % (t1, V_LANE))
    A("v_lshl_add_u32 v%d, v%d, 4, v%d" % (a1, t1, a2))
    A("v_and_b32 v%d, 1, v%d" % (47, V_LANE))
    A("v_lshl_add_u32 v%d, v%d, 3, v%d" % (a2, 47, a2))
    def issue():
        A("buffer_load_dwordx4 %s, v%d, s[%d:%d], s%d offen sc1" % (vr(L1, 4), a1, S_WS, S_WS + 3, so))
        A("buffer_load_dwordx2 %s, v%d, s[%d:%d], s%d offen offset:128 sc1" % (vr(L2, 2), a2, S_WS, S_WS + 3, so))
    def between():
        A("s_lshl_b32 s%d, s%d, 5" % (S_T[1], S_W))
        A("v_lshlrev_b32 v%d, 2, v%d" % (t0, t0))
        A("v_add_u32 v%d, s%d, v%d" % (t0, S_T[1], t0))
        A("v_mul_u32_u24 v%d, 288, v%d" % (w1a, t1))
        A("v_add_u32 v%d, v%d, v%d" % (w1a, w1a, t0))
        A("v_mul_u32_u24 v%d, 144, v%d" % (w2a, 47))
        A("v_add_u32 v%d, v%d, v%d" % (w2a, w2a, t0))
        A("v_lshrrev_b32 v%d, 1, v%d" % (46, V_LANE))
        A("v_mul_u32_u24 v%d, 144, v%d" % (46, 46))
        A("v_lshl_add_u32 v%d, v%d, 6, v%d" % (46, 47, 46))
        A("s_barrier")
    def check():
        tagcheck(A, [L1 + 1, L1 + 3, L2 + 1], 42, 43)
    poll(A, issue, check, between)
    if not bias: fst(A, 2)
    A("ds_write_b32 v%d, v%d offset:%d" % (w1a, L1, SCR))
    A("ds_write_b32 v%d, v%d offset:%d" % (w1a, L1 + 2, SCR + 144))
    A("ds_write_b32 v%d, v%d offset:%d" % (w2a, L2, SCR + 16 * 144))
    A("s_waitcnt lgkmcnt(0)")
    A("s_barrier")
    if not bias: fst(A, 3)
    skip = newlab("red_skip")
    A("s_cmp_lg_u32 s%d, 0" % S_W)
    A("s_cbranch_scc1 %s" % skip)
    Q = 30
    for k in range(4):
        A("ds_read_b128 %s, v%d offset:%d" % (vr(Q + 4 * k, 4), 46, SCR + 16 * k))
    for k in range(4):
        A("s_waitcnt lgkmcnt(%d)" % (3 - k))
        r = Q + 4 * k
        A("v_add_f32 v%d, v%d, v%d" % (r, r, r + 1))
        A("v_add_f32 v%d, v%d, v%d" % (r + 2, r + 2, r + 3))
        A("v_add_f32 v%d, v%d, v%d" % (r, r, r + 2))
    A("v_add_f32 v%d, v%d, v%d" % (Q, Q, Q + 4))
    A("v_add_f32 v%d, v%d, v%d" % (Q + 8, Q + 8, Q + 12))
    A("v_add_f32 v%d, v%d, v%d" % (Q, Q, Q + 8))
    A("v_add_f32_dpp v%d, v%d, v%d %s" % (Q + 1, Q, Q, qp([1, 0, 3, 2])))
    bf16r(A, Q + 1, Q + 1)
    if bias:
        A("v_add_f32 v%d, v%d, v%d" % (Q + 1, Q + 1, V_B2))
        bf16r(A, Q + 1, Q + 1)
    A("v_add_f32 v%d, v%d, v%d" % (V_X, V_X, Q + 1))
    bf16r(A, V_X, V_X)
    tail(A)
    A.label(skip)
    if not bias: fst(A, 4)

def mlp(A):
    D = [30, 34]; DL = 38; RL = 26
    LT = [18, 22]; va = 47
    A("s_barrier")
    A("s_mul_i32 s%d, s%d, 5120" % (S_T[0], S_W))
    A("s_add_u32 s%d, s%d, %d" % (S_T[0], S_T[0], L_W1L))
    A("v_lshlrev_b32 v%d, 4, v%d" % (va, V_LANE))
    A("v_add_u32 v%d, s%d, v%d" % (va, S_T[0], va))
    order = [b for q in range(4) for b in range(18) if (b & 3) == q]
    lg = LG(A); rd = {}; nxt = [0]
    def rd_issue():
        i = nxt[0]
        if i >= 18: return
        nxt[0] += 1
        rd[i] = lg.issue("ds_read_b128 %s, v%d offset:%d" % (vr(LT[i % 2], 4), va, (order[i] >> 2) * 1024))
    rd_issue(); rd_issue()
    def extract_left(q):
        return ["v_add_f32_dpp v%d, v%d, v%d %s" % (27, DL + 2, DL, qp([2, 3, 2, 3])),
                "v_add_f32_dpp v%d, v%d, v%d %s" % (28, DL + 1, DL + 3, qp([0, 1, 0, 1])),
                "v_cndmask_b32_e64 v%d, v%d, v%d, s[%d:%d]" % (27, 27, 28, S_MG1, S_MG1 + 1),
                "v_mov_b32_dpp v%d, v%d quad_perm:[0,1,2,3] row_mask:0x%x bank_mask:0xf" % (RL, 27, 1 << q)]
    for t in cap_build(B0, YK[order[0] >> 2], order[0] & 3): A(t)
    for n, beta in enumerate(order):
        B = B0 + 4 * (n & 1)
        q = beta & 3
        newq = (n == 0 or (order[n - 1] & 3) != q)
        nb = cap_build(B0 + 4 * ((n + 1) & 1), YK[order[n + 1] >> 2], order[n + 1] & 3) if n < 17 else []
        A(mfma_t(D[0], w1_reg(beta, 0), B, n == 0))
        for t in nb[0:2]: A(t)
        A(mfma_t(D[1], w1_reg(beta, 1), B, n == 0))
        for t in nb[2:4]: A(t)
        if newq and n > 0:
            for t in extract_left(order[n - 1] & 3): A(t)
        lg.wait(rd[n])
        A(mfma_t(DL, LT[n % 2], B, newq))
        rd_issue()
    c1, c2 = Cap(), Cap()
    g_reduce(c1, D[0], D[0], D[0] + 3, D[0], S_MG1)
    g_reduce(c2, D[1], D[1], D[1] + 3, D[1], S_MG1)
    ua, ul = 47, 46
    A("v_lshrrev_b32 v%d, 1, v%d" % (ua, V_N8))
    A("s_mul_i32 s%d, s%d, 576" % (S_T[0], S_W))
    A("v_add_u32 v%d, s%d, v%d" % (ua, S_T[0], ua))
    weave(A, c1.l, c2.l)
    A("ds_write_b32 v%d, v%d offset:%d" % (ua, D[0], SCR))
    A("ds_write_b32 v%d, v%d offset:%d" % (ua, D[1], SCR + 256))
    A("v_bfe_u32 v%d, v%d, 1, 1" % (ul, V_LANE))
    A("v_lshlrev_b32 v%d, 5, v%d" % (ul, ul))
    A("v_bfe_u32 v%d, v%d, 2, 2" % (45, V_LANE))
    A("v_lshl_add_u32 v%d, v%d, 3, v%d" % (ul, 45, ul))
    A("v_and_b32 v%d, 1, v%d" % (45, V_LANE))
    A("v_lshl_add_u32 v%d, v%d, 2, v%d" % (ul, 45, ul))
    A("v_add_u32 v%d, s%d, v%d" % (ul, S_T[0], ul))
    for t in extract_left(3): A(t)
    xrow_allreduce(A, RL, 27)
    A("ds_write_b32 v%d, v%d offset:%d" % (ul, RL, SCR + 512))
    A("v_lshrrev_b32 v%d, 1, v%d" % (45, V_ROW8))
    A("s_lshl_b32 s%d, s%d, 7" % (S_T[0], S_W))
    A("v_add_u32 v%d, s%d, v%d" % (ua, S_T[0], 45))
    A("s_lshr_b32 s%d, s%d, 1" % (S_T[0], S_W))
    A("s_lshl_b32 s%d, s%d, 5" % (S_T[0], S_T[0]))
    A("v_add_u32 v%d, s%d, v%d" % (ul, S_T[0], 45))
    A("s_waitcnt lgkmcnt(0)")
    A("s_barrier")
    for w in range(4):
        A("ds_read_b32 v%d, v%d offset:%d" % (30 + w, ua, SCR + w * 576))
    for w in range(4):
        A("ds_read_b32 v%d, v%d offset:%d" % (34 + w, ul, SCR + 512 + w * 576))
    A("s_lshr_b32 s%d, s%d, 1" % (S_T[1], S_W))
    A("s_mul_i32 s%d, s%d, 9216" % (S_T[1], S_T[1]))
    A("s_add_u32 s%d, s%d, %d" % (S_T[1], S_T[1], L_W2X))
    A("v_lshlrev_b32 v42, 4, v%d" % V_LANE)
    A("v_add_u32 v42, s%d, v42" % S_T[1])
    A("ds_read_b128 v[44:47], v42")
    zero_b(A, 18, 30)
    k = math.sqrt(2.0 / math.pi); ca = -2.0 * k * math.log2(math.e); cb_ = ca * 0.044715
    chains = []
    for (r, bias, tt) in ((30, V_B1M, 38), (34, V_B1E, 40)):
        c = Cap()
        c("v_add_f32 v%d, v%d, v%d" % (r, r, r + 1))
        c("v_add_f32 v%d, v%d, v%d" % (r + 2, r + 2, r + 3))
        c("v_add_f32 v%d, v%d, v%d" % (r, r, r + 2))
        bf16r(c, r, r)
        c("v_add_f32 v%d, v%d, v%d" % (r, r, bias))
        bf16r(c, r, r)
        c("v_mul_f32 v%d, v%d, v%d" % (tt, r, r))
        c("v_mov_b32 v%d, 0x%x" % (tt + 1, f2u(ca)))
        c("v_fmac_f32 v%d, 0x%x, v%d" % (tt + 1, f2u(cb_), tt))
        c("v_mul_f32 v%d, v%d, v%d" % (tt + 1, tt + 1, r))
        c("v_exp_f32 v%d, v%d" % (tt + 1, tt + 1))
        c("v_add_f32 v%d, 1.0, v%d" % (tt + 1, tt + 1))
        c("v_rcp_f32 v%d, v%d" % (tt + 1, tt + 1))
        c("v_mul_f32 v%d, v%d, v%d" % (r, r, tt + 1))
        c("v_cvt_pk_bf16_f32 v%d, v%d, v%d" % (r, r, r))
        c("v_and_b32 v%d, v%d, v%d" % (r, r, V_HALF))
        chains.append(c.l)
    chains[1].append("v_cndmask_b32_e64 v34, 0, v34, s[%d:%d]" % (S_MGP, S_MGP + 1))
    A("s_waitcnt lgkmcnt(1)")
    A("s_barrier")
    weave(A, chains[0], chains[1])
    for mu in range(4):
        build_b(A, B0 + 4 * mu, 30, mu)
    build_b(A, BX, 34, 0)
    proj576(A, w2_reg, S_YP2, ext=True)

class WLoader:
    VOFF = 26; TT = (27, 28)
    def __init__(self, A):
        self.A = A; self.list = []; self.pos = 0; self.cur_srd = None
    def add(self, mat, kind, sbase, off, dest):
        self.list.append((mat, kind, sbase, off, dest))
    def voff(self, kind):
        A = self.A; v = self.VOFF; t0, t1 = self.TT
        if kind == "L":
            A("v_bfe_u32 v%d, v0, 2, 2" % t0)
            A("v_lshlrev_b32 v%d, 3, v%d" % (t0, t0))
            A("v_lshrrev_b32 v%d, 4, v0" % t1)
            A("v_lshl_add_u32 v%d, v%d, 1, v%d" % (t0, t1, t0))
            A("v_bfe_u32 v%d, v0, 1, 1" % t1)
            A("v_add_u32 v%d, v%d, v%d" % (t0, t0, t1))
            A("v_mul_u32_u24 v%d, 9216, v%d" % (v, t0))
            A("v_and_b32 v%d, 1, v0" % t1)
            A("v_lshl_add_u32 v%d, v%d, 4, v%d" % (v, t1, v))
        else:
            A("v_lshrrev_b32 v%d, 4, v0" % t0)
            A("v_bfe_u32 v%d, v0, 3, 1" % t1)
            A("v_lshl_add_u32 v%d, v%d, 1, v%d" % (t0, t0, t1))
            A("v_mul_u32_u24 v%d, %d, v%d" % (v, kind, t0))
            A("v_and_b32 v%d, 7, v0" % t1)
            A("v_lshl_add_u32 v%d, v%d, 4, v%d" % (v, t1, v))
    def issue(self, n):
        A = self.A
        sizes = {"wq": (S_P + 2, 4718592), "wo": (S_P + 4, 4718592), "w1": (S_P + 6, 5308416), "w2": (S_P + 10, 5308416)}
        curk = None
        for _ in range(n):
            if self.pos >= len(self.list): return
            mat, kind, sbase, off, dest = self.list[self.pos]; self.pos += 1
            if mat != self.cur_srd:
                srd(A, S_SRD, *sizes[mat]); self.cur_srd = mat
            if kind != curk:
                self.voff(kind); curk = kind
            if dest[0] == "r":
                A("s_add_u32 s%d, s%d, 0x%x" % (S_T[8], sbase, off))
                A("buffer_load_dwordx4 %s, v%d, s[%d:%d], s%d offen nt" % (vr(dest[1], 4), self.VOFF, S_SRD, S_SRD + 3, S_T[8]))
            else:
                A("s_add_u32 m0, s%d, 0x%x" % (dest[1], dest[2]))
                A("s_add_u32 s%d, s%d, 0x%x" % (S_T[8], sbase, off))
                A("buffer_load_dwordx4 v%d, s[%d:%d], s%d offen%s lds" % (self.VOFF, S_SRD, S_SRD + 3, S_T[8], "" if kind == "L" else " nt"))
    def left(self): return len(self.list) - self.pos


def chain_stamp(A, cfg, k):
    if not cfg.get("stamps"): return
    A("s_memrealtime s[%d:%d]" % (S_EX, S_EX + 1))
    A("s_waitcnt lgkmcnt(0)")
    A("s_mov_b32 s%d, s%d" % (S_CST + k, S_EX))

def stamp_store(A, base, shift, nst, first, extra_off=None):
    A("s_lshl_b32 s%d, s2, 2" % S_T[0])
    A("s_add_u32 s%d, s%d, s%d" % (S_T[0], S_T[0], S_W))
    A("s_lshl_b32 s%d, s%d, %d" % (S_T[0], S_T[0], shift))
    if extra_off: extra_off()
    A("s_add_u32 s%d, s%d, 0x%x" % (S_T[0], S_T[0], base))
    A("v_mov_b32 v30, 0")
    for k in range(nst):
        A("v_mov_b32 v31, s%d" % (first + k))
        A("buffer_store_dword v31, v30, s[%d:%d], s%d offen offset:%d" % (S_WS, S_WS + 3, S_T[0], 4 * k))
        A("s_nop 1")

def gen_chain(A, cfg):
    A.comment("chain setup")
    A("s_lshr_b32 s%d, s2, 3" % S_C)
    for i, off in enumerate((0, 24, 32, 48, 56, 64, 72, 80)):
        A("s_load_dwordx2 s[%d:%d], s[0:1], %d" % (S_P + 2 * i, S_P + 2 * i + 1, off))
    def m64(s, v):
        A("s_mov_b32 s%d, 0x%x" % (s, v & 0xffffffff)); A("s_mov_b32 s%d, 0x%x" % (s + 1, (v >> 32) & 0xffffffff))
    t0, t1, t2, t3 = 30, 31, 32, 33
    A("v_bfe_u32 v%d, v0, 2, 2" % t0)
    A("v_lshlrev_b32 v%d, 3, v%d" % (V_ROW8, t0))
    A("v_lshrrev_b32 v%d, 4, v0" % t0)
    A("v_lshl_add_u32 v%d, v%d, 1, v%d" % (V_ROW8, t0, V_ROW8))
    A("v_bfe_u32 v%d, v0, 1, 1" % t0)
    A("v_add_u32 v%d, v%d, v%d" % (V_ROW8, V_ROW8, t0))
    A("v_lshlrev_b32 v%d, 3, v%d" % (V_ROW8, V_ROW8))
    SQ, SO, S1, S2, S2X, LQ, L1L = S_T[9:16]
    L2X = 78; S1L = 96
    A("s_mul_i32 s%d, s%d, %d" % (SQ, S_W, 144 * 8192))
    A("s_lshl_b32 s%d, s%d, 8" % (S_T[0], S_C))
    A("s_add_u32 s%d, s%d, s%d" % (SQ, SQ, S_T[0]))
    A("s_mul_i32 s%d, s%d, 28672" % (LQ, S_W))
    A("s_add_u32 s%d, s%d, %d" % (LQ, LQ, L_WQ))
    A("s_waitcnt lgkmcnt(0)")
    srd(A, S_OUT, S_P, 2304)
    FL = {1: 30, 0: 35}; YL = {1: 10, 0: 15}
    A("v_lshlrev_b32 v20, 2, v0")
    A("v_lshrrev_b32 v21, 2, v%d" % V_ROW8)
    A("s_mul_i32 s%d, s%d, 288" % (S_T[1], S_W))
    for b in (1, 0):
        for k in range(5):
            A("buffer_load_dword v%d, v20, s[%d:%d], 0 offen offset:%d" % (FL[b] + k, S_OUT, S_OUT + 3, b * 1152 + 256 * k))
        for k in range(5):
            A("buffer_load_ushort v%d, v21, s[%d:%d], s%d offen offset:%d" % (YL[b] + k, S_OUT, S_OUT + 3, S_T[1], b * 1152 + 64 * k))
    WL = WLoader(A)
    for beta in range(18):
        for cb in range(2):
            WL.add("wq", 8192, SQ, beta * 65536 + cb * 128, ("l", LQ, (2 * beta + cb) * 1024) if beta < 14 else ("r", wq_reg(beta, cb)))
    for mu in range(4):
        for cb in range(9):
            WL.add("wo", 1152, SO, mu * 8 * 1152 + cb * 128, ("r", wo_reg(mu, cb)))
    for beta in range(18):
        for cb in range(2):
            WL.add("w1", 9216, S1, beta * 8 * 9216 + cb * 128, ("r", w1_reg(beta, cb)))
    for i in range(5):
        WL.add("w1", "L", S1L, i * 32 * 9216, ("l", L1L, i * 1024))
    for mu in range(4):
        for cb in range(9):
            WL.add("w2", 1152, S2, mu * 8 * 1152 + cb * 128, ("r", w2_reg(mu, cb)))
    for j in range(4):
        WL.add("w2", 1152, S2X, j * 128, ("l", L2X, j * 1024))
    ist = lambda k: chain_stamp(A, cfg, 8 + k)
    ist(0)
    WL.issue(36)
    npf = 0
    if cfg.get("pf_chain"):
        npf = cfg["code_prefetch"](A, "L_chain", "L_end", cfg["pf_chain"], 508, 20)
    m64(S_MG1, 0xcccccccccccccccc); m64(S_MODD, 0xaaaaaaaaaaaaaaaa); m64(S_ML36, (1 << 36) - 1)
    m64(S_MMU2, 0x00ff00ff00ff00ff); m64(S_M7, 0x8080808080808080); m64(S_ML32, 0xffffffff)
    A("s_and_b32 s%d, s%d, 1" % (S_T[0], S_W))
    A("s_cmp_eq_u32 s%d, 1" % S_T[0])
    A("s_mov_b32 s%d, 0x33333333" % S_MGP)
    A("s_cselect_b32 s%d, 0xcccccccc, s%d" % (S_MGP, S_MGP))
    A("s_mov_b32 s%d, s%d" % (S_MGP + 1, S_MGP))
    A("s_mov_b32 s%d, 0" % S_FAST)
    A("s_mul_i32 s%d, s%d, %d" % (SO, S_C, 128 * 1152))
    A("s_mul_i32 s%d, s%d, %d" % (S_T[0], S_W, 32 * 1152))
    A("s_add_u32 s%d, s%d, s%d" % (SO, SO, S_T[0]))
    A("s_mul_i32 s%d, s%d, %d" % (S1, S_W, 144 * 9216))
    A("s_lshl_b32 s%d, s%d, 5" % (S_T[1], S_C))
    A("s_add_u32 s%d, s%d, s%d" % (S1L, S1, S_T[1]))
    A("s_add_u32 s%d, s%d, 8192" % (S1L, S1L))
    A("s_lshl_b32 s%d, s%d, 8" % (S_T[1], S_C))
    A("s_add_u32 s%d, s%d, s%d" % (S1, S1, S_T[1]))
    A("s_mul_i32 s%d, s%d, %d" % (S2, S_C, 128 * 1152))
    A("s_lshr_b32 s%d, s%d, 1" % (S_T[1], S_W))
    A("s_mul_i32 s%d, s%d, %d" % (S2X, S_T[1], 8 * 1152))
    A("s_mul_i32 s%d, s%d, %d" % (S_T[2], S_C, 16 * 1152))
    A("s_add_u32 s%d, s%d, s%d" % (S2X, S2X, S_T[2]))
    A("s_add_u32 s%d, s%d, %d" % (S2X, S2X, 4096 * 1152))
    A("s_add_u32 s%d, s%d, s%d" % (S2, S2, S_T[0]))
    A("s_mul_i32 s%d, s%d, 5120" % (L1L, S_W))
    A("s_add_u32 s%d, s%d, %d" % (L1L, L1L, L_W1L))
    A("s_mul_i32 s%d, s%d, 9216" % (L2X, S_T[1]))
    A("s_add_u32 s%d, s%d, %d" % (L2X, L2X, L_W2X))
    A("s_and_b32 s%d, s%d, 1" % (S_T[1], S_W))
    A("s_mul_i32 s%d, s%d, %d" % (S_T[2], S_T[1], 5 * 1024))
    A("s_add_u32 s%d, s%d, s%d" % (L2X, L2X, S_T[2]))
    A("s_mul_i32 s%d, s%d, %d" % (S_T[2], S_T[1], 5 * 128))
    A("s_add_u32 s%d, s%d, s%d" % (S2X, S2X, S_T[2]))
    A("v_and_b32 v22, 1, v0")
    A("v_lshlrev_b32 v22, 4, v22")
    A("v_mov_b32 v23, 0xffff")
    A("v_lshlrev_b32 v%d, v22, v23" % V_HALF)
    A("v_bfe_u32 v22, v0, 4, 1")
    A("v_lshlrev_b32 v%d, 5, v22" % V_N8)
    A("v_bfe_u32 v22, v0, 1, 1")
    A("v_lshl_add_u32 v%d, v22, 4, v%d" % (V_N8, V_N8))
    A("v_lshrrev_b32 v22, 5, v0")
    A("v_lshl_add_u32 v%d, v22, 3, v%d" % (V_N8, V_N8))
    A("v_bfe_u32 v22, v0, 2, 2")
    A("v_lshl_add_u32 v%d, v22, 1, v%d" % (V_N8, V_N8))
    A("v_and_b32 v22, 1, v0")
    A("v_add_u32 v%d, v%d, v22" % (V_N8, V_N8))
    A("v_lshlrev_b32 v%d, 3, v%d" % (V_N8, V_N8))
    A("s_mov_b32 s%d, s%d" % (S_EPOCH, S_TAG))
    A("s_mul_i32 s%d, s%d, 0x%x" % (S_TAG, S_TAG, HASH_MUL))
    A("s_add_u32 s%d, s%d, 0x%x" % (S_TAG, S_TAG, HASH_ADD))
    A("s_getreg_b32 s%d, hwreg(HW_REG_XCC_ID)" % S_T[0])
    A("s_and_b32 s%d, s%d, 15" % (S_T[0], S_T[0]))
    A("s_mov_b32 s%d, s%d" % (S_XCC, S_T[0]))
    A("v_mov_b32 v22, s%d" % S_T[0])
    A("v_mov_b32 v23, s%d" % S_TAG)
    A("s_lshl_b32 s%d, s%d, 3" % (S_T[0], S_C))
    A("s_add_u32 s%d, s%d, 0x%x" % (S_T[0], S_T[0], OFF_XC))
    A("v_mov_b32 v24, 0")
    A("buffer_store_dwordx2 v[22:23], v24, s[%d:%d], s%d offen sc1" % (S_WS, S_WS + 3, S_T[0]))
    A("s_waitcnt vmcnt(%d)" % (36 + npf + 1))
    ist(1)
    YKB = {1: YK, 0: [5, 6, 7, 8, 9]}
    for b in (1, 0):
        f = FL[b]; sx, sq, t = 40, 41, 47
        A("v_cndmask_b32_e64 v%d, 0, v%d, s[%d:%d]" % (f + 4, f + 4, S_ML32, S_ML32 + 1))
        for k in range(5):
            A("v_lshlrev_b32 v%d, 16, v%d" % (t, f + k))
            A("v_and_b32 v%d, 0xffff0000, v%d" % (f + k, f + k))
            if k == 0:
                A("v_add_f32 v%d, v%d, v%d" % (sx, t, f + k))
                A("v_mul_f32 v%d, v%d, v%d" % (sq, t, t))
            else:
                A("v_add_f32 v%d, v%d, v%d" % (sx, sx, t))
                A("v_fmac_f32 v%d, v%d, v%d" % (sq, t, t))
                A("v_add_f32 v%d, v%d, v%d" % (sx, sx, f + k))
            A("v_fmac_f32 v%d, v%d, v%d" % (sq, f + k, f + k))
        A("v_add_f32_dpp v%d, v%d, v%d %s" % (sx, sx, sx, qp([1, 0, 3, 2])))
        A("v_add_f32_dpp v%d, v%d, v%d %s" % (sq, sq, sq, qp([1, 0, 3, 2])))
        A("v_cndmask_b32_e64 v%d, v%d, v%d, s[%d:%d]" % (sx, sx, sq, S_MODD, S_MODD + 1))
        parity_allreduce(A, sx, t)
        for k in range(5):
            A("v_lshlrev_b32 v%d, 16, v%d" % (YL[b] + k, YL[b] + k))
        ln_tail(A, sx, [YL[b] + k for k in range(5)], YKB[b], 41, 47)
    WL.issue(20)
    zero_b(A, B0, B0 + 8)
    A("s_waitcnt vmcnt(%d)" % (20 + npf + 1))
    ist(2)
    for b in (1, 0):
        A("s_lshl_b32 s%d, s%d, 9" % (S_QO, S_C))
        A("s_add_u32 s%d, s%d, 0x%x" % (S_QO, S_QO, OFF_Q + b * 16384))
        qproj(A, S_QO, YKB[b], pre_barrier=(b == 0))
        ist(3 if b == 1 else 4)
        if b == 1:
            A("s_waitcnt vmcnt(20)")
            WL.issue(30)
    srd(A, S_OUT, S_P, 2304)
    A("v_lshrrev_b32 v%d, 1, v0" % t0)
    A("s_mul_i32 s%d, s%d, 18" % (S_T[1], S_C))
    A("v_add_u32 v%d, s%d, v%d" % (t0, S_T[1], t0))
    A("v_lshlrev_b32 v%d, 1, v%d" % (t0, t0))
    A("buffer_load_ushort v%d, v%d, s[%d:%d], 0 offen offset:1152" % (V_X, t0, S_OUT, S_OUT + 3))
    A("buffer_load_ushort v%d, v%d, s[%d:%d], 0 offen" % (V_XO, t0, S_OUT, S_OUT + 3))
    srd(A, S_SRD, S_P + 12, 1152)
    A("buffer_load_ushort v%d, v%d, s[%d:%d], 0 offen" % (V_B2, t0, S_SRD, S_SRD + 3))
    A("v_lshrrev_b32 v%d, 2, v%d" % (t1, V_ROW8))
    A("s_lshl_b32 s%d, s%d, 8" % (S_T[1], S_C))
    A("s_lshl_b32 s%d, s%d, 6" % (S_T[2], S_W))
    A("s_add_u32 s%d, s%d, s%d" % (S_T[1], S_T[1], S_T[2]))
    A("s_lshl_b32 s%d, s%d, 5" % (S_T[2], S_C))
    A("s_lshr_b32 s%d, s%d, 1" % (S_T[3], S_W))
    A("s_lshl_b32 s%d, s%d, 4" % (S_T[3], S_T[3]))
    A("s_add_u32 s%d, s%d, s%d" % (S_T[2], S_T[2], S_T[3]))
    A("s_add_u32 s%d, s%d, 8192" % (S_T[2], S_T[2]))
    srd(A, S_SRD, S_P + 8, 9216)
    A("buffer_load_ushort v%d, v%d, s[%d:%d], s%d offen" % (V_B1M, t1, S_SRD, S_SRD + 3, S_T[1]))
    A("buffer_load_ushort v%d, v%d, s[%d:%d], s%d offen" % (V_B1E, t1, S_SRD, S_SRD + 3, S_T[2]))
    A("v_lshlrev_b32 v%d, 2, v%d" % (V_PX, t0))
    A("v_mov_b32 v%d, 0x%x" % (t2, OOB))
    A("v_cndmask_b32_e64 v%d, v%d, v%d, s[%d:%d]" % (V_PX, V_PX, t2, S_MODD, S_MODD + 1))
    A("v_cndmask_b32_e64 v%d, v%d, v%d, s[%d:%d]" % (V_PX, t2, V_PX, S_ML36, S_ML36 + 1))
    A("v_and_b32 v%d, 1, v0" % t3)
    A("s_lshl_b32 s%d, s%d, 1" % (S_T[1], S_C))
    A("v_add_u32 v%d, s%d, v%d" % (t3, S_T[1], t3))
    A("v_lshlrev_b32 v%d, 3, v%d" % (t3, t3))
    A("v_add_u32 v%d, 4608, v%d" % (t3, t3))
    A("v_and_b32 v%d, 62, v0" % t2)
    A("v_cmp_eq_u32 vcc, 40, v%d" % t2)
    A("v_cndmask_b32 v%d, v%d, v%d, vcc" % (V_PX, V_PX, t3))
    def xc_issue():
        A("v_and_b32 v34, 31, v0")
        A("v_lshlrev_b32 v34, 3, v34")
        A("s_mov_b32 s%d, 0x%x" % (S_T[0], OFF_XC))
        A("buffer_load_dwordx2 v[36:37], v34, s[%d:%d], s%d offen sc1" % (S_WS, S_WS + 3, S_T[0]))
    xc_issue()
    if cfg.get("pretouch", 1):
        A("s_lshl_b32 s%d, s%d, 2" % (S_T[0], S_C))
        A("s_add_u32 s%d, s%d, s%d" % (S_T[0], S_T[0], S_W))
        A("s_mul_i32 s%d, s%d, 2560" % (S_T[1], S_T[0]))
        A("s_add_u32 s%d, s%d, 0x%x" % (S_T[1], S_T[1], OFF_YP))
        A("v_lshlrev_b32 v35, 4, v0")
        for i in range(3):
            A("buffer_load_dwordx4 v[38:41], v35, s[%d:%d], s%d offen offset:%d" % (S_WS, S_WS + 3, S_T[1], min(1024 * i, 1536)))
        A("s_and_b32 s%d, s%d, 15" % (S_T[0], S_T[0]))
        A("s_lshl_b32 s%d, s%d, 10" % (S_T[0], S_T[0]))
        A("s_add_u32 s%d, s%d, 0x%x" % (S_T[0], S_T[0], OFF_X))
        A("buffer_load_dwordx4 v[38:41], v35, s[%d:%d], s%d offen" % (S_WS, S_WS + 3, S_T[0]))
    WL.cur_srd = None
    ist(5)
    inflight = cfg.get("w_inflight", 30)
    while WL.left() > 0:
        A("s_waitcnt vmcnt(%d)" % inflight)
        WL.issue(min(60 - inflight, WL.left()))
    assert WL.cur_srd == "w2"
    sk = newlab("w2x")
    A("s_waitcnt vmcnt(40)")
    WL.voff(1152)
    A("s_and_b32 s%d, s%d, 1" % (S_T[0], S_W))
    A("s_cmp_eq_u32 s%d, 1" % S_T[0])
    A("s_cbranch_scc1 %s" % sk)
    A("s_add_u32 m0, s%d, 0x%x" % (L2X, 4 * 1024))
    A("s_add_u32 s%d, s%d, 0x%x" % (S_T[8], S2X, 4 * 128))
    A("buffer_load_dwordx4 v%d, s[%d:%d], s%d offen nt lds" % (WL.VOFF, S_SRD, S_SRD + 3, S_T[8]))
    A.label(sk)
    ist(6)
    A("s_waitcnt vmcnt(0)")
    for r in (V_X, V_XO, V_B1M, V_B2, V_B1E):
        A("v_lshlrev_b32 v%d, 16, v%d" % (r, r))
    srd(A, S_OUT, S_P + 14, 2304)
    okx = newlab("xok"); rtx = newlab("xrt")
    A("v_cmp_ne_u32 vcc, s%d, v37" % S_TAG)
    A.branch("s_cbranch_vccz %s" % okx)
    A("s_mov_b32 s%d, 0x2000" % S_SPIN)
    A.label(rtx)
    A("s_sleep 2")
    xc_issue()
    A("s_waitcnt vmcnt(0)")
    A("v_cmp_ne_u32 vcc, s%d, v37" % S_TAG)
    A("s_sub_u32 s%d, s%d, 1" % (S_SPIN, S_SPIN))
    A.branch("s_cbranch_scc1 %s" % okx)
    A.branch("s_cbranch_vccnz %s" % rtx)
    A.label(okx)
    A("v_cmp_ne_u32 vcc, s%d, v36" % S_XCC)
    A("s_cmp_eq_u64 vcc, 0")
    A("s_cselect_b32 s%d, %d, 0" % (S_FAST, 0 if cfg.get("force_slow") else 1))
    ist(7)
    if cfg.get("stamps"):
        A("s_lshl_b32 s%d, s%d, 8" % (S_CST + 8, S_XCC))
        A("s_or_b32 s%d, s%d, s%d" % (S_CST + 8, S_CST + 8, S_FAST))
        stamp_store(A, 0x780000, 5, 8, S_CST + 8)
    if cfg.get("dbgtime"):
        A("s_memrealtime s[%d:%d]" % (S_EX, S_EX + 1))
        A("s_waitcnt lgkmcnt(0)")
        A("s_mov_b32 s%d, s%d" % (S_DBG, S_EX))
    A("s_mov_b32 s%d, 0x%x" % (S_YP1, OFF_YP))
    A("s_mov_b32 s%d, 0x%x" % (S_YP2, OFF_YP + YP_STRIDE))
    A("s_mov_b32 s%d, 0x%x" % (S_X1, OFF_X))
    A("s_mov_b32 s%d, 0x%x" % (S_X2, OFF_X + X_STRIDE))
    A("s_mov_b32 s%d, 2" % S_STEP)
    A.label("L_ch_loop")
    A("s_lshr_b32 s%d, 0xd, s%d" % (S_B, S_STEP))
    A("s_and_b32 s%d, s%d, 1" % (S_B, S_B))
    A("s_lshr_b32 s%d, 0x28, s%d" % (S_L, S_STEP))
    A("s_and_b32 s%d, s%d, 1" % (S_L, S_L))
    A("s_lshl_b32 s%d, s%d, 1" % (S_T[0], S_L))
    A("s_add_u32 s%d, s%d, s%d" % (S_T[0], S_T[0], S_B))
    A("s_lshl_b32 s%d, s%d, 5" % (S_PART, S_T[0]))
    A("s_add_u32 s%d, s%d, s%d" % (S_PART, S_PART, S_C))
    A("s_lshl_b32 s%d, s%d, 14" % (S_PART, S_PART))
    A("s_add_u32 s%d, s%d, 0x%x" % (S_PART, S_PART, OFF_PART))
    A("s_add_u32 s%d, s%d, s%d" % (S_TL, S_TAG, S_STEP))
    A("s_lshl_b32 s%d, s%d, 14" % (S_QO, S_B))
    A("s_lshl_b32 s%d, s%d, 9" % (S_T[1], S_C))
    A("s_add_u32 s%d, s%d, s%d" % (S_QO, S_QO, S_T[1]))
    A("s_add_u32 s%d, s%d, 0x%x" % (S_QO, S_QO, OFF_Q + 2 * 16384))
    FINE["cfg"] = cfg
    st = (lambda k: None) if cfg.get("fine") else (lambda k: chain_stamp(A, cfg, k))
    st(0); fst(A, 0)
    oproj(A)
    st(1); fst(A, 1)
    red(A, S_YP1, False, lambda A: pubx(A, S_X1))
    st(2)
    gath_ln(A, S_X1)
    st(3); fst(A, 6)
    mlp(A)
    st(4); fst(A, 7)
    def tail2(A):
        o = newlab("t2out"); d = newlab("t2done")
        A("s_cmp_eq_u32 s%d, 1" % S_L)
        A.branch("s_cbranch_scc1 %s" % o)
        pubx(A, S_X2)
        A.branch("s_branch %s" % d)
        A.label(o)
        if cfg.get("perturb"):
            A("s_cmp_eq_u32 s%d, 0" % S_C)
            A("s_cselect_b32 s%d, 0x%x, 0" % (S_T[0], f2u(float(cfg["perturb"]) / 1000.0)))
            A("v_add_f32 v30, s%d, v%d" % (S_T[0], V_X))
            A("v_lshrrev_b32 v30, 16, v30")
        else:
            A("v_lshrrev_b32 v30, 16, v%d" % V_X)
        A("v_lshrrev_b32 v31, 2, v%d" % V_PX)
        A("s_mul_i32 s%d, s%d, 1152" % (S_T[0], S_B))
        A("s_mov_b32 s%d, 0x55555555" % S_EX)
        A("s_mov_b32 s%d, 0x5" % (S_EX + 1))
        A("s_mov_b64 exec, s[%d:%d]" % (S_EX, S_EX + 1))
        A("buffer_store_short v30, v31, s[%d:%d], s%d offen" % (S_OUT, S_OUT + 3, S_T[0]))
        A("s_mov_b64 exec, -1")
        A.label(d)
    red(A, S_YP2, True, tail2)
    st(5)
    A("s_cmp_eq_u32 s%d, 1" % S_L)
    A.branch("s_cbranch_scc1 L_ch_next")
    gath_ln(A, S_X2)
    st(6)
    qproj(A, S_QO)
    st(7)
    A.label("L_ch_next")
    A("s_cmp_eq_u32 s%d, 3" % S_STEP)
    A("s_cbranch_scc0 L_ch_noswap")
    A("v_swap_b32 v%d, v%d" % (V_X, V_XO))
    A.label("L_ch_noswap")
    if cfg.get("stamps"):
        def eo():
            A("s_sub_u32 s%d, s%d, 2" % (S_T[1], S_STEP))
            A("s_lshl_b32 s%d, s%d, 5" % (S_T[1], S_T[1]))
            A("s_add_u32 s%d, s%d, s%d" % (S_T[0], S_T[0], S_T[1]))
        stamp_store(A, 0x700000, 7, 8, S_CST, eo)
    if cfg.get("dbgtime"):
        A("s_memrealtime s[%d:%d]" % (S_EX, S_EX + 1))
        A("s_waitcnt lgkmcnt(0)")
        for k in range(2, 6):
            A("s_cmp_eq_u32 s%d, %d" % (S_STEP, k))
            A("s_cselect_b32 s%d, s%d, s%d" % (S_DBG + k - 1, S_EX, S_DBG + k - 1))
    A("s_add_u32 s%d, s%d, 1" % (S_STEP, S_STEP))
    A("s_cmp_lt_u32 s%d, 6" % S_STEP)
    A.branch("s_cbranch_scc1 L_ch_loop")
    A("s_or_b32 s%d, s%d, s%d" % (S_T[0], S_C, S_W))
    A("s_cmp_lg_u32 s%d, 0" % S_T[0])
    A.branch("s_cbranch_scc1 L_end")
    if cfg.get("dbgtime"):
        A("s_memrealtime s[%d:%d]" % (S_EX, S_EX + 1))
        A("s_load_dwordx2 s[%d:%d], s[0:1], 88" % (S_T[2], S_T[3]))
        A("s_waitcnt lgkmcnt(0)")
        srd(A, S_SRD, S_T[2], 256)
        A("s_sub_u32 s%d, s%d, s98" % (S_T[4], S_EX))
        A("v_mov_b32 v30, s%d" % S_T[4])
        A("v_mov_b32 v31, 0")
        A("buffer_store_dword v30, v31, s[%d:%d], 0 offen" % (S_SRD, S_SRD + 3))
        for k in range(6):
            A("s_sub_u32 s%d, s%d, s98" % (S_T[4], S_DBG + k))
            A("v_mov_b32 v30, s%d" % S_T[4])
            A("buffer_store_dword v30, v31, s[%d:%d], 0 offen offset:%d" % (S_SRD, S_SRD + 3, 4 * (k + 1)))
            A("s_nop 1")
    A("s_add_u32 s%d, s%d, 1" % (S_T[0], S_EPOCH))
    A("v_mov_b32 v30, s%d" % S_T[0])
    A("v_mov_b32 v31, 0")
    A("s_mov_b64 exec, 1")
    A("buffer_store_dword v30, v31, s[%d:%d], 0 offen" % (S_WS, S_WS + 3))
    A("s_waitcnt vmcnt(0)")
```

```python
import sys
sys.path.insert(0, "gen")
from emit import *
from layout import *
import attn, chain2 as chain

HEADER = """; Kernarg layout (104 bytes): A_x, A_k_cache, A_v_cache, A_wq, A_wo, B_x, B_w1, B_b1, B_w2, B_b2, d_out, d_debug, d_ws
; Generated by gen/main.py (own generator). Persistent kernel: 32 chain workgroups + 224 attention workgroups.
; @launch grid=(256,1,1) block=(256,1,1) lds=163840
.amdgcn_target "amdgcn-amd-amdhsa--gfx950"
.text
.globl %(kn)s_kernel
.p2align 8
.type %(kn)s_kernel,@function
%(kn)s_kernel:
""" % {"kn": KN}
FOOTER = """L_end:
  s_endpgm
.section .rodata,"a"
.p2align 6
.amdhsa_kernel %(kn)s_kernel
  .amdhsa_next_free_vgpr 512
  .amdhsa_next_free_sgpr 102
  .amdhsa_accum_offset 256
  .amdhsa_group_segment_fixed_size 0
  .amdhsa_kernarg_size 104
  .amdhsa_user_sgpr_count 2
  .amdhsa_user_sgpr_kernarg_segment_ptr 1
  .amdhsa_system_sgpr_workgroup_id_x 1
.end_amdhsa_kernel
""" % {"kn": KN}

def prologue(A, cfg={}):
    if cfg.get("stamps") or cfg.get("dbgtime"):
        A("s_memrealtime s[90:91]")
    A("s_cmp_ge_u32 s2, 256")
    A("s_cbranch_scc1 L_end")
    A("s_load_dwordx4 s[8:11], s[0:1], 8")
    A("s_load_dwordx2 s[4:5], s[0:1], 96")
    A("v_lshrrev_b32 v1, 6, v0")
    A("v_and_b32 v0, 63, v0")
    A("v_readfirstlane_b32 s17, v1")
    A("s_waitcnt lgkmcnt(0)")
    if cfg.get("stamps"):
        A("s_mov_b32 s%d, s90" % (64 + cfg["stamps"] - 1))
    if cfg.get("dbgtime"):
        A("s_mov_b32 s98, s90")
        for k in range(6): A("s_mov_b32 s%d, s90" % (80 + k))
    A("s_and_b32 s5, s5, 0xffff")
    A("s_load_dword s16, s[4:5], 0")
    A("s_mov_b32 s12, s10")
    A("s_and_b32 s13, s11, 0xffff")
    A("s_mov_b32 s14, 0x08000000")
    A("s_mov_b32 s15, 0x00020000")
    A("s_and_b32 s9, s9, 0xffff")
    A("s_mov_b32 s10, 0x08000000")
    A("s_mov_b32 s11, 0x00020000")
    A("s_mov_b32 s6, 0x%x" % WS_SIZE)
    A("s_mov_b32 s7, 0x00020000")
    A("s_and_b32 s3, s2, 7")
    A("s_cmp_eq_u32 s3, 0")
    A.branch("s_cbranch_scc1 L_chain")
    A.lines.append("L_attn:")

def code_prefetch(A, start, end, nbytes, dst, vtmp, wreg=17):
    A("s_getpc_b64 s[92:93]")
    lab = "L_pc_%s" % start
    A.lines.append(lab + ":")
    A("v_lshlrev_b32 v%d, 4, v0" % vtmp)
    A("s_lshl_b32 s94, s%d, 10" % wreg)
    A("v_add_u32 v%d, s94, v%d" % (vtmp, vtmp))
    n = (nbytes + 4095) // 4096
    for i in range(n):
        A("v_min_u32 v%d, %s-%s-16, v%d" % (vtmp + 1, end, lab, vtmp))
        A("global_load_dwordx4 %s, v%d, s[92:93]" % (vr(dst, 4), vtmp + 1))
        A("v_add_u32 v%d, 0x1000, v%d" % (vtmp, vtmp))
    return n

def build(cfg):
    A = Asm()
    prologue(A, cfg)
    cfg["code_prefetch"] = code_prefetch
    if cfg.get("noattn"):
        A.branch("s_branch L_end")
    S = attn.gen_attn(A, cfg)
    A.label("L_chain")
    cfg["code_prefetch"] = code_prefetch
    if cfg.get("chain"):
        cfg["chain"](A, cfg)
    A.branch("s_branch L_end")
    return HEADER + A.text() + FOOTER, A, S

if __name__ == "__main__":
    cfg = dict(nlds=attn.NLDS, nreg=112, cap0=6, cap1=8, dstep=2, w_win=24, npre=120, sched=attn.sched_pipe, la=3, stamps=12, ring=8, bgk=4, bgv=4, cap4=12, cap7=16, gwait=1, gw_early=24, mimic=1, pref=0, chain=chain.gen_chain, pf_attn=28672, pf_chain=20480, l2k0=13, l2b1=1, gil=1, rotsub=1)
    for a in sys.argv[2:]:
        k, v = a.split("=")
        cfg[k] = int(v) if v.lstrip("-").isdigit() else v
    txt, A, S = build(cfg)
    out = sys.argv[1] if len(sys.argv) > 1 else "k.s"
    open(out, "w").write(txt)
    print("instructions", A.nins, "nops", A.nnops, "loads", S.nloads, "bytes", len(txt))
```

```python
from collections import deque
from emit import *
from layout import *

V_KOFF, V_VOFF, V_VOFF9, V_HALF, V_LDSRD, V_PUB, V_T7 = 1, 2, 3, 4, 5, 6, 7
R1 = 8
QB = R1
BV = [R1, R1 + 4]
DV = [R1 + 8, R1 + 12]
R2 = 24
DK = [R2, R2 + 4]
YR = [R2, R2 + 1]
PQ = 28
TA, TB, TC, TD = 32, 33, 34, 35
SP = {1: 36, 0: 41}
LT = [46, 50, 54, 58]
V_X0, V_X1 = 62, 63
SLOT0 = 64
S_WS = 4; S_K = 8; S_V = 12
S_TAG, S_W, S_H, S_SUB = 16, 17, 18, 19
S_BASE = {0: 20, 1: 21}
S_O18 = {0: 22, 1: 23}
S_OT = [24, 25, 26, 27]
S_C = 28
S_SPIN = 29
S_MASK = [30, 32, 34, 36]
S_M18 = 38
S_MG1 = 40
S_M = {0: 42, 1: 43}
S_L = {0: 44, 1: 45}
S_Q = 46; S_P = 47
S_T0, S_T1 = 48, 49
S_EX = 50
S_T2 = 52
S_SC = 53
LDS_SCR = 0
LDS_STAT = 2048
LDS_SLOTS = 8192
NLDS = 38
NT = 19

class Sched:
    def __init__(self, A, cfg):
        self.A = A; self.cfg = cfg
        self.items = []
        self.fifo_n = 0
        self.done = 0
        self.lg_n = 0; self.lg_done = 0
        self.slot_of = {}; self.load_idx = {}
        self.soff_cache = {}
        self.soff_rr = 0
        self.nloads = 0
        self.load_count = {}
    def vm_issue(self, text):
        self.A(text); idx = self.fifo_n; self.fifo_n += 1; return idx
    def vm_wait(self, idx):
        if idx < self.done: return
        n = self.fifo_n - 1 - idx
        assert n <= 63, n
        self.A("s_waitcnt vmcnt(%d)" % n)
        self.done = idx + 1
    def vm_all_done(self):
        self.done = self.fifo_n
    def lg_issue(self, text):
        self.A(text); idx = self.lg_n; self.lg_n += 1; return idx
    def lg_wait(self, idx):
        if idx < self.lg_done: return
        n = self.lg_n - 1 - idx
        assert n <= 15, n
        self.A("s_waitcnt lgkmcnt(%d)" % n)
        self.lg_done = idx + 1
    def lg_all(self):
        if self.lg_done < self.lg_n:
            self.A("s_waitcnt lgkmcnt(0)")
        self.lg_done = self.lg_n
    def soff(self, b, tile, extra=0):
        key = (b, tile, extra)
        if key in self.soff_cache: return self.soff_cache[key]
        if tile == 18 and extra == 0: return S_O18[b]
        if tile == 0 and extra == 0: return S_BASE[b]
        r = S_OT[self.soff_rr % len(S_OT)]; self.soff_rr += 1
        for k in [k for k, v in self.soff_cache.items() if v == r]: del self.soff_cache[k]
        if tile == 18:
            self.A("s_add_u32 s%d, s%d, 0x%x" % (r, S_O18[b], extra))
        else:
            self.A("s_add_u32 s%d, s%d, 0x%x" % (r, S_BASE[b], tile * 16384 + extra))
        self.soff_cache[key] = r
        return r
    def emit_load(self, p, slot, pol):
        if p[1] == "K":
            b, _, j, m = p; tile = j; imm = m * 1024; voff = V_KOFF; srd = S_K
        else:
            b, _, pi, mu, cb = p; tile = 2 * pi; imm = mu * 1024 + cb * 128; srd = S_V
            voff = V_VOFF9 if pi == 9 else V_VOFF
        polx = (" " + pol) if pol else ""
        if slot[0] == "r":
            so = self.soff(b, tile)
            t = "buffer_load_dwordx4 %s, v%d, s[%d:%d], s%d offen%s%s" % (vr(slot[1], 4), voff, srd, srd + 3, so, (" offset:%d" % imm) if imm else "", polx)
        else:
            self.A("s_add_u32 m0, s%d, 0x%x" % (S_T2, slot[1] * 1024))
            so = self.soff(b, tile, imm)
            t = "buffer_load_dwordx4 v%d, s[%d:%d], s%d offen%s lds" % (voff, srd, srd + 3, so, polx)
        self.nloads += 1
        return self.vm_issue(t)

    def run(self):
        A = self.A; cfg = self.cfg; items = self.items
        uses = [i for i, it in enumerate(items) if it[0] == "use"]
        kept = set(); loadq = deque()
        for i in uses:
            _, p, keep, fn = items[i][:4]
            if p not in kept: loadq.append((i, p))
            if keep: kept.add(p)
            else: kept.discard(p)
        free = deque([("l", s) for s in range(cfg["nlds"])] + [("r", SLOT0 + 4 * s) for s in range(cfg["nreg"])])
        if cfg.get("reg_first"):
            free = deque([("r", SLOT0 + 4 * s) for s in range(cfg["nreg"])] + [("l", s) for s in range(cfg["nlds"])])
        temps = deque(LT)
        ldsread = {}
        state = {"cap": cfg["cap0"], "pol": cfg.get("pol", "nt")}
        def issue_loads():
            while loadq and free and (self.fifo_n - self.done) < state["cap"]:
                i, p = loadq.popleft()
                slot = free.popleft()
                self.slot_of[p] = slot
                pol = state["pol"]
                nth = self.load_count.get(p, 0); self.load_count[p] = nth + 1
                if cfg.get("polK0") is not None and p[0] == 0 and p[1] == "K" and nth == 0: pol = cfg["polK0"]
                if cfg.get("polK0r") is not None and p[0] == 0 and p[1] == "K" and nth == 1: pol = cfg["polK0r"]
                if cfg.get("l2k0") is not None and p[0] == 0 and p[1] == "K" and nth == 0 and p[2] >= cfg["l2k0"]: pol = ""
                if cfg.get("l2b1") and p[0] == 1 and nth == 0 and p not in self.keep1: pol = ""
                if cfg.get("polall") is not None: pol = cfg["polall"]
                if pol == "def": pol = ""
                self.load_idx[p] = self.emit_load(p, slot, pol)
                self.loaded_for[i] = True
        self.loaded_for = {}
        resident_use = {}
        LA = cfg.get("la", 3)
        def prefetch_lds(pos):
            cnt = 0
            for q in range(pos, min(pos + 8, len(uses))):
                ui = uses[q]
                if ui in ldsread:
                    cnt += 1; continue
                p = items[ui][1]
                if not (ui in self.loaded_for or self.kept_ok(ui)): break
                if self.slot_of[p][0] != "l": continue
                if cnt >= LA or not temps: break
                if any(items[x][0] == "code" and len(items[x]) > 2 and items[x][2] == "fence" for x in range(uses[pos], ui)): break
                self.vm_wait(self.load_idx[p])
                t = temps.popleft()
                li = self.lg_issue("ds_read_b128 %s, v%d offset:%d" % (vr(t, 4), V_LDSRD, self.slot_of[p][1] * 1024))
                ldsread[ui] = (t, li); cnt += 1
        lastkeep = {}
        self.keptset = set()
        self.kept_ok = lambda ui: items[ui][1] in self.keptset
        pos = 0
        for f in cfg.get("pre", []): f(self)
        issue_loads()
        for i, it in enumerate(items):
            if it[0] == "use":
                _, p, keep, fn = it[:4]
                assert (i in self.loaded_for) or (p in self.keptset), ("piece not loaded before use (deadlock)", i, p)
                prefetch_lds(pos)
                slot = self.slot_of[p]
                if slot[0] == "r":
                    self.vm_wait(self.load_idx[p])
                    fn(slot[1])
                else:
                    t, li = ldsread.pop(i)
                    self.lg_wait(li)
                    fn(t)
                    temps.append(t)
                if keep: self.keptset.add(p)
                else:
                    self.keptset.discard(p); free.append(slot)
                pos += 1
                issue_loads()
            elif it[0] == "code":
                it[1](self)
                issue_loads()
            elif it[0] == "drain":
                if self.fifo_n - self.done > it[1]:
                    self.vm_wait(self.fifo_n - 1 - it[1])
                issue_loads()
            elif it[0] == "loadall":
                while loadq and free:
                    n = self.fifo_n - self.done
                    tgt = max(0, state["cap"] - 4)
                    if n > tgt:
                        self.vm_wait(self.fifo_n - 1 - tgt)
                    issue_loads()
            elif it[0] == "cap":
                state["cap"] = it[1]; issue_loads()
            elif it[0] == "pol":
                state["pol"] = it[1]
        assert not loadq

def gen_setup1(A):
    A.comment("attention setup (part 1: what the first loads need)")
    A("s_lshr_b32 s%d, s2, 3" % S_H)
    A("s_and_b32 s%d, s2, 7" % S_SUB)
    A("s_sub_u32 s%d, s%d, 1" % (S_SUB, S_SUB))
    A("s_mul_i32 s%d, s%d, 73" % (S_T0, S_SUB))
    A("s_add_u32 s%d, s%d, s%d" % (S_T0, S_T0, S_W))
    A("s_lshl_b32 s%d, s%d, 12" % (S_T0, S_T0))
    A("s_lshl_b32 s%d, s%d, 21" % (S_T1, S_H))
    A("s_add_u32 s%d, s%d, s%d" % (S_BASE[0], S_T0, S_T1))
    A("s_add_u32 s%d, s%d, 0x4000000" % (S_BASE[1], S_BASE[0]))
    A("s_mul_i32 s%d, s%d, %d" % (S_T2, S_W, NLDS * 1024))
    A("s_add_u32 s%d, s%d, %d" % (S_T2, S_T2, LDS_SLOTS))
    A("v_bfe_u32 v%d, v0, 2, 2" % TA)
    A("v_lshlrev_b32 v%d, 8, v%d" % (V_KOFF, TA))
    A("v_lshrrev_b32 v%d, 4, v0" % TB)
    A("v_lshl_add_u32 v%d, v%d, 6, v%d" % (V_KOFF, TB, V_KOFF))
    A("v_and_b32 v%d, 3, v0" % TC)
    A("v_lshl_add_u32 v%d, v%d, 4, v%d" % (V_KOFF, TC, V_KOFF))

def gen_setup2(A):
    A.comment("attention setup (part 2)")
    A("s_cmp_eq_u32 s%d, 6" % S_SUB)
    A("s_cselect_b32 s%d, 2, 1" % S_T0)
    A("s_cmp_lt_u32 s%d, s%d" % (S_W, S_T0))
    A("s_cselect_b32 s%d, 1, 0" % S_T1)
    for b in (0, 1):
        A("s_add_u32 s%d, s%d, 0x%x" % (S_O18[b], S_BASE[b], 18 * 16384))
        A("s_cmp_eq_u32 s%d, 1" % S_T1)
        A("s_cselect_b32 s%d, s%d, 0x80000000" % (S_O18[b], S_O18[b]))
    for u in range(4):
        A("s_mov_b32 s%d, 0x%x" % (S_MASK[u], 0x11111111 << u))
        A("s_mov_b32 s%d, 0x%x" % (S_MASK[u] + 1, 0x11111111 << u))
    A("s_cmp_eq_u32 s%d, 1" % S_T1)
    A("s_cselect_b32 s%d, 0x44444444, 0" % S_M18)
    A("s_mov_b32 s%d, s%d" % (S_M18 + 1, S_M18))
    A("s_mov_b32 s%d, 0xcccccccc" % S_MG1)
    A("s_mov_b32 s%d, 0xcccccccc" % (S_MG1 + 1))
    A("s_mov_b32 s%d, 0x%x" % (S_C, f2u(LOG2E)))
    A("s_mov_b32 s%d, 0x%x" % (S_SC, f2u(128.0 ** -0.5)))
    A("s_lshl_b32 s%d, s%d, 9" % (S_Q, S_H))
    A("s_add_u32 s%d, s%d, 0x%x" % (S_Q, S_Q, OFF_Q))
    A("s_lshl_b32 s%d, s%d, 3" % (S_P, S_H))
    A("s_add_u32 s%d, s%d, s%d" % (S_P, S_P, S_SUB))
    A("s_lshl_b32 s%d, s%d, 11" % (S_P, S_P))
    A("s_add_u32 s%d, s%d, 0x%x" % (S_P, S_P, OFF_PART))
    A("v_lshrrev_b32 v%d, 4, v0" % TB)
    A("v_and_b32 v%d, 7, v0" % TC)
    A("v_lshlrev_b32 v%d, 4, v%d" % (TC, TC))
    A("v_lshl_add_u32 v%d, v%d, 8, v%d" % (TC, TB, TC))
    A("v_bfe_u32 v%d, v0, 3, 1" % TA)
    A("v_lshl_add_u32 v%d, v%d, 14, v%d" % (V_VOFF, TA, TC))
    A("v_lshl_add_u32 v%d, v%d, 30, v%d" % (V_VOFF9, TA, TC))
    A("v_and_b32 v%d, 1, v0" % TA)
    A("v_mov_b32 v%d, 0xffff" % TB)
    A("v_lshlrev_b32 v%d, 4, v%d" % (TC, TA))
    A("v_lshlrev_b32 v%d, v%d, v%d" % (V_HALF, TC, TB))
    A("v_lshlrev_b32 v%d, 4, v0" % V_LDSRD)
    A("v_add_u32 v%d, s%d, v%d" % (V_LDSRD, S_T2, V_LDSRD))
    A("v_bfe_u32 v%d, v0, 4, 1" % TA)
    A("v_lshlrev_b32 v%d, 5, v%d" % (V_PUB, TA))
    A("v_bfe_u32 v%d, v0, 1, 1" % TA)
    A("v_lshl_add_u32 v%d, v%d, 4, v%d" % (V_PUB, TA, V_PUB))
    A("v_lshrrev_b32 v%d, 5, v0" % TA)
    A("v_lshl_add_u32 v%d, v%d, 3, v%d" % (V_PUB, TA, V_PUB))
    A("v_bfe_u32 v%d, v0, 2, 2" % TA)
    A("v_lshl_add_u32 v%d, v%d, 1, v%d" % (V_PUB, TA, V_PUB))
    A("v_and_b32 v%d, 1, v0" % TA)
    A("v_add_u32 v%d, v%d, v%d" % (V_PUB, TA, V_PUB))
    A("s_lshl_b32 s%d, s%d, 6" % (S_T0, S_W))
    A("v_add_u32 v%d, s%d, v%d" % (V_PUB, S_T0, V_PUB))
    A("v_lshlrev_b32 v%d, 3, v%d" % (V_PUB, V_PUB))
    A("v_lshlrev_b32 v%d, 3, v0" % TA)
    A("v_add_u32 v%d, 1024, v%d" % (TA, TA))
    A("v_mov_b32 v%d, 0x7f000000" % TB)
    A("v_cmp_gt_u32 vcc, 2, v0")
    A("v_cndmask_b32 v%d, v%d, v%d, vcc" % (TA, TB, TA))
    A("s_cmp_eq_u32 s%d, 2" % S_W)
    A("s_cselect_b64 vcc, -1, 0")
    A("v_cndmask_b32 v%d, v%d, v%d, vcc" % (V_PUB, V_PUB, TA))
    A("s_cmp_eq_u32 s%d, 3" % S_W)
    A("s_cselect_b64 vcc, -1, 0")
    A("v_cndmask_b32 v%d, v%d, v%d, vcc" % (V_PUB, V_PUB, TB))
    gen_bank_masks(A)
    A("s_mov_b32 s%d, 0xaaaaaaaa" % S_MODD)
    A("s_mov_b32 s%d, 0xaaaaaaaa" % (S_MODD + 1))
    A("s_waitcnt lgkmcnt(0)")
    A("s_mul_i32 s%d, s%d, 0x%x" % (S_TAG, S_TAG, HASH_MUL))
    A("s_add_u32 s%d, s%d, 0x%x" % (S_TAG, S_TAG, HASH_ADD))

_lab = [0]
def newlab(p):
    _lab[0] += 1
    return "L_%s_%d" % (p, _lab[0])

def poll_issue(L, b):
    def f(S):
        A = S.A
        A("v_and_b32 v%d, 0xff, v%d" % (V_T7, V_KOFF))
        A("v_lshlrev_b32 v%d, 1, v%d" % (V_T7, V_T7))
        A("s_add_u32 s%d, s%d, 0x%x" % (S_T0, S_Q, (L * 2 + b) * 16384))
        S.vm_issue("buffer_load_dwordx4 %s, v%d, s[%d:%d], s%d offen sc1" % (vr(PQ, 4), V_T7, S_WS, S_WS + 3, S_T0))
        S.poll_idx = S.vm_issue("buffer_load_dwordx4 %s, v%d, s[%d:%d], s%d offen offset:16 sc1" % (vr(PQ + 4, 4), V_T7, S_WS, S_WS + 3, S_T0))
    return f

def poll_check(L, b):
    def chk(A):
        A("v_min3_u32 v%d, v%d, v%d, v%d" % (V_X0, PQ + 1, PQ + 3, PQ + 5))
        A("v_max3_u32 v%d, v%d, v%d, v%d" % (V_X1, PQ + 1, PQ + 3, PQ + 5))
        A("v_min_u32 v%d, v%d, v%d" % (V_X0, V_X0, PQ + 7))
        A("v_max_u32 v%d, v%d, v%d" % (V_X1, V_X1, PQ + 7))
        A("v_cmp_ne_u32 vcc, s%d, v%d" % (S_TAG, V_X0))
        A("v_cmp_ne_u32 s[%d:%d], s%d, v%d" % (S_EX, S_EX + 1, S_TAG, V_X1))
        A("s_or_b64 vcc, vcc, s[%d:%d]" % (S_EX, S_EX + 1))
    def f(S):
        A = S.A
        ok = newlab("qok"); retry = newlab("qretry")
        S.vm_wait(S.poll_idx)
        chk(A)
        A.branch("s_cbranch_vccz %s" % ok)
        A("s_mov_b32 s%d, 0x2000" % S_SPIN)
        A.label(retry)
        A("s_sleep 2")
        A("v_and_b32 v%d, 0xff, v%d" % (V_T7, V_KOFF))
        A("v_lshlrev_b32 v%d, 1, v%d" % (V_T7, V_T7))
        A("s_add_u32 s%d, s%d, 0x%x" % (S_T0, S_Q, (L * 2 + b) * 16384))
        A("buffer_load_dwordx4 %s, v%d, s[%d:%d], s%d offen sc1" % (vr(PQ, 4), V_T7, S_WS, S_WS + 3, S_T0))
        A("buffer_load_dwordx4 %s, v%d, s[%d:%d], s%d offen offset:16 sc1" % (vr(PQ + 4, 4), V_T7, S_WS, S_WS + 3, S_T0))
        A("s_waitcnt vmcnt(0)")
        chk(A)
        A("s_sub_u32 s%d, s%d, 1" % (S_SPIN, S_SPIN))
        A.branch("s_cbranch_scc1 %s" % ok)
        A.branch("s_cbranch_vccnz %s" % retry)
        A.label(ok)
        for m in range(4):
            for k in range(4):
                A("v_cndmask_b32_e64 v%d, 0, v%d, s[%d:%d]" % (QB + 4 * m + k, PQ + 2 * k, S_BANK[m], S_BANK[m] + 1))
    return f

S_BANK = [54, 56, 58, 60]

def gen_bank_masks(A):
    for m in range(4):
        v = (0xF << (4 * m)) * 0x00010001
        A("s_mov_b32 s%d, 0x%x" % (S_BANK[m], v))
        A("s_mov_b32 s%d, 0x%x" % (S_BANK[m] + 1, v))

def qp(a): return "quad_perm:[%d,%d,%d,%d] row_mask:0xf bank_mask:0xf" % tuple(a)

def extract(A, j, b):
    D = DK[j & 1]; u = j & 3; sp = SP[b] + (j >> 2)
    if u == 0:
        A("v_add_f32_dpp v%d, v%d, v%d %s" % (V_X0, D + 1, D + 0, qp([1] * 4)))
    else:
        A("v_add_f32_dpp v%d, v%d, v%d %s" % (V_X0, D + 0, D + 1, qp([0] * 4)))
    if u == 2:
        A("v_add_f32_dpp v%d, v%d, v%d %s" % (V_X1, D + 3, D + 2, qp([3] * 4)))
    else:
        A("v_add_f32_dpp v%d, v%d, v%d %s" % (V_X1, D + 2, D + 3, qp([2] * 4)))
    direct = (u == 0 and j < 16)
    dst = sp if direct else V_X0
    if u in (0, 1):
        A("v_add_f32_dpp v%d, v%d, v%d %s" % (dst, V_X1, V_X0, qp([3] * 4)))
    else:
        A("v_add_f32_dpp v%d, v%d, v%d %s" % (dst, V_X0, V_X1, qp([1] * 4)))
    if not direct:
        mk = S_M18 if j == 18 else S_MASK[u]
        A("v_cndmask_b32_e64 v%d, v%d, v%d, s[%d:%d]" % (sp, sp, V_X0, mk, mk + 1))

def k_phase(items, L, b, keepfn, j0=0, j1=NT, first=True, last=True):
    if first:
        items.append(("code", lambda S: S.A("v_mov_b32 v%d, 0xff800000" % (SP[b] + 4))))
    for j in range(j0, j1):
        for m in range(4):
            def fn(areg, j=j, m=m):
                def g(S_A):
                    pass
                D = DK[j & 1]
                return "v_mfma_f32_16x16x32_bf16 %s, %s, %s, %s" % (vr(D, 4), vr(areg, 4), vr(QB + 4 * m, 4), "0" if m == 0 else vr(D, 4))
            items.append(("use", (b, "K", j, m), keepfn((b, "K", j, m)), fn))
        if j > j0:
            items.append(("code", lambda S, j=j: extract(S.A, j - 1, b)))
    items.append(("code", lambda S: extract(S.A, j1 - 1, b)))

def wave_reduce(A, reg, op):
    for sh in (1, 2, 4, 8):
        A("%s_dpp v%d, v%d, v%d row_shr:%d row_mask:0xf bank_mask:0xf" % (op, reg, reg, reg, sh))
    A("%s_dpp v%d, v%d, v%d row_bcast:15 row_mask:0xa bank_mask:0xf" % (op, reg, reg, reg))
    A("%s_dpp v%d, v%d, v%d row_bcast:31 row_mask:0xc bank_mask:0xf" % (op, reg, reg, reg))

def softmax(b):
    def f(S):
        A = S.A; sp = SP[b]
        for k in range(5): A("v_cvt_pk_bf16_f32 v%d, v%d, v%d" % (sp + k, sp + k, sp + k))
        for k in range(5): A("v_and_b32 v%d, 0xffff0000, v%d" % (sp + k, sp + k))
        for k in range(5): A("v_mul_f32 v%d, s%d, v%d" % (sp + k, S_SC, sp + k))
        for k in range(5): A("v_cvt_pk_bf16_f32 v%d, v%d, v%d" % (sp + k, sp + k, sp + k))
        for k in range(5): A("v_and_b32 v%d, 0xffff0000, v%d" % (sp + k, sp + k))
        A("v_max3_f32 v%d, v%d, v%d, v%d" % (V_X0, sp, sp + 1, sp + 2))
        A("v_max3_f32 v%d, v%d, v%d, v%d" % (V_X0, V_X0, sp + 3, sp + 4))
        wave_reduce(A, V_X0, "v_max_f32")
        A("v_readlane_b32 s%d, v%d, 63" % (S_M[b], V_X0))
        A("v_mov_b32 v%d, s%d" % (V_X1, S_M[b]))
        A("v_mul_f32 v%d, s%d, v%d" % (V_X1, S_C, V_X1))
        for k in range(5):
            A("v_fma_f32 v%d, v%d, s%d, -v%d" % (sp + k, sp + k, S_C, V_X1))
        for k in range(5):
            A("v_exp_f32 v%d, v%d" % (sp + k, sp + k))
        A("v_add_f32 v%d, v%d, v%d" % (V_X0, sp, sp + 1))
        A("v_add_f32 v%d, v%d, v%d" % (V_X1, sp + 2, sp + 3))
        A("v_add_f32 v%d, v%d, v%d" % (V_X0, V_X0, sp + 4))
        A("v_add_f32 v%d, v%d, v%d" % (V_X0, V_X0, V_X1))
        for k in range(5):
            A("v_cvt_pk_bf16_f32 v%d, v%d, v%d" % (sp + k, sp + k, sp + k))
        wave_reduce(A, V_X0, "v_add_f32")
        A("v_readlane_b32 s%d, v%d, 63" % (S_L[b], V_X0))
    return f

def build_b(A, B, Y, mu):
    for rho in range(4):
        sh = 4 * ((rho - mu) & 3)
        ctl = "quad_perm:[0,1,2,3]" if sh == 0 else "row_ror:%d" % sh
        A("v_mov_b32_dpp v%d, v%d %s row_mask:0xf bank_mask:0x%x" % (B + rho, Y, ctl, 1 << rho))

def v_phase(items, L, b, keepfn):
    def zero(S):
        for r in range(8):
            S.A("v_mov_b32 v%d, 0" % (BV[0] + r))
    items.append(("code", zero))
    for pi in range(10):
        k = pi >> 1
        Y = YR[pi & 1]
        items.append(("code", lambda S, k=k, Y=Y, pi=pi: S.A("v_and_b32_dpp v%d, v%d, v%d %s" % (Y, SP[b] + k, V_HALF, qp([2, 2, 3, 3] if (pi & 1) else [0, 0, 1, 1])))))
        for mu in range(4):
            par = (pi * 4 + mu) & 1
            items.append(("code", lambda S, par=par, Y=Y, mu=mu: build_b(S.A, BV[par], Y, mu)))
            for cb in range(2):
                first = (pi == 0 and mu == 0)
                def fn(areg, par=par, cb=cb, first=first):
                    return "v_mfma_f32_16x16x32_bf16 %s, %s, %s, %s" % (vr(DV[cb], 4), vr(areg, 4), vr(BV[par], 4), "0" if first else vr(DV[cb], 4))
                p = (b, "V", pi, mu, cb)
                items.append(("use", p, keepfn(p), fn))

def g_reduce(A, D, t1, t2, R, smask):
    A("v_permlane32_swap_b32 v%d, v%d" % (D, D + 1))
    A("v_permlane32_swap_b32 v%d, v%d" % (D + 2, D + 3))
    A("v_add_f32_dpp v%d, v%d, v%d %s" % (t1, D + 1, D, qp([2, 3, 2, 3])))
    A("v_add_f32_dpp v%d, v%d, v%d %s" % (t2, D + 2, D + 3, qp([0, 1, 0, 1])))
    A("v_cndmask_b32_e64 v%d, v%d, v%d, s[%d:%d]" % (R, t1, t2, smask, smask + 1))

def combine(L, b):
    inst = L * 2 + b
    def f(S):
        A = S.A
        t = BV[0]
        S.lg_all()
        g_reduce(A, DV[0], t, t + 1, t + 2, S_MG1)
        g_reduce(A, DV[1], t + 3, t + 4, t + 5, S_MG1)
        A("s_lshl_b32 s%d, s%d, 9" % (S_T0, S_W))
        A("s_add_u32 m0, s%d, %d" % (S_T0, LDS_SCR))
        A("ds_write_addtid_b32 v%d offset:0" % (t + 2))
        A("ds_write_addtid_b32 v%d offset:256" % (t + 5))
        A("v_mov_b32 v%d, s%d" % (t, S_M[b]))
        A("v_mov_b32 v%d, s%d" % (t + 1, S_L[b]))
        A("s_lshl_b32 s%d, s%d, 3" % (S_T0, S_W))
        A("s_add_u32 s%d, s%d, %d" % (S_T0, S_T0, LDS_STAT))
        A("v_mov_b32 v%d, s%d" % (t + 3, S_T0))
        A("ds_write_b64 v%d, %s" % (t + 3, vr(t, 2)))
        A("s_waitcnt lgkmcnt(0)")
        A("s_barrier")
        st = DV[0]
        A("v_mov_b32 v%d, %d" % (t + 3, LDS_STAT))
        A("ds_read_b128 %s, v%d" % (vr(st, 4), t + 3))
        A("ds_read_b128 %s, v%d offset:16" % (vr(st + 4, 4), t + 3))
        A("s_and_b32 s%d, s%d, 1" % (S_T0, S_W))
        A("s_lshl_b32 s%d, s%d, 8" % (S_T0, S_T0))
        A("s_add_u32 m0, s%d, %d" % (S_T0, LDS_SCR))
        for w in range(4):
            A("ds_read_addtid_b32 v%d offset:%d" % (t + 4 + w, w * 512))
        A("s_waitcnt lgkmcnt(4)")
        A("v_max3_f32 v%d, v%d, v%d, v%d" % (t, st, st + 2, st + 4))
        A("v_max_f32 v%d, v%d, v%d" % (t, t, st + 6))
        for w in range(4):
            A("v_sub_f32 v%d, v%d, v%d" % (st + 2 * w, st + 2 * w, t))
            A("v_mul_f32 v%d, s%d, v%d" % (st + 2 * w, S_C, st + 2 * w))
        for w in range(4):
            A("v_exp_f32 v%d, v%d" % (st + 2 * w, st + 2 * w))
        A("v_mul_f32 v%d, v%d, v%d" % (t + 1, st, st + 1))
        for w in range(1, 4):
            A("v_fmac_f32 v%d, v%d, v%d" % (t + 1, st + 2 * w, st + 2 * w + 1))
        A("v_mul_f32 v%d, s%d, v%d" % (t, S_C, t))
        A("s_waitcnt lgkmcnt(0)")
        A("v_mul_f32 v%d, v%d, v%d" % (t + 2, st, t + 4))
        for w in range(1, 4):
            A("v_fmac_f32 v%d, v%d, v%d" % (t + 2, st + 2 * w, t + 4 + w))
        A("v_cndmask_b32_e64 v%d, v%d, v%d, s[%d:%d]" % (t, t, t + 1, S_MODD, S_MODD + 1))
        A("s_cmp_lt_u32 s%d, 2" % S_W)
        A("s_cselect_b64 vcc, -1, 0")
        A("v_cndmask_b32 v%d, v%d, v%d, vcc" % (t + 2, t, t + 2))
        A("v_mov_b32 v%d, s%d" % (t + 3, S_TAG))
        A("s_add_u32 s%d, s%d, 0x%x" % (S_T0, S_P, inst * 32 * 8 * 2048))
        S.vm_issue("buffer_store_dwordx2 %s, v%d, s[%d:%d], s%d offen sc1" % (vr(t + 2, 2), V_PUB, S_WS, S_WS + 3, S_T0))
        A("s_barrier")
        S.lg_done = S.lg_n
    return f
S_MODD = 62

S_STAMP = 64
def stamp(k):
    def f(S):
        if not S.cfg.get("stamps"): return
        A = S.A
        A("s_memrealtime s[%d:%d]" % (S_EX, S_EX + 1))
        A("s_waitcnt lgkmcnt(0)")
        A("s_mov_b32 s%d, s%d" % (S_STAMP + k, S_EX))
        S.lg_done = S.lg_n
    return f

OFF_STAMP = 0x700000
def dump_stamps(A, n):
    A("s_lshl_b32 s%d, s2, 2" % S_T0)
    A("s_add_u32 s%d, s%d, s%d" % (S_T0, S_T0, S_W))
    A("s_lshl_b32 s%d, s%d, 7" % (S_T0, S_T0))
    A("s_add_u32 s%d, s%d, 0x%x" % (S_T0, S_T0, OFF_STAMP))
    A("v_mov_b32 v1, 0")
    for k in range(n):
        A("v_mov_b32 v2, s%d" % (S_STAMP + k))
        A("buffer_store_dword v2, v1, s[%d:%d], s%d offen offset:%d" % (S_WS, S_WS + 3, S_T0, 4 * k))
        A("s_nop 1")

def gen_attn(A, cfg):
    gen_setup1(A)
    S = Sched(A, cfg)
    it = S.items
    def first(S):
        if cfg.get("pf_attn"):
            S.fifo_n += cfg["code_prefetch"](A, "L_attn", "L_chain", cfg["pf_attn"], LT[0], LT[1])
        gen_setup2(A)
    it.append(("code", first))
    wrap = lambda lst: None
    sched = cfg["sched"]
    sched(S, it)
    for i, x in enumerate(it):
        if x[0] == "use":
            fn = x[3]
            it[i] = ("use", x[1], x[2], (lambda areg, fn=fn: A(fn(areg))))
    S.run()
    if cfg.get("stamps"):
        dump_stamps(A, cfg["stamps"])
    A("s_waitcnt vmcnt(0)")
    A.branch("s_branch L_end")
    return S

def sched_simple(S, it):
    drop = lambda p: False
    for (L, b) in ((0, 1), (0, 0), (1, 1), (1, 0)):
        it.append(("code", poll_issue(L, b)))
        it.append(("code", poll_check(L, b), "fence"))
        k_phase(it, L, b, drop)
        it.append(("code", softmax(b)))
        v_phase(it, L, b, drop)
        it.append(("code", combine(L, b), "fence"))

def sched_pipe(S, it):
    cfg = S.cfg
    C = cfg["nlds"] + cfg["nreg"]; R = cfg.get("ring", 12)
    order = [(1, "K", j, m) for j in range(18) for m in range(4)] + [(1, "V", pi, mu, cb) for pi in range(9) for mu in range(4) for cb in range(2)]
    keep1 = set(order[:C - R])
    S.keep1 = keep1
    drop = lambda p: False
    F = "fence"
    it.append(("code", stamp(0), F))
    cap = cfg["cap0"]
    step = 4
    for _ in range(max(0, (cfg.get("npre", 76) - cap) // step)):
        it.append(("drain", cap - step))
    it.append(("code", poll_issue(0, 1)))
    it.append(("code", poll_check(0, 1), F))
    it.append(("code", stamp(1), F))
    k_phase(it, 0, 1, lambda p: p in keep1)
    it.append(("code", softmax(1)))
    it.append(("code", stamp(2), F))
    it.append(("code", poll_issue(0, 0)))
    v_phase(it, 0, 1, lambda p: p in keep1)
    it.append(("code", combine(0, 1), F))
    it.append(("code", stamp(3), F))
    it.append(("code", poll_check(0, 0), F))
    k_phase(it, 0, 0, drop)
    it.append(("code", softmax(0)))
    it.append(("code", stamp(4), F))
    it.append(("loadall",))
    it.append(("code", poll_issue(1, 1)))
    it.append(("code", poll_check(1, 1), F))
    it.append(("code", stamp(5), F))
    it.append(("cap", cfg.get("cap1", 60)))
    k_phase(it, 1, 1, drop)
    it.append(("code", softmax(1)))
    v_phase(it, 1, 1, drop)
    it.append(("code", combine(1, 1), F))
    it.append(("code", stamp(6), F))
    v_phase(it, 0, 0, lambda p: p[2] < 9)
    it.append(("code", combine(0, 0), F))
    it.append(("code", stamp(7), F))
    it.append(("loadall",))
    it.append(("code", poll_issue(1, 0)))
    it.append(("code", poll_check(1, 0), F))
    it.append(("code", stamp(8), F))
    k_phase(it, 1, 0, drop)
    it.append(("code", softmax(0)))
    it.append(("code", stamp(9), F))
    v_phase(it, 1, 0, drop)
    it.append(("code", combine(1, 0), F))
    it.append(("code", stamp(10), F))
```

```python
from collections import deque
from emit import *
from layout import *

V_KOFF, V_VOFF, V_VOFF9, V_HALF, V_LDSRD, V_PUB, V_T7 = 1, 2, 3, 4, 5, 6, 7
R1 = 8
QB = R1
BV = [R1, R1 + 4]
DV = [R1 + 8, R1 + 12]
R2 = 24
DK = [R2, R2 + 4]
YR = [R2, R2 + 1]
PQ = 28
TA, TB, TC, TD = 32, 33, 34, 35
SP = {1: 36, 0: 41}
LT = [46, 50, 54, 58]
V_X0, V_X1 = 62, 63
SLOT0 = 64
S_WS = 4; S_K = 8; S_V = 12
S_TAG, S_W, S_H, S_SUB = 16, 17, 18, 19
S_BASE = {0: 20, 1: 21}
S_O18 = {0: 22, 1: 23}
S_OT = [24, 25, 26, 27]
S_C = 28
S_SPIN = 29
S_MASK = [30, 32, 34, 36]
S_M18 = 38
S_MG1 = 40
S_M = {0: 42, 1: 43}
S_L = {0: 44, 1: 45}
S_Q = 46; S_P = 47
S_T0, S_T1 = 48, 49
S_EX = 50
S_T2 = 52
S_SC = 53
LDS_SCR = 0
LDS_STAT = 2048
LDS_SLOTS = 8192
NLDS = 38
NT = 19
TS = {"v": 16384}

class Sched:
    def __init__(self, A, cfg):
        self.A = A; self.cfg = cfg
        self.items = []
        self.fifo_n = 0
        self.done = 0
        self.lg_n = 0; self.lg_done = 0
        self.slot_of = {}; self.load_idx = {}
        self.soff_cache = {}
        self.soff_rr = 0
        self.nloads = 0
        self.load_count = {}
    def vm_issue(self, text):
        self.A(text); idx = self.fifo_n; self.fifo_n += 1; return idx
    def vm_wait(self, idx):
        if idx < self.done: return
        n = self.fifo_n - 1 - idx
        assert n <= 63, n
        self.A("s_waitcnt vmcnt(%d)" % n)
        self.done = idx + 1
    def vm_all_done(self):
        self.done = self.fifo_n
    def lg_issue(self, text):
        self.A(text); idx = self.lg_n; self.lg_n += 1; return idx
    def lg_wait(self, idx):
        if idx < self.lg_done: return
        n = self.lg_n - 1 - idx
        assert n <= 15, n
        self.A("s_waitcnt lgkmcnt(%d)" % n)
        self.lg_done = idx + 1
    def lg_all(self):
        if self.lg_done < self.lg_n:
            self.A("s_waitcnt lgkmcnt(0)")
        self.lg_done = self.lg_n
    def soff(self, b, tile, extra=0):
        key = (b, tile, extra)
        if key in self.soff_cache: return self.soff_cache[key]
        if tile == 18 and extra == 0: return S_O18[b]
        if tile == 0 and extra == 0: return S_BASE[b]
        r = S_OT[self.soff_rr % len(S_OT)]; self.soff_rr += 1
        for k in [k for k, v in self.soff_cache.items() if v == r]: del self.soff_cache[k]
        if tile == 18:
            self.A("s_add_u32 s%d, s%d, 0x%x" % (r, S_O18[b], extra))
        else:
            self.A("s_add_u32 s%d, s%d, 0x%x" % (r, S_BASE[b], tile * TS["v"] + extra))
        self.soff_cache[key] = r
        return r
    def emit_load(self, p, slot, pol):
        if p[1] == "K":
            b, _, j, m = p; tile = j; imm = m * 1024; voff = V_KOFF; srd = S_K
        else:
            b, _, pi, mu, cb = p; tile = 2 * pi; imm = mu * 1024 + cb * 128; srd = S_V
            voff = V_VOFF9 if pi == 9 else V_VOFF
        polx = (" " + pol) if pol else ""
        if slot[0] == "r":
            so = self.soff(b, tile)
            t = "buffer_load_dwordx4 %s, v%d, s[%d:%d], s%d offen%s%s" % (vr(slot[1], 4), voff, srd, srd + 3, so, (" offset:%d" % imm) if imm else "", polx)
        else:
            self.A("s_add_u32 m0, s%d, 0x%x" % (S_T2, slot[1] * 1024))
            so = self.soff(b, tile, imm)
            t = "buffer_load_dwordx4 v%d, s[%d:%d], s%d offen%s lds" % (voff, srd, srd + 3, so, polx)
        self.nloads += 1
        return self.vm_issue(t)

    def run(self):
        A = self.A; cfg = self.cfg; items = self.items
        uses = [i for i, it in enumerate(items) if it[0] == "use"]
        kept = set(); loadq = deque()
        for i in uses:
            _, p, keep, fn = items[i][:4]
            if p not in kept: loadq.append((i, p))
            if keep: kept.add(p)
            else: kept.discard(p)
        free = deque([("l", s) for s in range(cfg["nlds"])] + [("r", SLOT0 + 4 * s) for s in range(cfg["nreg"])])
        if cfg.get("reg_first"):
            free = deque([("r", SLOT0 + 4 * s) for s in range(cfg["nreg"])] + [("l", s) for s in range(cfg["nlds"])])
        temps = deque(LT)
        ldsread = {}
        state = {"cap": cfg["cap0"], "pol": cfg.get("pol", "nt")}
        def issue_loads():
            while loadq and free and (self.fifo_n - self.done) < state["cap"]:
                i, p = loadq.popleft()
                slot = free.popleft()
                self.slot_of[p] = slot
                pol = state["pol"]
                nth = self.load_count.get(p, 0); self.load_count[p] = nth + 1
                if cfg.get("polK0") is not None and p[0] == 0 and p[1] == "K" and nth == 0: pol = cfg["polK0"]
                if cfg.get("polK0r") is not None and p[0] == 0 and p[1] == "K" and nth == 1: pol = cfg["polK0r"]
                if cfg.get("l2k0") is not None and p[0] == 0 and p[1] == "K" and nth == 0 and p[2] >= cfg["l2k0"]: pol = ""
                if cfg.get("l2b1") and p[0] == 1 and nth == 0 and p not in self.keep1: pol = ""
                if cfg.get("polall") is not None: pol = cfg["polall"]
                if pol == "def": pol = ""
                self.load_idx[p] = self.emit_load(p, slot, pol)
                self.loaded_for[i] = True
        self.loaded_for = {}
        resident_use = {}
        LA = cfg.get("la", 3)
        def prefetch_lds(pos):
            cnt = 0
            for q in range(pos, min(pos + 8, len(uses))):
                ui = uses[q]
                if ui in ldsread:
                    cnt += 1; continue
                p = items[ui][1]
                if not (ui in self.loaded_for or self.kept_ok(ui)): break
                if self.slot_of[p][0] != "l": continue
                if cnt >= LA or not temps: break
                if any(items[x][0] == "code" and len(items[x]) > 2 and items[x][2] == "fence" for x in range(uses[pos], ui)): break
                self.vm_wait(self.load_idx[p])
                t = temps.popleft()
                li = self.lg_issue("ds_read_b128 %s, v%d offset:%d" % (vr(t, 4), V_LDSRD, self.slot_of[p][1] * 1024))
                ldsread[ui] = (t, li); cnt += 1
        lastkeep = {}
        self.keptset = set()
        self.kept_ok = lambda ui: items[ui][1] in self.keptset
        pos = 0
        for f in cfg.get("pre", []): f(self)
        issue_loads()
        for i, it in enumerate(items):
            if it[0] == "use":
                _, p, keep, fn = it[:4]
                assert (i in self.loaded_for) or (p in self.keptset), ("piece not loaded before use (deadlock)", i, p)
                prefetch_lds(pos)
                slot = self.slot_of[p]
                if slot[0] == "r":
                    self.vm_wait(self.load_idx[p])
                    fn(slot[1])
                else:
                    t, li = ldsread.pop(i)
                    self.lg_wait(li)
                    fn(t)
                    temps.append(t)
                if keep: self.keptset.add(p)
                else:
                    self.keptset.discard(p); free.append(slot)
                pos += 1
                issue_loads()
            elif it[0] == "code":
                it[1](self)
                issue_loads()
            elif it[0] == "drain":
                if self.fifo_n - self.done > it[1]:
                    self.vm_wait(self.fifo_n - 1 - it[1])
                issue_loads()
            elif it[0] == "bgdrain":
                n = max(0, state["cap"] - cfg.get("dstep", 4))
                if loadq and free and self.fifo_n - self.done > n:
                    self.vm_wait(self.fifo_n - 1 - n)
                issue_loads()
            elif it[0] == "loadall":
                while loadq and free:
                    n = self.fifo_n - self.done
                    tgt = max(0, state["cap"] - cfg.get("dstep", 4))
                    if n > tgt:
                        self.vm_wait(self.fifo_n - 1 - tgt)
                    issue_loads()
            elif it[0] == "cap":
                state["cap"] = it[1]; issue_loads()
            elif it[0] == "pol":
                state["pol"] = it[1]
        assert not loadq

def gen_setup1(A, cfg):
    A.comment("attention setup (part 1: what the first loads need)")
    A("s_lshr_b32 s%d, s2, 3" % S_H)
    A("s_and_b32 s%d, s2, 7" % S_SUB)
    A("s_sub_u32 s%d, s%d, 1" % (S_SUB, S_SUB))
    if cfg.get("rotsub", 1):
        A("s_add_u32 s%d, s%d, s%d" % (S_SUB, S_SUB, S_H))
        A("s_mul_i32 s%d, s%d, 37" % (S_T0, S_SUB))
        A("s_lshr_b32 s%d, s%d, 8" % (S_T0, S_T0))
        A("s_mul_i32 s%d, s%d, 7" % (S_T0, S_T0))
        A("s_sub_u32 s%d, s%d, s%d" % (S_SUB, S_SUB, S_T0))
    if cfg.get("gil"):
        TS["v"] = 28 * 4096
        A("s_mul_i32 s%d, s%d, 7" % (S_T0, S_W))
        A("s_add_u32 s%d, s%d, s%d" % (S_T0, S_T0, S_SUB))
    else:
        TS["v"] = 16384
        A("s_mul_i32 s%d, s%d, 73" % (S_T0, S_SUB))
        A("s_add_u32 s%d, s%d, s%d" % (S_T0, S_T0, S_W))
    A("s_lshl_b32 s%d, s%d, 12" % (S_T0, S_T0))
    A("s_lshl_b32 s%d, s%d, 21" % (S_T1, S_H))
    A("s_add_u32 s%d, s%d, s%d" % (S_BASE[0], S_T0, S_T1))
    A("s_add_u32 s%d, s%d, 0x4000000" % (S_BASE[1], S_BASE[0]))
    A("s_mul_i32 s%d, s%d, %d" % (S_T2, S_W, NLDS * 1024))
    A("s_add_u32 s%d, s%d, %d" % (S_T2, S_T2, LDS_SLOTS))
    A("v_bfe_u32 v%d, v0, 2, 2" % TA)
    A("v_lshlrev_b32 v%d, 8, v%d" % (V_KOFF, TA))
    A("v_lshrrev_b32 v%d, 4, v0" % TB)
    A("v_lshl_add_u32 v%d, v%d, 6, v%d" % (V_KOFF, TB, V_KOFF))
    A("v_and_b32 v%d, 3, v0" % TC)
    A("v_lshl_add_u32 v%d, v%d, 4, v%d" % (V_KOFF, TC, V_KOFF))

def gen_setup2(A, cfg):
    A.comment("attention setup (part 2)")
    if cfg.get("gil"):
        A("s_mul_i32 s%d, s%d, 7" % (S_T0, S_W))
        A("s_add_u32 s%d, s%d, s%d" % (S_T0, S_T0, S_SUB))
        A("s_cmp_lt_u32 s%d, 8" % S_T0)
    else:
        A("s_cmp_eq_u32 s%d, 6" % S_SUB)
        A("s_cselect_b32 s%d, 2, 1" % S_T0)
        A("s_cmp_lt_u32 s%d, s%d" % (S_W, S_T0))
    A("s_cselect_b32 s%d, 1, 0" % S_T1)
    for b in (0, 1):
        A("s_add_u32 s%d, s%d, 0x%x" % (S_O18[b], S_BASE[b], 18 * TS["v"]))
        A("s_cmp_eq_u32 s%d, 1" % S_T1)
        A("s_cselect_b32 s%d, s%d, 0x80000000" % (S_O18[b], S_O18[b]))
    for u in range(4):
        A("s_mov_b32 s%d, 0x%x" % (S_MASK[u], 0x11111111 << u))
        A("s_mov_b32 s%d, 0x%x" % (S_MASK[u] + 1, 0x11111111 << u))
    A("s_cmp_eq_u32 s%d, 1" % S_T1)
    A("s_cselect_b32 s%d, 0x44444444, 0" % S_M18)
    A("s_mov_b32 s%d, s%d" % (S_M18 + 1, S_M18))
    A("s_mov_b32 s%d, 0xcccccccc" % S_MG1)
    A("s_mov_b32 s%d, 0xcccccccc" % (S_MG1 + 1))
    A("s_mov_b32 s%d, 0x%x" % (S_C, f2u(LOG2E)))
    A("s_mov_b32 s%d, 0x%x" % (S_SC, f2u(128.0 ** -0.5)))
    A("s_lshl_b32 s%d, s%d, 9" % (S_Q, S_H))
    A("s_add_u32 s%d, s%d, 0x%x" % (S_Q, S_Q, OFF_Q))
    A("s_lshl_b32 s%d, s%d, 3" % (S_P, S_H))
    A("s_add_u32 s%d, s%d, s%d" % (S_P, S_P, S_SUB))
    A("s_lshl_b32 s%d, s%d, 11" % (S_P, S_P))
    A("s_add_u32 s%d, s%d, 0x%x" % (S_P, S_P, OFF_PART))
    A("v_lshrrev_b32 v%d, 4, v0" % TB)
    A("v_and_b32 v%d, 7, v0" % TC)
    A("v_lshlrev_b32 v%d, 4, v%d" % (TC, TC))
    A("v_lshl_add_u32 v%d, v%d, 8, v%d" % (TC, TB, TC))
    A("v_bfe_u32 v%d, v0, 3, 1" % TA)
    A("v_mul_u32_u24 v%d, 0x%x, v%d" % (V_VOFF, TS["v"], TA))
    A("v_add_u32 v%d, v%d, v%d" % (V_VOFF, V_VOFF, TC))
    A("v_lshl_add_u32 v%d, v%d, 30, v%d" % (V_VOFF9, TA, TC))
    A("v_and_b32 v%d, 1, v0" % TA)
    A("v_mov_b32 v%d, 0xffff" % TB)
    A("v_lshlrev_b32 v%d, 4, v%d" % (TC, TA))
    A("v_lshlrev_b32 v%d, v%d, v%d" % (V_HALF, TC, TB))
    A("v_lshlrev_b32 v%d, 4, v0" % V_LDSRD)
    A("v_add_u32 v%d, s%d, v%d" % (V_LDSRD, S_T2, V_LDSRD))
    A("v_bfe_u32 v%d, v0, 4, 1" % TA)
    A("v_lshlrev_b32 v%d, 5, v%d" % (V_PUB, TA))
    A("v_bfe_u32 v%d, v0, 1, 1" % TA)
    A("v_lshl_add_u32 v%d, v%d, 4, v%d" % (V_PUB, TA, V_PUB))
    A("v_lshrrev_b32 v%d, 5, v0" % TA)
    A("v_lshl_add_u32 v%d, v%d, 3, v%d" % (V_PUB, TA, V_PUB))
    A("v_bfe_u32 v%d, v0, 2, 2" % TA)
    A("v_lshl_add_u32 v%d, v%d, 1, v%d" % (V_PUB, TA, V_PUB))
    A("v_and_b32 v%d, 1, v0" % TA)
    A("v_add_u32 v%d, v%d, v%d" % (V_PUB, TA, V_PUB))
    A("s_lshl_b32 s%d, s%d, 6" % (S_T0, S_W))
    A("v_add_u32 v%d, s%d, v%d" % (V_PUB, S_T0, V_PUB))
    A("v_lshlrev_b32 v%d, 3, v%d" % (V_PUB, V_PUB))
    A("v_lshlrev_b32 v%d, 3, v0" % TA)
    A("v_add_u32 v%d, 1024, v%d" % (TA, TA))
    A("v_mov_b32 v%d, 0x7f000000" % TB)
    A("v_cmp_gt_u32 vcc, 2, v0")
    A("v_cndmask_b32 v%d, v%d, v%d, vcc" % (TA, TB, TA))
    A("s_cmp_eq_u32 s%d, 2" % S_W)
    A("s_cselect_b64 vcc, -1, 0")
    A("v_cndmask_b32 v%d, v%d, v%d, vcc" % (V_PUB, V_PUB, TA))
    A("s_cmp_eq_u32 s%d, 3" % S_W)
    A("s_cselect_b64 vcc, -1, 0")
    A("v_cndmask_b32 v%d, v%d, v%d, vcc" % (V_PUB, V_PUB, TB))
    gen_bank_masks(A)
    A("s_mov_b32 s%d, 0xaaaaaaaa" % S_MODD)
    A("s_mov_b32 s%d, 0xaaaaaaaa" % (S_MODD + 1))
    A("s_waitcnt lgkmcnt(0)")
    A("s_mul_i32 s%d, s%d, 0x%x" % (S_TAG, S_TAG, HASH_MUL))
    A("s_add_u32 s%d, s%d, 0x%x" % (S_TAG, S_TAG, HASH_ADD))

_lab = [0]
def newlab(p):
    _lab[0] += 1
    return "L_%s_%d" % (p, _lab[0])

def poll_issue(L, b):
    def f(S):
        A = S.A
        A("v_and_b32 v%d, 0xff, v%d" % (V_T7, V_KOFF))
        A("v_lshlrev_b32 v%d, 1, v%d" % (V_T7, V_T7))
        A("s_add_u32 s%d, s%d, 0x%x" % (S_T0, S_Q, (L * 2 + b) * 16384))
        S.vm_issue("buffer_load_dwordx4 %s, v%d, s[%d:%d], s%d offen sc1" % (vr(PQ, 4), V_T7, S_WS, S_WS + 3, S_T0))
        S.poll_idx = S.vm_issue("buffer_load_dwordx4 %s, v%d, s[%d:%d], s%d offen offset:16 sc1" % (vr(PQ + 4, 4), V_T7, S_WS, S_WS + 3, S_T0))
    return f

def poll_check(L, b):
    def chk(A):
        A("v_min3_u32 v%d, v%d, v%d, v%d" % (V_X0, PQ + 1, PQ + 3, PQ + 5))
        A("v_max3_u32 v%d, v%d, v%d, v%d" % (V_X1, PQ + 1, PQ + 3, PQ + 5))
        A("v_min_u32 v%d, v%d, v%d" % (V_X0, V_X0, PQ + 7))
        A("v_max_u32 v%d, v%d, v%d" % (V_X1, V_X1, PQ + 7))
        A("v_cmp_ne_u32 vcc, s%d, v%d" % (S_TAG, V_X0))
        A("v_cmp_ne_u32 s[%d:%d], s%d, v%d" % (S_EX, S_EX + 1, S_TAG, V_X1))
        A("s_or_b64 vcc, vcc, s[%d:%d]" % (S_EX, S_EX + 1))
    def f(S):
        A = S.A
        ok = newlab("qok"); retry = newlab("qretry")
        S.vm_wait(S.poll_idx)
        chk(A)
        A.branch("s_cbranch_vccz %s" % ok)
        A("s_mov_b32 s%d, 0x2000" % S_SPIN)
        A.label(retry)
        A("s_sleep 2")
        A("v_and_b32 v%d, 0xff, v%d" % (V_T7, V_KOFF))
        A("v_lshlrev_b32 v%d, 1, v%d" % (V_T7, V_T7))
        A("s_add_u32 s%d, s%d, 0x%x" % (S_T0, S_Q, (L * 2 + b) * 16384))
        A("buffer_load_dwordx4 %s, v%d, s[%d:%d], s%d offen sc1" % (vr(PQ, 4), V_T7, S_WS, S_WS + 3, S_T0))
        A("buffer_load_dwordx4 %s, v%d, s[%d:%d], s%d offen offset:16 sc1" % (vr(PQ + 4, 4), V_T7, S_WS, S_WS + 3, S_T0))
        A("s_waitcnt vmcnt(0)")
        chk(A)
        A("s_sub_u32 s%d, s%d, 1" % (S_SPIN, S_SPIN))
        A.branch("s_cbranch_scc1 %s" % ok)
        A.branch("s_cbranch_vccnz %s" % retry)
        A.label(ok)
        for m in range(4):
            for k in range(4):
                A("v_cndmask_b32_e64 v%d, 0, v%d, s[%d:%d]" % (QB + 4 * m + k, PQ + 2 * k, S_BANK[m], S_BANK[m] + 1))
    return f

S_BANK = [54, 56, 58, 60]

def gen_bank_masks(A):
    for m in range(4):
        v = (0xF << (4 * m)) * 0x00010001
        A("s_mov_b32 s%d, 0x%x" % (S_BANK[m], v))
        A("s_mov_b32 s%d, 0x%x" % (S_BANK[m] + 1, v))

def qp(a): return "quad_perm:[%d,%d,%d,%d] row_mask:0xf bank_mask:0xf" % tuple(a)

def extract(A, j, b):
    D = DK[j & 1]; u = j & 3; sp = SP[b] + (j >> 2)
    if u == 0:
        A("v_add_f32_dpp v%d, v%d, v%d %s" % (V_X0, D + 1, D + 0, qp([1] * 4)))
    else:
        A("v_add_f32_dpp v%d, v%d, v%d %s" % (V_X0, D + 0, D + 1, qp([0] * 4)))
    if u == 2:
        A("v_add_f32_dpp v%d, v%d, v%d %s" % (V_X1, D + 3, D + 2, qp([3] * 4)))
    else:
        A("v_add_f32_dpp v%d, v%d, v%d %s" % (V_X1, D + 2, D + 3, qp([2] * 4)))
    direct = (u == 0 and j < 16)
    dst = sp if direct else V_X0
    if u in (0, 1):
        A("v_add_f32_dpp v%d, v%d, v%d %s" % (dst, V_X1, V_X0, qp([3] * 4)))
    else:
        A("v_add_f32_dpp v%d, v%d, v%d %s" % (dst, V_X0, V_X1, qp([1] * 4)))
    if not direct:
        mk = S_M18 if j == 18 else S_MASK[u]
        A("v_cndmask_b32_e64 v%d, v%d, v%d, s[%d:%d]" % (sp, sp, V_X0, mk, mk + 1))

def k_phase(items, L, b, keepfn, j0=0, j1=NT, first=True, last=True, bg=0):
    if first:
        items.append(("code", lambda S: S.A("v_mov_b32 v%d, 0xff800000" % (SP[b] + 4))))
    for j in range(j0, j1):
        for m in range(4):
            def fn(areg, j=j, m=m):
                def g(S_A):
                    pass
                D = DK[j & 1]
                return "v_mfma_f32_16x16x32_bf16 %s, %s, %s, %s" % (vr(D, 4), vr(areg, 4), vr(QB + 4 * m, 4), "0" if m == 0 else vr(D, 4))
            items.append(("use", (b, "K", j, m), keepfn((b, "K", j, m)), fn))
        if j > j0:
            items.append(("code", lambda S, j=j: extract(S.A, j - 1, b)))
        if bg and j % bg == bg - 1:
            items.append(("bgdrain",))
    items.append(("code", lambda S: extract(S.A, j1 - 1, b)))

def wave_reduce(A, reg, op):
    for sh in (1, 2, 4, 8):
        A("%s_dpp v%d, v%d, v%d row_shr:%d row_mask:0xf bank_mask:0xf" % (op, reg, reg, reg, sh))
    A("%s_dpp v%d, v%d, v%d row_bcast:15 row_mask:0xa bank_mask:0xf" % (op, reg, reg, reg))
    A("%s_dpp v%d, v%d, v%d row_bcast:31 row_mask:0xc bank_mask:0xf" % (op, reg, reg, reg))

def softmax(b):
    def f(S):
        A = S.A; sp = SP[b]
        for k in range(5): A("v_cvt_pk_bf16_f32 v%d, v%d, v%d" % (sp + k, sp + k, sp + k))
        for k in range(5): A("v_and_b32 v%d, 0xffff0000, v%d" % (sp + k, sp + k))
        for k in range(5): A("v_mul_f32 v%d, s%d, v%d" % (sp + k, S_SC, sp + k))
        for k in range(5): A("v_cvt_pk_bf16_f32 v%d, v%d, v%d" % (sp + k, sp + k, sp + k))
        for k in range(5): A("v_and_b32 v%d, 0xffff0000, v%d" % (sp + k, sp + k))
        A("v_max3_f32 v%d, v%d, v%d, v%d" % (V_X0, sp, sp + 1, sp + 2))
        A("v_max3_f32 v%d, v%d, v%d, v%d" % (V_X0, V_X0, sp + 3, sp + 4))
        wave_reduce(A, V_X0, "v_max_f32")
        A("v_readlane_b32 s%d, v%d, 63" % (S_M[b], V_X0))
        A("v_mov_b32 v%d, s%d" % (V_X1, S_M[b]))
        A("v_mul_f32 v%d, s%d, v%d" % (V_X1, S_C, V_X1))
        for k in range(5):
            A("v_fma_f32 v%d, v%d, s%d, -v%d" % (sp + k, sp + k, S_C, V_X1))
        for k in range(5):
            A("v_exp_f32 v%d, v%d" % (sp + k, sp + k))
        A("v_add_f32 v%d, v%d, v%d" % (V_X0, sp, sp + 1))
        A("v_add_f32 v%d, v%d, v%d" % (V_X1, sp + 2, sp + 3))
        A("v_add_f32 v%d, v%d, v%d" % (V_X0, V_X0, sp + 4))
        A("v_add_f32 v%d, v%d, v%d" % (V_X0, V_X0, V_X1))
        for k in range(5):
            A("v_cvt_pk_bf16_f32 v%d, v%d, v%d" % (sp + k, sp + k, sp + k))
        wave_reduce(A, V_X0, "v_add_f32")
        A("v_readlane_b32 s%d, v%d, 63" % (S_L[b], V_X0))
    return f

def build_b(A, B, Y, mu):
    for rho in range(4):
        sh = 4 * ((rho - mu) & 3)
        ctl = "quad_perm:[0,1,2,3]" if sh == 0 else "row_ror:%d" % sh
        A("v_mov_b32_dpp v%d, v%d %s row_mask:0xf bank_mask:0x%x" % (B + rho, Y, ctl, 1 << rho))

def v_phase(items, L, b, keepfn, bg=0):
    def zero(S):
        for r in range(8):
            S.A("v_mov_b32 v%d, 0" % (BV[0] + r))
    items.append(("code", zero))
    for pi in range(10):
        k = pi >> 1
        Y = YR[pi & 1]
        items.append(("code", lambda S, k=k, Y=Y, pi=pi: S.A("v_and_b32_dpp v%d, v%d, v%d %s" % (Y, SP[b] + k, V_HALF, qp([2, 2, 3, 3] if (pi & 1) else [0, 0, 1, 1])))))
        for mu in range(4):
            par = (pi * 4 + mu) & 1
            items.append(("code", lambda S, par=par, Y=Y, mu=mu: build_b(S.A, BV[par], Y, mu)))
            for cb in range(2):
                first = (pi == 0 and mu == 0)
                def fn(areg, par=par, cb=cb, first=first):
                    return "v_mfma_f32_16x16x32_bf16 %s, %s, %s, %s" % (vr(DV[cb], 4), vr(areg, 4), vr(BV[par], 4), "0" if first else vr(DV[cb], 4))
                p = (b, "V", pi, mu, cb)
                items.append(("use", p, keepfn(p), fn))
            if bg and mu % bg == bg - 1:
                items.append(("bgdrain",))

def g_reduce(A, D, t1, t2, R, smask):
    A("v_permlane32_swap_b32 v%d, v%d" % (D, D + 1))
    A("v_permlane32_swap_b32 v%d, v%d" % (D + 2, D + 3))
    A("v_add_f32_dpp v%d, v%d, v%d %s" % (t1, D + 1, D, qp([2, 3, 2, 3])))
    A("v_add_f32_dpp v%d, v%d, v%d %s" % (t2, D + 2, D + 3, qp([0, 1, 0, 1])))
    A("v_cndmask_b32_e64 v%d, v%d, v%d, s[%d:%d]" % (R, t1, t2, smask, smask + 1))

def combine(L, b):
    inst = L * 2 + b
    def f(S):
        A = S.A
        t = BV[0]
        S.lg_all()
        g_reduce(A, DV[0], t, t + 1, t + 2, S_MG1)
        g_reduce(A, DV[1], t + 3, t + 4, t + 5, S_MG1)
        A("s_lshl_b32 s%d, s%d, 9" % (S_T0, S_W))
        A("s_add_u32 m0, s%d, %d" % (S_T0, LDS_SCR))
        A("ds_write_addtid_b32 v%d offset:0" % (t + 2))
        A("ds_write_addtid_b32 v%d offset:256" % (t + 5))
        A("v_mov_b32 v%d, s%d" % (t, S_M[b]))
        A("v_mov_b32 v%d, s%d" % (t + 1, S_L[b]))
        A("s_lshl_b32 s%d, s%d, 3" % (S_T0, S_W))
        A("s_add_u32 s%d, s%d, %d" % (S_T0, S_T0, LDS_STAT))
        A("v_mov_b32 v%d, s%d" % (t + 3, S_T0))
        A("ds_write_b64 v%d, %s" % (t + 3, vr(t, 2)))
        A("s_waitcnt lgkmcnt(0)")
        A("s_barrier")
        st = DV[0]
        A("v_mov_b32 v%d, %d" % (t + 3, LDS_STAT))
        A("ds_read_b128 %s, v%d" % (vr(st, 4), t + 3))
        A("ds_read_b128 %s, v%d offset:16" % (vr(st + 4, 4), t + 3))
        A("s_and_b32 s%d, s%d, 1" % (S_T0, S_W))
        A("s_lshl_b32 s%d, s%d, 8" % (S_T0, S_T0))
        A("s_add_u32 m0, s%d, %d" % (S_T0, LDS_SCR))
        for w in range(4):
            A("ds_read_addtid_b32 v%d offset:%d" % (t + 4 + w, w * 512))
        A("s_waitcnt lgkmcnt(4)")
        A("v_max3_f32 v%d, v%d, v%d, v%d" % (t, st, st + 2, st + 4))
        A("v_max_f32 v%d, v%d, v%d" % (t, t, st + 6))
        for w in range(4):
            A("v_sub_f32 v%d, v%d, v%d" % (st + 2 * w, st + 2 * w, t))
            A("v_mul_f32 v%d, s%d, v%d" % (st + 2 * w, S_C, st + 2 * w))
        for w in range(4):
            A("v_exp_f32 v%d, v%d" % (st + 2 * w, st + 2 * w))
        A("v_mul_f32 v%d, v%d, v%d" % (t + 1, st, st + 1))
        for w in range(1, 4):
            A("v_fmac_f32 v%d, v%d, v%d" % (t + 1, st + 2 * w, st + 2 * w + 1))
        A("v_mul_f32 v%d, s%d, v%d" % (t, S_C, t))
        A("s_waitcnt lgkmcnt(0)")
        A("v_mul_f32 v%d, v%d, v%d" % (t + 2, st, t + 4))
        for w in range(1, 4):
            A("v_fmac_f32 v%d, v%d, v%d" % (t + 2, st + 2 * w, t + 4 + w))
        A("v_cndmask_b32_e64 v%d, v%d, v%d, s[%d:%d]" % (t, t, t + 1, S_MODD, S_MODD + 1))
        A("s_cmp_lt_u32 s%d, 2" % S_W)
        A("s_cselect_b64 vcc, -1, 0")
        A("v_cndmask_b32 v%d, v%d, v%d, vcc" % (t + 2, t, t + 2))
        A("v_mov_b32 v%d, s%d" % (t + 3, S_TAG))
        A("s_add_u32 s%d, s%d, 0x%x" % (S_T0, S_P, inst * 32 * 8 * 2048))
        S.vm_issue("buffer_store_dwordx2 %s, v%d, s[%d:%d], s%d offen sc1" % (vr(t + 2, 2), V_PUB, S_WS, S_WS + 3, S_T0))
        A("s_barrier")
        S.lg_done = S.lg_n
    return f
S_MODD = 62

S_STAMP = 64
def stamp(k):
    def f(S):
        if not S.cfg.get("stamps"): return
        A = S.A
        A("s_memrealtime s[%d:%d]" % (S_EX, S_EX + 1))
        A("s_waitcnt lgkmcnt(0)")
        A("s_mov_b32 s%d, s%d" % (S_STAMP + k, S_EX))
        S.lg_done = S.lg_n
    return f

OFF_STAMP = 0x700000
def dump_stamps(A, n):
    A("s_lshl_b32 s%d, s2, 2" % S_T0)
    A("s_add_u32 s%d, s%d, s%d" % (S_T0, S_T0, S_W))
    A("s_lshl_b32 s%d, s%d, 7" % (S_T0, S_T0))
    A("s_add_u32 s%d, s%d, 0x%x" % (S_T0, S_T0, OFF_STAMP))
    A("v_mov_b32 v1, 0")
    for k in range(n):
        A("v_mov_b32 v2, s%d" % (S_STAMP + k))
        A("buffer_store_dword v2, v1, s[%d:%d], s%d offen offset:%d" % (S_WS, S_WS + 3, S_T0, 4 * k))
        A("s_nop 1")

def gen_attn(A, cfg):
    gen_setup1(A, cfg)
    S = Sched(A, cfg)
    it = S.items
    def first(S):
        if cfg.get("pf_attn"):
            S.fifo_n += cfg["code_prefetch"](A, "L_attn", "L_chain", cfg["pf_attn"], LT[0], LT[1])
        gen_setup2(A, cfg)
    it.append(("code", first))
    wrap = lambda lst: None
    sched = cfg["sched"]
    sched(S, it)
    for i, x in enumerate(it):
        if x[0] == "use":
            fn = x[3]
            it[i] = ("use", x[1], x[2], (lambda areg, fn=fn: A(fn(areg))))
    S.run()
    if cfg.get("stamps"):
        dump_stamps(A, cfg["stamps"])
    A("s_waitcnt vmcnt(0)")
    A.branch("s_branch L_end")
    return S

def sched_simple(S, it):
    drop = lambda p: False
    for (L, b) in ((0, 1), (0, 0), (1, 1), (1, 0)):
        it.append(("code", poll_issue(L, b)))
        it.append(("code", poll_check(L, b), "fence"))
        k_phase(it, L, b, drop)
        it.append(("code", softmax(b)))
        v_phase(it, L, b, drop)
        it.append(("code", combine(L, b), "fence"))

def sched_pipe(S, it):
    cfg = S.cfg
    C = cfg["nlds"] + cfg["nreg"]; R = cfg.get("ring", 12)
    order = [(1, "K", j, m) for j in range(18) for m in range(4)] + [(1, "V", pi, mu, cb) for pi in range(9) for mu in range(4) for cb in range(2)]
    keep1 = set(order[:C - R])
    S.keep1 = keep1
    drop = lambda p: False
    F = "fence"
    it.append(("code", stamp(0), F))
    cap = cfg["cap0"]
    step = cfg.get("dstep", 4)
    for _ in range(max(0, (cfg.get("npre", 76) - cap) // step)):
        it.append(("drain", cap - step))
    it.append(("code", poll_issue(0, 1)))
    it.append(("code", poll_check(0, 1), F))
    it.append(("code", stamp(1), F))
    k_phase(it, 0, 1, lambda p: p in keep1)
    it.append(("code", softmax(1)))
    it.append(("code", stamp(2), F))
    it.append(("code", poll_issue(0, 0)))
    v_phase(it, 0, 1, lambda p: p in keep1)
    it.append(("code", combine(0, 1), F))
    it.append(("code", stamp(3), F))
    it.append(("code", poll_check(0, 0), F))
    k_phase(it, 0, 0, drop)
    it.append(("code", softmax(0)))
    it.append(("code", stamp(4), F))
    it.append(("loadall",))
    it.append(("code", poll_issue(1, 1)))
    it.append(("code", poll_check(1, 1), F))
    it.append(("code", stamp(5), F))
    it.append(("cap", cfg.get("cap4", cfg.get("cap1", 60))))
    k_phase(it, 1, 1, drop, bg=cfg.get("bgk", 0))
    it.append(("code", softmax(1)))
    v_phase(it, 1, 1, drop, bg=cfg.get("bgv", 0))
    it.append(("code", combine(1, 1), F))
    it.append(("cap", cfg.get("cap1", 60)))
    it.append(("code", stamp(6), F))
    v_phase(it, 0, 0, lambda p: p[2] < 9)
    it.append(("code", combine(0, 0), F))
    it.append(("code", stamp(7), F))
    it.append(("cap", cfg.get("cap7", cfg.get("cap1", 60))))
    it.append(("loadall",))
    it.append(("code", poll_issue(1, 0)))
    it.append(("code", poll_check(1, 0), F))
    it.append(("code", stamp(8), F))
    k_phase(it, 1, 0, drop)
    it.append(("code", softmax(0)))
    it.append(("code", stamp(9), F))
    v_phase(it, 1, 0, drop)
    it.append(("code", combine(1, 0), F))
    it.append(("code", stamp(10), F))
```

```python
from emit import *
from layout import *
import math
from attn import qp, build_b, g_reduce, newlab

V_LANE, V_HALF, V_ROW8, V_N8, V_PX, V_X, V_XO, V_B1M, V_B2, V_B1E = 0, 1, 2, 3, 4, 5, 6, 7, 8, 9
B0 = 10
BX = 26
YK = [42, 43, 44, 45, 46]
WREG0 = 48
def wq_reg(beta, cb):  return WREG0 + 4 * ((beta - 14) * 2 + cb)
def wo_reg(mu, cb):    return WREG0 + 4 * (8 + mu * 9 + cb)
def w1_reg(beta, cb):  return WREG0 + 4 * (8 + 36 + beta * 2 + cb)
def w2_reg(mu, cb):    return WREG0 + 4 * (8 + 72 + mu * 9 + cb)
SCR = 0
L_WQ = 10240
L_W1L = L_WQ + 4 * 28672
L_W2X = L_W1L + 4 * 5120
assert L_W2X + 18 * 1024 == 163840
S_WS = 4; S_SRD = 8; S_OUT = 12
S_TAG, S_W, S_C, S_STEP = 16, 17, 18, 19
S_PART, S_YP1, S_YP2, S_X1, S_X2, S_QO, S_B, S_L, S_FAST, S_SPIN = 20, 21, 22, 23, 24, 25, 26, 27, 28, 29
S_MG1, S_MODD, S_ML36, S_MMU2, S_MGP = 30, 32, 34, 36, 38
S_T = list(range(40, 56))
S_EX = 56
S_P = 60
S_M7 = 76
S_XCC = 79
S_CST = 80
S_DBG = 80
S_EPOCH = 99
S_ML32 = 100
S_TL = 97
OOB = 0x7f000000

class Cap:
    def __init__(self): self.l = []
    def __call__(self, t): self.l.append(t)

def weave(A, main, fill, per=1):
    fill = list(fill)
    for m in main:
        A(m)
        for _ in range(per):
            if fill: A(fill.pop(0))
    for f in fill: A(f)

class LG:
    def __init__(self, A): self.A = A; self.n = 0; self.done = 0
    def issue(self, t): self.A(t); self.n += 1; return self.n - 1
    def count(self): self.n += 1; return self.n - 1
    def wait_text(self, idx):
        if idx < self.done: return None
        k = self.n - 1 - idx; self.done = idx + 1
        return "s_waitcnt lgkmcnt(%d)" % k
    def wait(self, idx):
        t = self.wait_text(idx)
        if t: self.A(t)

def srd(A, base, ptr, size):
    A("s_mov_b32 s%d, s%d" % (base, ptr))
    A("s_and_b32 s%d, s%d, 0xffff" % (base + 1, ptr + 1))
    A("s_mov_b32 s%d, 0x%x" % (base + 2, size))
    A("s_mov_b32 s%d, 0x00020000" % (base + 3))

def bf16r(A, d, s):
    A("v_cvt_pk_bf16_f32 v%d, v%d, v%d" % (d, s, s))
    A("v_and_b32 v%d, 0xffff0000, v%d" % (d, d))

def poll(A, issue, check, between=None, sleep=0):
    ok = newlab("ok"); retry = newlab("rt")
    issue()
    if between: between()
    A("s_waitcnt vmcnt(0)")
    check()
    A.branch("s_cbranch_vccz %s" % ok)
    A("s_mov_b32 s%d, 0x2000" % S_SPIN)
    A.label(retry)
    if sleep: A("s_sleep %d" % sleep)
    issue()
    A("s_waitcnt vmcnt(0)")
    check()
    A("s_sub_u32 s%d, s%d, 1" % (S_SPIN, S_SPIN))
    A.branch("s_cbranch_scc1 %s" % ok)
    A.branch("s_cbranch_vccnz %s" % retry)
    A.label(ok)

def tagcheck(A, regs, t0, t1, stag=None):
    stag = S_TL if stag is None else stag
    regs = list(regs)
    def fold(op3, op2, dst):
        r = regs[:]
        A("%s v%d, v%d, v%d, v%d" % (op3, dst, r[0], r[1], r[2])); r = r[3:]
        while len(r) >= 2:
            A("%s v%d, v%d, v%d, v%d" % (op3, dst, dst, r[0], r[1])); r = r[2:]
        if r: A("%s v%d, v%d, v%d" % (op2, dst, dst, r[0]))
    c1, c2 = Cap(), Cap()
    A0 = A
    A = c1; fold("v_min3_u32", "v_min_u32", t0)
    A = c2; fold("v_max3_u32", "v_max_u32", t1)
    A = A0
    weave(A, c1.l, c2.l)
    A("v_cmp_ne_u32 vcc, s%d, v%d" % (stag, t0))
    A("v_cmp_ne_u32 s[%d:%d], s%d, v%d" % (S_EX, S_EX + 1, stag, t1))
    A("s_or_b64 vcc, vcc, s[%d:%d]" % (S_EX, S_EX + 1))

def store_mode(A, texts):
    slow = newlab("slow"); done = newlab("sdone")
    A("s_cmp_eq_u32 s%d, 1" % S_FAST)
    A("s_cbranch_scc0 %s" % slow)
    for t in texts: A(t)
    A("s_branch %s" % done)
    A.lines.append(slow + ":")
    for t in texts: A(t + " sc1")
    A.lines.append(done + ":")

def xrow_allreduce(A, z, t):
    A("v_mov_b32 v%d, v%d" % (t, z))
    A("v_permlane16_swap_b32 v%d, v%d" % (z, t))
    A("v_add_f32 v%d, v%d, v%d" % (z, z, t))
    A("v_mov_b32 v%d, v%d" % (t, z))
    A("v_permlane32_swap_b32 v%d, v%d" % (z, t))
    A("v_add_f32 v%d, v%d, v%d" % (z, z, t))

def parity_allreduce(A, z, t):
    for sh in (2, 4, 8):
        A("v_add_f32_dpp v%d, v%d, v%d row_ror:%d row_mask:0xf bank_mask:0xf" % (z, z, z, sh))
    xrow_allreduce(A, z, t)

def mfma_t(D, a, b, first):
    return "v_mfma_f32_16x16x32_bf16 %s, %s, %s, %s" % (vr(D, 4), vr(a, 4), vr(b, 4), "0" if first else vr(D, 4))

def zero_b(A, lo, hi):
    for r in range(lo, hi): A("v_mov_b32 v%d, 0" % r)

def cap_build(B, Y, mu):
    c = Cap(); build_b(c, B, Y, mu); return c.l

def ln_tail(A, z, xs, yk, mean, ex2, fill=()):
    A("v_mov_b32_dpp v%d, v%d %s" % (mean, z, qp([0, 0, 2, 2])))
    A("v_mov_b32_dpp v%d, v%d %s" % (ex2, z, qp([1, 1, 3, 3])))
    A("v_mul_f32 v%d, 0x%x, v%d" % (mean, f2u(1.0 / 576), mean))
    A("v_mul_f32 v%d, 0x%x, v%d" % (ex2, f2u(1.0 / 576), ex2))
    A("v_fma_f32 v%d, -v%d, v%d, v%d" % (ex2, mean, mean, ex2))
    c1, c2 = Cap(), Cap()
    c1("v_max_f32 v%d, 0, v%d" % (ex2, ex2))
    bf16r(c1, ex2, ex2)
    c1("v_add_f32 v%d, 0x%x, v%d" % (ex2, f2u(1e-5), ex2))
    bf16r(c1, ex2, ex2)
    c1("v_sqrt_f32 v%d, v%d" % (ex2, ex2))
    bf16r(c1, ex2, ex2)
    c1("v_rcp_f32 v%d, v%d" % (ex2, ex2))
    bf16r(c2, mean, mean)
    for x in xs: c2("v_sub_f32 v%d, v%d, v%d" % (x, x, mean))
    for x in xs: c2("v_cvt_pk_bf16_f32 v%d, v%d, v%d" % (x, x, x))
    for x in xs: c2("v_and_b32 v%d, 0xffff0000, v%d" % (x, x))
    weave(A, c1.l, c2.l, per=2)
    for x in xs: A("v_mul_f32 v%d, v%d, v%d" % (x, x, ex2))
    for x in xs: A("v_cvt_pk_bf16_f32 v%d, v%d, v%d" % (x, x, x))
    for x, y in zip(xs, yk): A("v_and_b32 v%d, v%d, v%d" % (y, x, V_HALF))

def pubx(A, s_xoff):
    z, t, d = 30, 31, 32
    A("v_mul_f32 v%d, v%d, v%d" % (t, V_X, V_X))
    A("v_cndmask_b32_e64 v%d, v%d, v%d, s[%d:%d]" % (z, V_X, t, S_MODD, S_MODD + 1))
    A("v_cndmask_b32_e64 v%d, 0, v%d, s[%d:%d]" % (z, z, S_ML36, S_ML36 + 1))
    A("v_mov_b32 v%d, s%d" % (d + 1, S_TL))
    parity_allreduce(A, z, t)
    A("v_cndmask_b32_e64 v%d, v%d, v%d, s[%d:%d]" % (d, z, V_X, S_ML36, S_ML36 + 1))
    store_mode(A, ["buffer_store_dwordx2 %s, v%d, s[%d:%d], s%d offen" % (vr(d, 2), V_PX, S_WS, S_WS + 3, s_xoff)])

def gath_ln(A, s_xoff):
    G = 30; ST = 40
    sa, sb = S_T[0], S_T[1]
    A("s_mul_i32 s%d, s%d, 1152" % (sa, S_W))
    A("s_add_u32 s%d, s%d, s%d" % (sa, sa, s_xoff))
    A("s_add_u32 s%d, s%d, 4608" % (sb, s_xoff))
    A("v_lshlrev_b32 v%d, 3, v%d" % (46, V_LANE))
    def issue():
        A("buffer_load_dwordx2 %s, v%d, s[%d:%d], s%d offen sc1" % (vr(ST, 2), 46, S_WS, S_WS + 3, sb))
        for k in range(5):
            A("buffer_load_dwordx2 %s, v%d, s[%d:%d], s%d offen offset:%d sc1" % (vr(G + 2 * k, 2), V_ROW8, S_WS, S_WS + 3, sa, 256 * k))
    def check():
        A("v_mov_b32 v%d, s%d" % (47, S_TL))
        A("v_cndmask_b32_e64 v%d, v%d, v%d, s[%d:%d]" % (43, 47, G + 9, S_MMU2, S_MMU2 + 1))
        tagcheck(A, [G + 1, G + 3, G + 5, G + 7, 43, ST + 1], 47, 42)
    poll(A, issue, check)
    if FINE.get("g", 0) == 0: fst(A, 5)
    FINE["g"] = FINE.get("g", 0) + 1
    parity_allreduce(A, ST, 47)
    ln_tail(A, ST, [G + 2 * k for k in range(5)], YK, 47, 41)

def qproj(A, s_qoff, YKs=YK, pre_barrier=True):
    D = [30, 34]; t1, t2, R0, R1 = 38, 39, 40, 41
    LT = [18, 22, 26]; va = 47
    if pre_barrier: A("s_barrier")
    A("s_mul_i32 s%d, s%d, 28672" % (S_T[0], S_W))
    A("s_add_u32 s%d, s%d, %d" % (S_T[0], S_T[0], L_WQ))
    A("v_lshlrev_b32 v%d, 4, v%d" % (va, V_LANE))
    A("v_add_u32 v%d, s%d, v%d" % (va, S_T[0], va))
    lg = LG(A); rd = {}
    nxt = [0]
    def rd_text():
        i = nxt[0]
        if i >= 28: return None
        nxt[0] += 1
        rd[i] = lg.count()
        return "ds_read_b128 %s, v%d offset:%d" % (vr(LT[i % 3], 4), va, i * 1024)
    for _ in range(3): A(rd_text())
    for t in cap_build(B0, YKs[0], 0): A(t)
    for beta in range(18):
        B = B0 + 4 * (beta & 1)
        nb = cap_build(B0 + 4 * ((beta + 1) & 1), YKs[(beta + 1) >> 2], (beta + 1) & 3) if beta < 17 else []
        for cb in range(2):
            if beta < 14:
                i = 2 * beta + cb
                lg.wait(rd[i]); a = LT[i % 3]
            else:
                a = wq_reg(beta, cb)
            A(mfma_t(D[cb], a, B, beta == 0))
            if beta < 14:
                t = rd_text()
                if t: A(t)
            for t in nb[2 * cb:2 * cb + 2]: A(t)
    c1, c2 = Cap(), Cap()
    g_reduce(c1, D[0], D[0], D[0] + 3, D[0], S_MG1)
    g_reduce(c2, D[1], D[1], D[1] + 3, D[1], S_MG1)
    A("v_lshrrev_b32 v%d, 1, v%d" % (va, V_N8))
    A("s_lshl_b32 s%d, s%d, 9" % (S_T[0], S_W))
    A("v_add_u32 v%d, s%d, v%d" % (va, S_T[0], va))
    weave(A, c1.l, c2.l)
    A("ds_write_b32 v%d, v%d offset:%d" % (va, D[0], SCR))
    A("ds_write_b32 v%d, v%d offset:%d" % (va, D[1], SCR + 256))
    A("v_lshlrev_b32 v%d, 3, v%d" % (va, V_LANE))
    A("v_mov_b32 v%d, s%d" % (39, S_TAG))
    A("s_waitcnt lgkmcnt(0)")
    A("s_barrier")
    skip = newlab("q_skip")
    A("s_cmp_lg_u32 s%d, 0" % S_W)
    A("s_cbranch_scc1 %s" % skip)
    for w in range(4):
        A("ds_read_b64 %s, v%d offset:%d" % (vr(30 + 2 * w, 2), va, SCR + w * 512))
    A("s_waitcnt lgkmcnt(2)")
    A("v_add_f32 v30, v30, v32")
    A("v_add_f32 v31, v31, v33")
    A("s_waitcnt lgkmcnt(0)")
    A("v_add_f32 v34, v34, v36")
    A("v_add_f32 v35, v35, v37")
    A("v_add_f32 v30, v30, v34")
    A("v_add_f32 v31, v31, v35")
    A("v_cvt_pk_bf16_f32 v38, v30, v31")
    A("buffer_store_dwordx2 v[38:39], v%d, s[%d:%d], s%d offen sc1" % (va, S_WS, S_WS + 3, s_qoff))
    A.label(skip)

def proj576(A, wreg, s_yp, ext=False):
    D = [30, 34, 38]
    LTX = 44; VAX = 42
    lg = LG(A)
    A("s_lshl_b32 s%d, s%d, 8" % (S_T[0], S_W))
    A("s_add_u32 m0, s%d, %d" % (S_T[0], SCR))
    rdx = {}
    def V(cb):
        c = Cap()
        d = D[cb % 3]
        g_reduce(c, d, d, d + 3, d, S_MG1)
        return c.l
    def wr(cb):
        lg.issue("ds_write_addtid_b32 v%d offset:%d" % (D[cb % 3], cb * 1024))
    for cb in range(9):
        d = D[cb % 3]
        fill = V(cb - 2) if cb >= 2 else []
        if ext:
            if cb == 0: A("s_waitcnt lgkmcnt(0)")
            else: lg.wait(rdx[cb])
            A(mfma_t(d, LTX, BX, True))
            if cb < 8:
                rdx[cb + 1] = lg.issue("ds_read_b128 %s, v%d offset:%d" % (vr(LTX, 4), VAX, (cb + 1) * 1024))
        for mu in range(4):
            A(mfma_t(d, wreg(mu, cb), B0 + 4 * mu, (mu == 0 and not ext)))
            for _ in range(2 if mu < 3 else 9):
                if fill: A(fill.pop(0))
        if cb >= 2: wr(cb - 2)
    for cb in (7, 8):
        for t in V(cb): A(t)
        wr(cb)
    if ext: fst(A, 3, 2)
    else:
        fst(A, 3, 3); cyc_stamp(A, 5)
    A("s_mul_i32 s%d, s%d, 4608" % (S_T[1], S_C))
    A("s_add_u32 s%d, s%d, s%d" % (S_T[1], S_T[1], s_yp))
    A("s_lshl_b32 s%d, s%d, 9" % (S_T[2], S_W))
    A("s_add_u32 s%d, s%d, s%d" % (S_T[1], S_T[1], S_T[2]))
    A("s_add_u32 s%d, s%d, 4096" % (S_T[2], S_T[1]))
    A("s_cmp_eq_u32 s%d, 0" % S_W)
    A("s_cselect_b32 s%d, s%d, 0x%x" % (S_T[2], S_T[2], OOB))
    A("s_lshl_b32 s%d, s%d, 10" % (S_T[0], S_W))
    A("s_waitcnt lgkmcnt(0)")
    A("s_barrier")
    A("s_add_u32 m0, s%d, %d" % (S_T[0], SCR))
    for blk in range(3):
        for w in range(4):
            A("ds_read_addtid_b32 v%d offset:%d" % (30 + 4 * blk + w, blk * 4096 + w * 256))
    for blk in range(3):
        A("s_waitcnt lgkmcnt(%d)" % (8 - 4 * blk))
        r = 30 + 4 * blk
        A("v_add_f32 v%d, v%d, v%d" % (r, r, r + 1))
        A("v_add_f32 v%d, v%d, v%d" % (r + 2, r + 2, r + 3))
        A("v_mov_b32 v%d, s%d" % (r + 1, S_TL))
        A("v_add_f32 v%d, v%d, v%d" % (r, r, r + 2))
    st = []
    for blk in range(3):
        r = 30 + 4 * blk
        so = S_T[2] if blk == 2 else S_T[1]
        st.append("buffer_store_dwordx2 %s, v%d, s[%d:%d], s%d offen%s" % (vr(r, 2), V_N8, S_WS, S_WS + 3, so, " offset:2048" if blk == 1 else ""))
    store_mode(A, st)

def oproj(A):
    T = 30; ST = 44; t = [26, 27, 28, 29]
    sa = S_T[0:4]
    zero_b(A, 18, 26)
    A("s_lshl_b32 s%d, s%d, 8" % (sa[0], S_W))
    A("s_add_u32 s%d, s%d, s%d" % (sa[0], sa[0], S_PART))
    for i in range(1, 4):
        A("s_add_u32 s%d, s%d, %d" % (sa[i], sa[0], 4096 * i))
    A("v_and_b32 v%d, 7, v%d" % (t[3], V_LANE))
    A("v_min_u32 v%d, 6, v%d" % (t[3], t[3]))
    A("v_lshlrev_b32 v%d, 11, v%d" % (t[3], t[3]))
    def issue():
        A("buffer_load_dwordx4 %s, v%d, s[%d:%d], s%d offen offset:1024 sc1" % (vr(ST, 4), t[3], S_WS, S_WS + 3, S_PART))
        for s in range(7):
            A("buffer_load_dwordx2 %s, v%d, s[%d:%d], s%d offen%s sc1" % (vr(T + 2 * s, 2), V_ROW8, S_WS, S_WS + 3, sa[s >> 1], " offset:2048" if (s & 1) else ""))
    def check():
        tagcheck(A, [T + 2 * s + 1 for s in range(7)] + [ST + 1, ST + 3], t[0], t[1], S_TAG)
    poll(A, issue, check)
    fst(A, 1, 3)
    m, Lr = ST, ST + 2
    A("v_mov_b32 v%d, 0xff800000" % t[0])
    A("v_cndmask_b32_e64 v%d, v%d, v%d, s[%d:%d]" % (m, m, t[0], S_M7, S_M7 + 1))
    A("v_max_f32_dpp v%d, v%d, v%d row_ror:1 row_mask:0xf bank_mask:0xf" % (t[1], m, m))
    for sh in (2, 4):
        A("v_max_f32_dpp v%d, v%d, v%d row_ror:%d row_mask:0xf bank_mask:0xf" % (t[1], t[1], t[1], sh))
    A("v_sub_f32 v%d, v%d, v%d" % (m, m, t[1]))
    A("v_exp_f32 v%d, v%d" % (m, m))
    A("v_mul_f32 v%d, v%d, v%d" % (Lr, m, Lr))
    o, o2 = t[2], t[0]
    c1, c2 = Cap(), Cap()
    for sh in (1, 2, 4):
        c1("v_add_f32_dpp v%d, v%d, v%d row_ror:%d row_mask:0xf bank_mask:0xf" % (Lr, Lr, Lr, sh))
    c1("v_rcp_f32 v%d, v%d" % (Lr, Lr))
    c2("v_mul_f32_dpp v%d, v%d, v%d row_newbcast:0 row_mask:0xf bank_mask:0xf" % (o, m, T))
    c2("v_mul_f32_dpp v%d, v%d, v%d row_newbcast:1 row_mask:0xf bank_mask:0xf" % (o2, m, T + 2))
    for s in range(2, 7):
        c2("v_fmac_f32_dpp v%d, v%d, v%d row_newbcast:%d row_mask:0xf bank_mask:0xf" % (o if s % 2 == 0 else o2, m, T + 2 * s, s))
    c2("v_add_f32 v%d, v%d, v%d" % (o, o, o2))
    weave(A, c1.l, c2.l, per=2)
    A("v_mul_f32 v%d, v%d, v%d" % (o, o, Lr))
    A("v_cvt_pk_bf16_f32 v%d, v%d, v%d" % (o, o, o))
    A("v_and_b32 v%d, v%d, v%d" % (o, o, V_HALF))
    for mu in range(4):
        build_b(A, B0 + 4 * mu, o, mu)
    fst(A, 2, 3)
    A("s_barrier")
    cyc_stamp(A, 4)
    proj576(A, wo_reg, S_YP1, ext=False)
    fst(A, 4, 3)

FINE = {"cfg": None}
def fst(A, k, lvl=1):
    cfg = FINE["cfg"]
    if cfg and cfg.get("fine") == lvl: chain_stamp(A, cfg, k)

def red(A, s_yp, bias, tail):
    L1 = 30; L2 = 34; a1, a2, w1a, w2a, t0, t1 = 36, 37, 38, 39, 40, 41
    so = S_T[0]
    A("s_mul_i32 s%d, s%d, %d" % (so, S_W, 8 * 4608))
    A("s_add_u32 s%d, s%d, s%d" % (so, so, s_yp))
    A("s_mul_i32 s%d, s%d, 144" % (S_T[1], S_C))
    A("s_add_u32 s%d, s%d, s%d" % (so, so, S_T[1]))
    A("v_lshrrev_b32 v%d, 3, v%d" % (t0, V_LANE))
    A("v_mul_u32_u24 v%d, 4608, v%d" % (a2, t0))
    A("v_and_b32 v%d, 7, v%d" % (t1, V_LANE))
    A("v_lshl_add_u32 v%d, v%d, 4, v%d" % (a1, t1, a2))
    A("v_and_b32 v%d, 1, v%d" % (47, V_LANE))
    A("v_lshl_add_u32 v%d, v%d, 3, v%d" % (a2, 47, a2))
    def issue():
        A("buffer_load_dwordx4 %s, v%d, s[%d:%d], s%d offen sc1" % (vr(L1, 4), a1, S_WS, S_WS + 3, so))
        A("buffer_load_dwordx2 %s, v%d, s[%d:%d], s%d offen offset:128 sc1" % (vr(L2, 2), a2, S_WS, S_WS + 3, so))
    def between():
        A("s_lshl_b32 s%d, s%d, 5" % (S_T[1], S_W))
        A("v_lshlrev_b32 v%d, 2, v%d" % (t0, t0))
        A("v_add_u32 v%d, s%d, v%d" % (t0, S_T[1], t0))
        A("v_mul_u32_u24 v%d, 288, v%d" % (w1a, t1))
        A("v_add_u32 v%d, v%d, v%d" % (w1a, w1a, t0))
        A("v_mul_u32_u24 v%d, 144, v%d" % (w2a, 47))
        A("v_add_u32 v%d, v%d, v%d" % (w2a, w2a, t0))
        A("v_lshrrev_b32 v%d, 1, v%d" % (46, V_LANE))
        A("v_mul_u32_u24 v%d, 144, v%d" % (46, 46))
        A("v_lshl_add_u32 v%d, v%d, 6, v%d" % (46, 47, 46))
        A("s_barrier")
    def check():
        tagcheck(A, [L1 + 1, L1 + 3, L2 + 1], 42, 43)
    poll(A, issue, check, between)
    if not bias: fst(A, 2)
    else: fst(A, 5, 2)
    A("ds_write_b32 v%d, v%d offset:%d" % (w1a, L1, SCR))
    A("ds_write_b32 v%d, v%d offset:%d" % (w1a, L1 + 2, SCR + 144))
    A("ds_write_b32 v%d, v%d offset:%d" % (w2a, L2, SCR + 16 * 144))
    A("s_waitcnt lgkmcnt(0)")
    A("s_barrier")
    if not bias: fst(A, 3)
    skip = newlab("red_skip")
    A("s_cmp_lg_u32 s%d, 0" % S_W)
    A("s_cbranch_scc1 %s" % skip)
    Q = 30
    for k in range(4):
        A("ds_read_b128 %s, v%d offset:%d" % (vr(Q + 4 * k, 4), 46, SCR + 16 * k))
    for k in range(4):
        A("s_waitcnt lgkmcnt(%d)" % (3 - k))
        r = Q + 4 * k
        A("v_add_f32 v%d, v%d, v%d" % (r, r, r + 1))
        A("v_add_f32 v%d, v%d, v%d" % (r + 2, r + 2, r + 3))
        A("v_add_f32 v%d, v%d, v%d" % (r, r, r + 2))
    A("v_add_f32 v%d, v%d, v%d" % (Q, Q, Q + 4))
    A("v_add_f32 v%d, v%d, v%d" % (Q + 8, Q + 8, Q + 12))
    A("v_add_f32 v%d, v%d, v%d" % (Q, Q, Q + 8))
    A("v_add_f32_dpp v%d, v%d, v%d %s" % (Q + 1, Q, Q, qp([1, 0, 3, 2])))
    bf16r(A, Q + 1, Q + 1)
    if bias:
        A("v_add_f32 v%d, v%d, v%d" % (Q + 1, Q + 1, V_B2))
        bf16r(A, Q + 1, Q + 1)
    A("v_add_f32 v%d, v%d, v%d" % (V_X, V_X, Q + 1))
    bf16r(A, V_X, V_X)
    tail(A)
    A.label(skip)
    if not bias: fst(A, 4)
    else: fst(A, 6, 2)

def mlp(A):
    D = [30, 34]; DL = 38; RL = 26
    LT = [18, 22]; va = 47
    A("s_barrier")
    A("s_mul_i32 s%d, s%d, 5120" % (S_T[0], S_W))
    A("s_add_u32 s%d, s%d, %d" % (S_T[0], S_T[0], L_W1L))
    A("v_lshlrev_b32 v%d, 4, v%d" % (va, V_LANE))
    A("v_add_u32 v%d, s%d, v%d" % (va, S_T[0], va))
    order = [b for q in range(4) for b in range(18) if (b & 3) == q]
    lg = LG(A); rd = {}; nxt = [0]
    def rd_issue():
        i = nxt[0]
        if i >= 18: return
        nxt[0] += 1
        rd[i] = lg.issue("ds_read_b128 %s, v%d offset:%d" % (vr(LT[i % 2], 4), va, (order[i] >> 2) * 1024))
    rd_issue(); rd_issue()
    def extract_left(q):
        return ["v_add_f32_dpp v%d, v%d, v%d %s" % (27, DL + 2, DL, qp([2, 3, 2, 3])),
                "v_add_f32_dpp v%d, v%d, v%d %s" % (28, DL + 1, DL + 3, qp([0, 1, 0, 1])),
                "v_cndmask_b32_e64 v%d, v%d, v%d, s[%d:%d]" % (27, 27, 28, S_MG1, S_MG1 + 1),
                "v_mov_b32_dpp v%d, v%d quad_perm:[0,1,2,3] row_mask:0x%x bank_mask:0xf" % (RL, 27, 1 << q)]
    for t in cap_build(B0, YK[order[0] >> 2], order[0] & 3): A(t)
    for n, beta in enumerate(order):
        B = B0 + 4 * (n & 1)
        q = beta & 3
        newq = (n == 0 or (order[n - 1] & 3) != q)
        nb = cap_build(B0 + 4 * ((n + 1) & 1), YK[order[n + 1] >> 2], order[n + 1] & 3) if n < 17 else []
        A(mfma_t(D[0], w1_reg(beta, 0), B, n == 0))
        for t in nb[0:2]: A(t)
        A(mfma_t(D[1], w1_reg(beta, 1), B, n == 0))
        for t in nb[2:4]: A(t)
        if newq and n > 0:
            for t in extract_left(order[n - 1] & 3): A(t)
        lg.wait(rd[n])
        A(mfma_t(DL, LT[n % 2], B, newq))
        rd_issue()
    fst(A, 1, 2)
    c1, c2 = Cap(), Cap()
    g_reduce(c1, D[0], D[0], D[0] + 3, D[0], S_MG1)
    g_reduce(c2, D[1], D[1], D[1] + 3, D[1], S_MG1)
    ua, ul = 47, 46
    A("v_lshrrev_b32 v%d, 1, v%d" % (ua, V_N8))
    A("s_mul_i32 s%d, s%d, 576" % (S_T[0], S_W))
    A("v_add_u32 v%d, s%d, v%d" % (ua, S_T[0], ua))
    weave(A, c1.l, c2.l)
    A("ds_write_b32 v%d, v%d offset:%d" % (ua, D[0], SCR))
    A("ds_write_b32 v%d, v%d offset:%d" % (ua, D[1], SCR + 256))
    A("v_bfe_u32 v%d, v%d, 1, 1" % (ul, V_LANE))
    A("v_lshlrev_b32 v%d, 5, v%d" % (ul, ul))
    A("v_bfe_u32 v%d, v%d, 2, 2" % (45, V_LANE))
    A("v_lshl_add_u32 v%d, v%d, 3, v%d" % (ul, 45, ul))
    A("v_and_b32 v%d, 1, v%d" % (45, V_LANE))
    A("v_lshl_add_u32 v%d, v%d, 2, v%d" % (ul, 45, ul))
    A("v_add_u32 v%d, s%d, v%d" % (ul, S_T[0], ul))
    for t in extract_left(3): A(t)
    xrow_allreduce(A, RL, 27)
    A("ds_write_b32 v%d, v%d offset:%d" % (ul, RL, SCR + 512))
    A("v_lshrrev_b32 v%d, 1, v%d" % (45, V_ROW8))
    A("s_lshl_b32 s%d, s%d, 7" % (S_T[0], S_W))
    A("v_add_u32 v%d, s%d, v%d" % (ua, S_T[0], 45))
    A("s_lshr_b32 s%d, s%d, 1" % (S_T[0], S_W))
    A("s_lshl_b32 s%d, s%d, 5" % (S_T[0], S_T[0]))
    A("v_add_u32 v%d, s%d, v%d" % (ul, S_T[0], 45))
    A("s_waitcnt lgkmcnt(0)")
    A("s_barrier")
    for w in range(4):
        A("ds_read_b32 v%d, v%d offset:%d" % (30 + w, ua, SCR + w * 576))
    for w in range(4):
        A("ds_read_b32 v%d, v%d offset:%d" % (34 + w, ul, SCR + 512 + w * 576))
    A("s_lshr_b32 s%d, s%d, 1" % (S_T[1], S_W))
    A("s_mul_i32 s%d, s%d, 9216" % (S_T[1], S_T[1]))
    A("s_add_u32 s%d, s%d, %d" % (S_T[1], S_T[1], L_W2X))
    A("v_lshlrev_b32 v42, 4, v%d" % V_LANE)
    A("v_add_u32 v42, s%d, v42" % S_T[1])
    A("ds_read_b128 v[44:47], v42")
    zero_b(A, 18, 30)
    k = math.sqrt(2.0 / math.pi); ca = -2.0 * k * math.log2(math.e); cb_ = ca * 0.044715
    chains = []
    for (r, bias, tt) in ((30, V_B1M, 38), (34, V_B1E, 40)):
        c = Cap()
        c("v_add_f32 v%d, v%d, v%d" % (r, r, r + 1))
        c("v_add_f32 v%d, v%d, v%d" % (r + 2, r + 2, r + 3))
        c("v_add_f32 v%d, v%d, v%d" % (r, r, r + 2))
        bf16r(c, r, r)
        c("v_add_f32 v%d, v%d, v%d" % (r, r, bias))
        bf16r(c, r, r)
        c("v_mul_f32 v%d, v%d, v%d" % (tt, r, r))
        c("v_mov_b32 v%d, 0x%x" % (tt + 1, f2u(ca)))
        c("v_fmac_f32 v%d, 0x%x, v%d" % (tt + 1, f2u(cb_), tt))
        c("v_mul_f32 v%d, v%d, v%d" % (tt + 1, tt + 1, r))
        c("v_exp_f32 v%d, v%d" % (tt + 1, tt + 1))
        c("v_add_f32 v%d, 1.0, v%d" % (tt + 1, tt + 1))
        c("v_rcp_f32 v%d, v%d" % (tt + 1, tt + 1))
        c("v_mul_f32 v%d, v%d, v%d" % (r, r, tt + 1))
        c("v_cvt_pk_bf16_f32 v%d, v%d, v%d" % (r, r, r))
        c("v_and_b32 v%d, v%d, v%d" % (r, r, V_HALF))
        chains.append(c.l)
    chains[1].append("v_cndmask_b32_e64 v34, 0, v34, s[%d:%d]" % (S_MGP, S_MGP + 1))
    A("s_waitcnt lgkmcnt(1)")
    A("s_barrier")
    weave(A, chains[0], chains[1])
    for mu in range(4):
        build_b(A, B0 + 4 * mu, 30, mu)
    build_b(A, BX, 34, 0)
    fst(A, 2, 2)
    proj576(A, w2_reg, S_YP2, ext=True)

class WLoader:
    VOFF = 26; TT = (27, 28)
    def __init__(self, A):
        self.A = A; self.list = []; self.pos = 0; self.cur_srd = None
    def add(self, mat, kind, sbase, off, dest):
        self.list.append((mat, kind, sbase, off, dest))
    def voff(self, kind):
        A = self.A; v = self.VOFF; t0, t1 = self.TT
        if kind == "L":
            A("v_bfe_u32 v%d, v0, 2, 2" % t0)
            A("v_lshlrev_b32 v%d, 3, v%d" % (t0, t0))
            A("v_lshrrev_b32 v%d, 4, v0" % t1)
            A("v_lshl_add_u32 v%d, v%d, 1, v%d" % (t0, t1, t0))
            A("v_bfe_u32 v%d, v0, 1, 1" % t1)
            A("v_add_u32 v%d, v%d, v%d" % (t0, t0, t1))
            A("v_mul_u32_u24 v%d, 9216, v%d" % (v, t0))
            A("v_and_b32 v%d, 1, v0" % t1)
            A("v_lshl_add_u32 v%d, v%d, 4, v%d" % (v, t1, v))
        else:
            A("v_lshrrev_b32 v%d, 4, v0" % t0)
            A("v_bfe_u32 v%d, v0, 3, 1" % t1)
            A("v_lshl_add_u32 v%d, v%d, 1, v%d" % (t0, t0, t1))
            A("v_mul_u32_u24 v%d, %d, v%d" % (v, kind, t0))
            A("v_and_b32 v%d, 7, v0" % t1)
            A("v_lshl_add_u32 v%d, v%d, 4, v%d" % (v, t1, v))
    def issue(self, n):
        A = self.A
        sizes = {"wq": (S_P + 2, 4718592), "wo": (S_P + 4, 4718592), "w1": (S_P + 6, 5308416), "w2": (S_P + 10, 5308416)}
        curk = None
        for _ in range(n):
            if self.pos >= len(self.list): return
            mat, kind, sbase, off, dest = self.list[self.pos]; self.pos += 1
            if mat != self.cur_srd:
                srd(A, S_SRD, *sizes[mat]); self.cur_srd = mat
            if kind != curk:
                self.voff(kind); curk = kind
            if dest[0] == "r":
                A("s_add_u32 s%d, s%d, 0x%x" % (S_T[8], sbase, off))
                A("buffer_load_dwordx4 %s, v%d, s[%d:%d], s%d offen nt" % (vr(dest[1], 4), self.VOFF, S_SRD, S_SRD + 3, S_T[8]))
            else:
                A("s_add_u32 m0, s%d, 0x%x" % (dest[1], dest[2]))
                A("s_add_u32 s%d, s%d, 0x%x" % (S_T[8], sbase, off))
                A("buffer_load_dwordx4 v%d, s[%d:%d], s%d offen%s lds" % (self.VOFF, S_SRD, S_SRD + 3, S_T[8], "" if kind == "L" else " nt"))
    def left(self): return len(self.list) - self.pos


def chain_stamp(A, cfg, k):
    if not cfg.get("stamps"): return
    A("s_memrealtime s[%d:%d]" % (S_EX, S_EX + 1))
    A("s_waitcnt lgkmcnt(0)")
    A("s_mov_b32 s%d, s%d" % (S_CST + k, S_EX))

def cyc_stamp(A, k):
    cfg = FINE["cfg"]
    if cfg and cfg.get("fine") == 4:
        A("s_memtime s[%d:%d]" % (S_EX, S_EX + 1))
        A("s_waitcnt lgkmcnt(0)")
        A("s_mov_b32 s%d, s%d" % (S_CST + k, S_EX))

def stamp_store(A, base, shift, nst, first, extra_off=None):
    A("s_lshl_b32 s%d, s2, 2" % S_T[0])
    A("s_add_u32 s%d, s%d, s%d" % (S_T[0], S_T[0], S_W))
    A("s_lshl_b32 s%d, s%d, %d" % (S_T[0], S_T[0], shift))
    if extra_off: extra_off()
    A("s_add_u32 s%d, s%d, 0x%x" % (S_T[0], S_T[0], base))
    A("v_mov_b32 v30, 0")
    for k in range(nst):
        A("v_mov_b32 v31, s%d" % (first + k))
        A("buffer_store_dword v31, v30, s[%d:%d], s%d offen offset:%d" % (S_WS, S_WS + 3, S_T[0], 4 * k))
        A("s_nop 1")

def gen_chain(A, cfg):
    A.comment("chain setup")
    A("s_lshr_b32 s%d, s2, 3" % S_C)
    for i, off in enumerate((0, 24, 32, 48, 56, 64, 72, 80)):
        A("s_load_dwordx2 s[%d:%d], s[0:1], %d" % (S_P + 2 * i, S_P + 2 * i + 1, off))
    def m64(s, v):
        A("s_mov_b32 s%d, 0x%x" % (s, v & 0xffffffff)); A("s_mov_b32 s%d, 0x%x" % (s + 1, (v >> 32) & 0xffffffff))
    t0, t1, t2, t3 = 30, 31, 32, 33
    A("v_bfe_u32 v%d, v0, 2, 2" % t0)
    A("v_lshlrev_b32 v%d, 3, v%d" % (V_ROW8, t0))
    A("v_lshrrev_b32 v%d, 4, v0" % t0)
    A("v_lshl_add_u32 v%d, v%d, 1, v%d" % (V_ROW8, t0, V_ROW8))
    A("v_bfe_u32 v%d, v0, 1, 1" % t0)
    A("v_add_u32 v%d, v%d, v%d" % (V_ROW8, V_ROW8, t0))
    A("v_lshlrev_b32 v%d, 3, v%d" % (V_ROW8, V_ROW8))
    SQ, SO, S1, S2, S2X, LQ, L1L = S_T[9:16]
    L2X = 78; S1L = 96
    A("s_mul_i32 s%d, s%d, %d" % (SQ, S_W, 144 * 8192))
    A("s_lshl_b32 s%d, s%d, 8" % (S_T[0], S_C))
    A("s_add_u32 s%d, s%d, s%d" % (SQ, SQ, S_T[0]))
    A("s_mul_i32 s%d, s%d, 28672" % (LQ, S_W))
    A("s_add_u32 s%d, s%d, %d" % (LQ, LQ, L_WQ))
    A("s_waitcnt lgkmcnt(0)")
    srd(A, S_OUT, S_P, 2304)
    FL = {1: 30, 0: 35}; YL = {1: 10, 0: 15}
    A("v_lshlrev_b32 v20, 2, v0")
    A("v_lshrrev_b32 v21, 2, v%d" % V_ROW8)
    A("s_mul_i32 s%d, s%d, 288" % (S_T[1], S_W))
    for b in (1, 0):
        for k in range(5):
            A("buffer_load_dword v%d, v20, s[%d:%d], 0 offen offset:%d" % (FL[b] + k, S_OUT, S_OUT + 3, b * 1152 + 256 * k))
        for k in range(5):
            A("buffer_load_ushort v%d, v21, s[%d:%d], s%d offen offset:%d" % (YL[b] + k, S_OUT, S_OUT + 3, S_T[1], b * 1152 + 64 * k))
    WL = WLoader(A)
    for beta in range(18):
        for cb in range(2):
            WL.add("wq", 8192, SQ, beta * 65536 + cb * 128, ("l", LQ, (2 * beta + cb) * 1024) if beta < 14 else ("r", wq_reg(beta, cb)))
    for mu in range(4):
        for cb in range(9):
            WL.add("wo", 1152, SO, mu * 8 * 1152 + cb * 128, ("r", wo_reg(mu, cb)))
    for beta in range(18):
        for cb in range(2):
            WL.add("w1", 9216, S1, beta * 8 * 9216 + cb * 128, ("r", w1_reg(beta, cb)))
    for i in range(5):
        WL.add("w1", "L", S1L, i * 32 * 9216, ("l", L1L, i * 1024))
    for mu in range(4):
        for cb in range(9):
            WL.add("w2", 1152, S2, mu * 8 * 1152 + cb * 128, ("r", w2_reg(mu, cb)))
    for j in range(4):
        WL.add("w2", 1152, S2X, j * 128, ("l", L2X, j * 1024))
    ist = lambda k: chain_stamp(A, cfg, 8 + k)
    ist(0)
    WL.issue(36)
    npf = 0
    if cfg.get("pf_chain"):
        npf = cfg["code_prefetch"](A, "L_chain", "L_end", cfg["pf_chain"], 508, 20)
    m64(S_MG1, 0xcccccccccccccccc); m64(S_MODD, 0xaaaaaaaaaaaaaaaa); m64(S_ML36, (1 << 36) - 1)
    m64(S_MMU2, 0x00ff00ff00ff00ff); m64(S_M7, 0x8080808080808080); m64(S_ML32, 0xffffffff)
    A("s_and_b32 s%d, s%d, 1" % (S_T[0], S_W))
    A("s_cmp_eq_u32 s%d, 1" % S_T[0])
    A("s_mov_b32 s%d, 0x33333333" % S_MGP)
    A("s_cselect_b32 s%d, 0xcccccccc, s%d" % (S_MGP, S_MGP))
    A("s_mov_b32 s%d, s%d" % (S_MGP + 1, S_MGP))
    A("s_mov_b32 s%d, 0" % S_FAST)
    A("s_mul_i32 s%d, s%d, %d" % (SO, S_C, 128 * 1152))
    A("s_mul_i32 s%d, s%d, %d" % (S_T[0], S_W, 32 * 1152))
    A("s_add_u32 s%d, s%d, s%d" % (SO, SO, S_T[0]))
    A("s_mul_i32 s%d, s%d, %d" % (S1, S_W, 144 * 9216))
    A("s_lshl_b32 s%d, s%d, 5" % (S_T[1], S_C))
    A("s_add_u32 s%d, s%d, s%d" % (S1L, S1, S_T[1]))
    A("s_add_u32 s%d, s%d, 8192" % (S1L, S1L))
    A("s_lshl_b32 s%d, s%d, 8" % (S_T[1], S_C))
    A("s_add_u32 s%d, s%d, s%d" % (S1, S1, S_T[1]))
    A("s_mul_i32 s%d, s%d, %d" % (S2, S_C, 128 * 1152))
    A("s_lshr_b32 s%d, s%d, 1" % (S_T[1], S_W))
    A("s_mul_i32 s%d, s%d, %d" % (S2X, S_T[1], 8 * 1152))
    A("s_mul_i32 s%d, s%d, %d" % (S_T[2], S_C, 16 * 1152))
    A("s_add_u32 s%d, s%d, s%d" % (S2X, S2X, S_T[2]))
    A("s_add_u32 s%d, s%d, %d" % (S2X, S2X, 4096 * 1152))
    A("s_add_u32 s%d, s%d, s%d" % (S2, S2, S_T[0]))
    A("s_mul_i32 s%d, s%d, 5120" % (L1L, S_W))
    A("s_add_u32 s%d, s%d, %d" % (L1L, L1L, L_W1L))
    A("s_mul_i32 s%d, s%d, 9216" % (L2X, S_T[1]))
    A("s_add_u32 s%d, s%d, %d" % (L2X, L2X, L_W2X))
    A("s_and_b32 s%d, s%d, 1" % (S_T[1], S_W))
    A("s_mul_i32 s%d, s%d, %d" % (S_T[2], S_T[1], 5 * 1024))
    A("s_add_u32 s%d, s%d, s%d" % (L2X, L2X, S_T[2]))
    A("s_mul_i32 s%d, s%d, %d" % (S_T[2], S_T[1], 5 * 128))
    A("s_add_u32 s%d, s%d, s%d" % (S2X, S2X, S_T[2]))
    A("v_and_b32 v22, 1, v0")
    A("v_lshlrev_b32 v22, 4, v22")
    A("v_mov_b32 v23, 0xffff")
    A("v_lshlrev_b32 v%d, v22, v23" % V_HALF)
    A("v_bfe_u32 v22, v0, 4, 1")
    A("v_lshlrev_b32 v%d, 5, v22" % V_N8)
    A("v_bfe_u32 v22, v0, 1, 1")
    A("v_lshl_add_u32 v%d, v22, 4, v%d" % (V_N8, V_N8))
    A("v_lshrrev_b32 v22, 5, v0")
    A("v_lshl_add_u32 v%d, v22, 3, v%d" % (V_N8, V_N8))
    A("v_bfe_u32 v22, v0, 2, 2")
    A("v_lshl_add_u32 v%d, v22, 1, v%d" % (V_N8, V_N8))
    A("v_and_b32 v22, 1, v0")
    A("v_add_u32 v%d, v%d, v22" % (V_N8, V_N8))
    A("v_lshlrev_b32 v%d, 3, v%d" % (V_N8, V_N8))
    A("s_mov_b32 s%d, s%d" % (S_EPOCH, S_TAG))
    A("s_mul_i32 s%d, s%d, 0x%x" % (S_TAG, S_TAG, HASH_MUL))
    A("s_add_u32 s%d, s%d, 0x%x" % (S_TAG, S_TAG, HASH_ADD))
    A("s_getreg_b32 s%d, hwreg(HW_REG_XCC_ID)" % S_T[0])
    A("s_and_b32 s%d, s%d, 15" % (S_T[0], S_T[0]))
    A("s_mov_b32 s%d, s%d" % (S_XCC, S_T[0]))
    A("v_mov_b32 v22, s%d" % S_T[0])
    A("v_mov_b32 v23, s%d" % S_TAG)
    A("s_lshl_b32 s%d, s%d, 3" % (S_T[0], S_C))
    A("s_add_u32 s%d, s%d, 0x%x" % (S_T[0], S_T[0], OFF_XC))
    A("v_mov_b32 v24, 0")
    A("buffer_store_dwordx2 v[22:23], v24, s[%d:%d], s%d offen sc1" % (S_WS, S_WS + 3, S_T[0]))
    A("s_waitcnt vmcnt(%d)" % (36 + npf + 1))
    ist(1)
    YKB = {1: YK, 0: [5, 6, 7, 8, 9]}
    for b in (1, 0):
        f = FL[b]; sx, sq, t = 40, 41, 47
        A("v_cndmask_b32_e64 v%d, 0, v%d, s[%d:%d]" % (f + 4, f + 4, S_ML32, S_ML32 + 1))
        for k in range(5):
            A("v_lshlrev_b32 v%d, 16, v%d" % (t, f + k))
            A("v_and_b32 v%d, 0xffff0000, v%d" % (f + k, f + k))
            if k == 0:
                A("v_add_f32 v%d, v%d, v%d" % (sx, t, f + k))
                A("v_mul_f32 v%d, v%d, v%d" % (sq, t, t))
            else:
                A("v_add_f32 v%d, v%d, v%d" % (sx, sx, t))
                A("v_fmac_f32 v%d, v%d, v%d" % (sq, t, t))
                A("v_add_f32 v%d, v%d, v%d" % (sx, sx, f + k))
            A("v_fmac_f32 v%d, v%d, v%d" % (sq, f + k, f + k))
        A("v_add_f32_dpp v%d, v%d, v%d %s" % (sx, sx, sx, qp([1, 0, 3, 2])))
        A("v_add_f32_dpp v%d, v%d, v%d %s" % (sq, sq, sq, qp([1, 0, 3, 2])))
        A("v_cndmask_b32_e64 v%d, v%d, v%d, s[%d:%d]" % (sx, sx, sq, S_MODD, S_MODD + 1))
        parity_allreduce(A, sx, t)
        for k in range(5):
            A("v_lshlrev_b32 v%d, 16, v%d" % (YL[b] + k, YL[b] + k))
        ln_tail(A, sx, [YL[b] + k for k in range(5)], YKB[b], 41, 47)
    WL.issue(20)
    zero_b(A, B0, B0 + 8)
    A("s_waitcnt vmcnt(%d)" % (20 + npf + 1))
    ist(2)
    for b in (1, 0):
        A("s_lshl_b32 s%d, s%d, 9" % (S_QO, S_C))
        A("s_add_u32 s%d, s%d, 0x%x" % (S_QO, S_QO, OFF_Q + b * 16384))
        qproj(A, S_QO, YKB[b], pre_barrier=(b == 0))
        ist(3 if b == 1 else 4)
        if b == 1:
            A("s_waitcnt vmcnt(20)")
            WL.issue(30)
    srd(A, S_OUT, S_P, 2304)
    A("v_lshrrev_b32 v%d, 1, v0" % t0)
    A("s_mul_i32 s%d, s%d, 18" % (S_T[1], S_C))
    A("v_add_u32 v%d, s%d, v%d" % (t0, S_T[1], t0))
    A("v_lshlrev_b32 v%d, 1, v%d" % (t0, t0))
    A("buffer_load_ushort v%d, v%d, s[%d:%d], 0 offen offset:1152" % (V_X, t0, S_OUT, S_OUT + 3))
    A("buffer_load_ushort v%d, v%d, s[%d:%d], 0 offen" % (V_XO, t0, S_OUT, S_OUT + 3))
    srd(A, S_SRD, S_P + 12, 1152)
    A("buffer_load_ushort v%d, v%d, s[%d:%d], 0 offen" % (V_B2, t0, S_SRD, S_SRD + 3))
    A("v_lshrrev_b32 v%d, 2, v%d" % (t1, V_ROW8))
    A("s_lshl_b32 s%d, s%d, 8" % (S_T[1], S_C))
    A("s_lshl_b32 s%d, s%d, 6" % (S_T[2], S_W))
    A("s_add_u32 s%d, s%d, s%d" % (S_T[1], S_T[1], S_T[2]))
    A("s_lshl_b32 s%d, s%d, 5" % (S_T[2], S_C))
    A("s_lshr_b32 s%d, s%d, 1" % (S_T[3], S_W))
    A("s_lshl_b32 s%d, s%d, 4" % (S_T[3], S_T[3]))
    A("s_add_u32 s%d, s%d, s%d" % (S_T[2], S_T[2], S_T[3]))
    A("s_add_u32 s%d, s%d, 8192" % (S_T[2], S_T[2]))
    srd(A, S_SRD, S_P + 8, 9216)
    A("buffer_load_ushort v%d, v%d, s[%d:%d], s%d offen" % (V_B1M, t1, S_SRD, S_SRD + 3, S_T[1]))
    A("buffer_load_ushort v%d, v%d, s[%d:%d], s%d offen" % (V_B1E, t1, S_SRD, S_SRD + 3, S_T[2]))
    A("v_lshlrev_b32 v%d, 2, v%d" % (V_PX, t0))
    A("v_mov_b32 v%d, 0x%x" % (t2, OOB))
    A("v_cndmask_b32_e64 v%d, v%d, v%d, s[%d:%d]" % (V_PX, V_PX, t2, S_MODD, S_MODD + 1))
    A("v_cndmask_b32_e64 v%d, v%d, v%d, s[%d:%d]" % (V_PX, t2, V_PX, S_ML36, S_ML36 + 1))
    A("v_and_b32 v%d, 1, v0" % t3)
    A("s_lshl_b32 s%d, s%d, 1" % (S_T[1], S_C))
    A("v_add_u32 v%d, s%d, v%d" % (t3, S_T[1], t3))
    A("v_lshlrev_b32 v%d, 3, v%d" % (t3, t3))
    A("v_add_u32 v%d, 4608, v%d" % (t3, t3))
    A("v_and_b32 v%d, 62, v0" % t2)
    A("v_cmp_eq_u32 vcc, 40, v%d" % t2)
    A("v_cndmask_b32 v%d, v%d, v%d, vcc" % (V_PX, V_PX, t3))
    def xc_issue():
        A("v_and_b32 v34, 31, v0")
        A("v_lshlrev_b32 v34, 3, v34")
        A("s_mov_b32 s%d, 0x%x" % (S_T[0], OFF_XC))
        A("buffer_load_dwordx2 v[36:37], v34, s[%d:%d], s%d offen sc1" % (S_WS, S_WS + 3, S_T[0]))
    xc_issue()
    if cfg.get("pretouch", 1):
        A("s_lshl_b32 s%d, s%d, 2" % (S_T[0], S_C))
        A("s_add_u32 s%d, s%d, s%d" % (S_T[0], S_T[0], S_W))
        A("s_mul_i32 s%d, s%d, 2560" % (S_T[1], S_T[0]))
        A("s_add_u32 s%d, s%d, 0x%x" % (S_T[1], S_T[1], OFF_YP))
        A("v_lshlrev_b32 v35, 4, v0")
        for i in range(3):
            A("buffer_load_dwordx4 v[38:41], v35, s[%d:%d], s%d offen offset:%d" % (S_WS, S_WS + 3, S_T[1], min(1024 * i, 1536)))
        A("s_and_b32 s%d, s%d, 15" % (S_T[0], S_T[0]))
        A("s_lshl_b32 s%d, s%d, 10" % (S_T[0], S_T[0]))
        A("s_add_u32 s%d, s%d, 0x%x" % (S_T[0], S_T[0], OFF_X))
        A("buffer_load_dwordx4 v[38:41], v35, s[%d:%d], s%d offen" % (S_WS, S_WS + 3, S_T[0]))
    WL.cur_srd = None
    ist(5)
    win = cfg.get("w_win", 60)
    stepn = 30 if win >= 60 else 8
    while WL.left() > 0:
        A("s_waitcnt vmcnt(%d)" % (win - stepn))
        WL.issue(min(stepn, WL.left()))
    assert WL.cur_srd == "w2"
    sk = newlab("w2x")
    A("s_waitcnt vmcnt(40)")
    WL.voff(1152)
    A("s_and_b32 s%d, s%d, 1" % (S_T[0], S_W))
    A("s_cmp_eq_u32 s%d, 1" % S_T[0])
    A("s_cbranch_scc1 %s" % sk)
    A("s_add_u32 m0, s%d, 0x%x" % (L2X, 4 * 1024))
    A("s_add_u32 s%d, s%d, 0x%x" % (S_T[8], S2X, 4 * 128))
    A("buffer_load_dwordx4 v%d, s[%d:%d], s%d offen nt lds" % (WL.VOFF, S_SRD, S_SRD + 3, S_T[8]))
    A.label(sk)
    ist(6)
    A("s_waitcnt vmcnt(0)")
    for r in (V_X, V_XO, V_B1M, V_B2, V_B1E):
        A("v_lshlrev_b32 v%d, 16, v%d" % (r, r))
    srd(A, S_OUT, S_P + 14, 2304)
    okx = newlab("xok"); rtx = newlab("xrt")
    A("v_cmp_ne_u32 vcc, s%d, v37" % S_TAG)
    A.branch("s_cbranch_vccz %s" % okx)
    A("s_mov_b32 s%d, 0x2000" % S_SPIN)
    A.label(rtx)
    A("s_sleep 2")
    xc_issue()
    A("s_waitcnt vmcnt(0)")
    A("v_cmp_ne_u32 vcc, s%d, v37" % S_TAG)
    A("s_sub_u32 s%d, s%d, 1" % (S_SPIN, S_SPIN))
    A.branch("s_cbranch_scc1 %s" % okx)
    A.branch("s_cbranch_vccnz %s" % rtx)
    A.label(okx)
    A("v_cmp_ne_u32 vcc, s%d, v36" % S_XCC)
    A("s_cmp_eq_u64 vcc, 0")
    A("s_cselect_b32 s%d, %d, 0" % (S_FAST, 0 if cfg.get("force_slow") else 1))
    ist(7)
    if cfg.get("stamps"):
        A("s_lshl_b32 s%d, s%d, 8" % (S_CST + 8, S_XCC))
        A("s_or_b32 s%d, s%d, s%d" % (S_CST + 8, S_CST + 8, S_FAST))
        stamp_store(A, 0x780000, 5, 8, S_CST + 8)
    if cfg.get("dbgtime"):
        A("s_memrealtime s[%d:%d]" % (S_EX, S_EX + 1))
        A("s_waitcnt lgkmcnt(0)")
        A("s_mov_b32 s%d, s%d" % (S_DBG, S_EX))
    A("s_mov_b32 s%d, 0x%x" % (S_YP1, OFF_YP))
    A("s_mov_b32 s%d, 0x%x" % (S_YP2, OFF_YP + YP_STRIDE))
    A("s_mov_b32 s%d, 0x%x" % (S_X1, OFF_X))
    A("s_mov_b32 s%d, 0x%x" % (S_X2, OFF_X + X_STRIDE))
    A("s_mov_b32 s%d, 2" % S_STEP)
    A.label("L_ch_loop")
    A("s_lshr_b32 s%d, 0xd, s%d" % (S_B, S_STEP))
    A("s_and_b32 s%d, s%d, 1" % (S_B, S_B))
    A("s_lshr_b32 s%d, 0x28, s%d" % (S_L, S_STEP))
    A("s_and_b32 s%d, s%d, 1" % (S_L, S_L))
    A("s_lshl_b32 s%d, s%d, 1" % (S_T[0], S_L))
    A("s_add_u32 s%d, s%d, s%d" % (S_T[0], S_T[0], S_B))
    A("s_lshl_b32 s%d, s%d, 5" % (S_PART, S_T[0]))
    A("s_add_u32 s%d, s%d, s%d" % (S_PART, S_PART, S_C))
    A("s_lshl_b32 s%d, s%d, 14" % (S_PART, S_PART))
    A("s_add_u32 s%d, s%d, 0x%x" % (S_PART, S_PART, OFF_PART))
    A("s_add_u32 s%d, s%d, s%d" % (S_TL, S_TAG, S_STEP))
    A("s_lshl_b32 s%d, s%d, 14" % (S_QO, S_B))
    A("s_lshl_b32 s%d, s%d, 9" % (S_T[1], S_C))
    A("s_add_u32 s%d, s%d, s%d" % (S_QO, S_QO, S_T[1]))
    A("s_add_u32 s%d, s%d, 0x%x" % (S_QO, S_QO, OFF_Q + 2 * 16384))
    FINE["cfg"] = cfg
    st = (lambda k: None) if cfg.get("fine") else (lambda k: chain_stamp(A, cfg, k))
    if cfg.get("fine") == 4:
        pass
    st(0); fst(A, 0); fst(A, 0, 3)
    oproj(A)
    st(1); fst(A, 1)
    red(A, S_YP1, False, lambda A: pubx(A, S_X1))
    st(2)
    gath_ln(A, S_X1)
    st(3); fst(A, 6); fst(A, 0, 2); fst(A, 0, 4); cyc_stamp(A, 1)
    mlp(A)
    st(4); fst(A, 7); fst(A, 4, 2); fst(A, 2, 4); cyc_stamp(A, 3)
    def tail2(A):
        o = newlab("t2out"); d = newlab("t2done")
        A("s_cmp_eq_u32 s%d, 1" % S_L)
        A.branch("s_cbranch_scc1 %s" % o)
        pubx(A, S_X2)
        A.branch("s_branch %s" % d)
        A.label(o)
        if cfg.get("perturb"):
            A("s_cmp_eq_u32 s%d, 0" % S_C)
            A("s_cselect_b32 s%d, 0x%x, 0" % (S_T[0], f2u(float(cfg["perturb"]) / 1000.0)))
            A("v_add_f32 v30, s%d, v%d" % (S_T[0], V_X))
            A("v_lshrrev_b32 v30, 16, v30")
        else:
            A("v_lshrrev_b32 v30, 16, v%d" % V_X)
        A("v_lshrrev_b32 v31, 2, v%d" % V_PX)
        A("s_mul_i32 s%d, s%d, 1152" % (S_T[0], S_B))
        A("s_mov_b32 s%d, 0x55555555" % S_EX)
        A("s_mov_b32 s%d, 0x5" % (S_EX + 1))
        A("s_mov_b64 exec, s[%d:%d]" % (S_EX, S_EX + 1))
        A("buffer_store_short v30, v31, s[%d:%d], s%d offen" % (S_OUT, S_OUT + 3, S_T[0]))
        A("s_mov_b64 exec, -1")
        A.label(d)
    red(A, S_YP2, True, tail2)
    st(5)
    A("s_cmp_eq_u32 s%d, 1" % S_L)
    A.branch("s_cbranch_scc1 L_ch_next")
    gath_ln(A, S_X2)
    st(6)
    qproj(A, S_QO)
    st(7); fst(A, 7, 2)
    A.label("L_ch_next")
    A("s_cmp_eq_u32 s%d, 3" % S_STEP)
    A("s_cbranch_scc0 L_ch_noswap")
    A("v_swap_b32 v%d, v%d" % (V_X, V_XO))
    A.label("L_ch_noswap")
    if cfg.get("stamps"):
        def eo():
            A("s_sub_u32 s%d, s%d, 2" % (S_T[1], S_STEP))
            A("s_lshl_b32 s%d, s%d, 5" % (S_T[1], S_T[1]))
            A("s_add_u32 s%d, s%d, s%d" % (S_T[0], S_T[0], S_T[1]))
        stamp_store(A, 0x700000, 7, 8, S_CST, eo)
    if cfg.get("dbgtime"):
        A("s_memrealtime s[%d:%d]" % (S_EX, S_EX + 1))
        A("s_waitcnt lgkmcnt(0)")
        for k in range(2, 6):
            A("s_cmp_eq_u32 s%d, %d" % (S_STEP, k))
            A("s_cselect_b32 s%d, s%d, s%d" % (S_DBG + k - 1, S_EX, S_DBG + k - 1))
    A("s_add_u32 s%d, s%d, 1" % (S_STEP, S_STEP))
    A("s_cmp_lt_u32 s%d, 6" % S_STEP)
    A.branch("s_cbranch_scc1 L_ch_loop")
    A("s_or_b32 s%d, s%d, s%d" % (S_T[0], S_C, S_W))
    A("s_cmp_lg_u32 s%d, 0" % S_T[0])
    A.branch("s_cbranch_scc1 L_end")
    if cfg.get("dbgtime"):
        A("s_memrealtime s[%d:%d]" % (S_EX, S_EX + 1))
        A("s_load_dwordx2 s[%d:%d], s[0:1], 88" % (S_T[2], S_T[3]))
        A("s_waitcnt lgkmcnt(0)")
        srd(A, S_SRD, S_T[2], 256)
        A("s_sub_u32 s%d, s%d, s98" % (S_T[4], S_EX))
        A("v_mov_b32 v30, s%d" % S_T[4])
        A("v_mov_b32 v31, 0")
        A("buffer_store_dword v30, v31, s[%d:%d], 0 offen" % (S_SRD, S_SRD + 3))
        for k in range(6):
            A("s_sub_u32 s%d, s%d, s98" % (S_T[4], S_DBG + k))
            A("v_mov_b32 v30, s%d" % S_T[4])
            A("buffer_store_dword v30, v31, s[%d:%d], 0 offen offset:%d" % (S_SRD, S_SRD + 3, 4 * (k + 1)))
            A("s_nop 1")
    A("s_add_u32 s%d, s%d, 1" % (S_T[0], S_EPOCH))
    A("v_mov_b32 v30, s%d" % S_T[0])
    A("v_mov_b32 v31, 0")
    A("s_mov_b64 exec, 1")
    A("buffer_store_dword v30, v31, s[%d:%d], 0 offen" % (S_WS, S_WS + 3))
    A("s_waitcnt vmcnt(0)")
```

```python
from collections import deque
from emit import *
from layout import *

V_KOFF, V_VOFF, V_VOFF9, V_HALF, V_LDSRD, V_PUB, V_T7 = 1, 2, 3, 4, 5, 6, 7
R1 = 8
QB = R1
BV = [R1, R1 + 4]
DV = [R1 + 8, R1 + 12]
R2 = 24
DK = [R2, R2 + 4, R2 + 8]
YR = [R2, R2 + 1]
PQ = 28
TA, TB, TC, TD = 32, 33, 34, 35
SP = {1: 36, 0: 41}
LT = [46, 50, 54, 58]
V_X0, V_X1 = 62, 63
SLOT0 = 64
S_WS = 4; S_K = 8; S_V = 12
S_TAG, S_W, S_H, S_SUB = 16, 17, 18, 19
S_BASE = {0: 20, 1: 21}
S_O18 = {0: 22, 1: 23}
S_OT = [24, 25, 26, 27]
S_C = 28
S_SPIN = 29
S_MASK = [30, 32, 34, 36]
S_M18 = 38
S_MG1 = 40
S_M = {0: 42, 1: 43}
S_L = {0: 44, 1: 45}
S_Q = 46; S_P = 47
S_T0, S_T1 = 48, 49
S_EX = 50
S_T2 = 52
S_SC = 53
LDS_SCR = 0
LDS_STAT = 2048
LDS_SLOTS = 8192
NLDS = 38
NT = 19
TS = {"v": 16384}

class Sched:
    def __init__(self, A, cfg):
        self.A = A; self.cfg = cfg
        self.items = []
        self.fifo_n = 0
        self.done = 0
        self.lg_n = 0; self.lg_done = 0
        self.slot_of = {}; self.load_idx = {}
        self.soff_cache = {}
        self.soff_rr = 0
        self.nloads = 0
        self.load_count = {}
    def vm_issue(self, text):
        self.A(text); idx = self.fifo_n; self.fifo_n += 1; return idx
    def vm_wait(self, idx):
        if idx < self.done: return
        n = self.fifo_n - 1 - idx
        assert n <= 63, n
        self.A("s_waitcnt vmcnt(%d)" % n)
        self.done = idx + 1
    def vm_all_done(self):
        self.done = self.fifo_n
    def lg_issue(self, text):
        self.A(text); idx = self.lg_n; self.lg_n += 1; return idx
    def lg_wait(self, idx):
        if idx < self.lg_done: return
        n = self.lg_n - 1 - idx
        assert n <= 15, n
        self.A("s_waitcnt lgkmcnt(%d)" % n)
        self.lg_done = idx + 1
    def lg_all(self):
        if self.lg_done < self.lg_n:
            self.A("s_waitcnt lgkmcnt(0)")
        self.lg_done = self.lg_n
    def soff(self, b, tile, extra=0):
        key = (b, tile, extra)
        if key in self.soff_cache: return self.soff_cache[key]
        if tile == 18 and extra == 0: return S_O18[b]
        if tile == 0 and extra == 0: return S_BASE[b]
        r = S_OT[self.soff_rr % len(S_OT)]; self.soff_rr += 1
        for k in [k for k, v in self.soff_cache.items() if v == r]: del self.soff_cache[k]
        if tile == 18:
            self.A("s_add_u32 s%d, s%d, 0x%x" % (r, S_O18[b], extra))
        else:
            self.A("s_add_u32 s%d, s%d, 0x%x" % (r, S_BASE[b], tile * TS["v"] + extra))
        self.soff_cache[key] = r
        return r
    def emit_load(self, p, slot, pol):
        if p[1] == "K":
            b, _, j, m = p; tile = j; imm = m * 1024; voff = V_KOFF; srd = S_K
        else:
            b, _, pi, mu, cb = p; tile = 2 * pi; imm = mu * 1024 + cb * 128; srd = S_V
            voff = V_VOFF9 if pi == 9 else V_VOFF
        polx = (" " + pol) if pol else ""
        if slot[0] == "r":
            so = self.soff(b, tile)
            t = "buffer_load_dwordx4 %s, v%d, s[%d:%d], s%d offen%s%s" % (vr(slot[1], 4), voff, srd, srd + 3, so, (" offset:%d" % imm) if imm else "", polx)
        else:
            self.A("s_add_u32 m0, s%d, 0x%x" % (S_T2, slot[1] * 1024))
            so = self.soff(b, tile, imm)
            t = "buffer_load_dwordx4 v%d, s[%d:%d], s%d offen%s lds" % (voff, srd, srd + 3, so, polx)
        self.nloads += 1
        return self.vm_issue(t)

    def run(self):
        A = self.A; cfg = self.cfg; items = self.items
        uses = [i for i, it in enumerate(items) if it[0] == "use"]
        kept = set(); loadq = deque()
        for i in uses:
            _, p, keep, fn = items[i][:4]
            if p not in kept: loadq.append((i, p))
            if keep: kept.add(p)
            else: kept.discard(p)
        free = deque([("l", s) for s in range(cfg["nlds"])] + [("r", SLOT0 + 4 * s) for s in range(cfg["nreg"])])
        if cfg.get("reg_first"):
            free = deque([("r", SLOT0 + 4 * s) for s in range(cfg["nreg"])] + [("l", s) for s in range(cfg["nlds"])])
        temps = deque(LT)
        ldsread = {}
        state = {"cap": cfg["cap0"], "pol": cfg.get("pol", "nt")}
        for i_, it_ in enumerate(items):
            if it_[0] == "release":
                state["limit"] = i_
                n_ = cfg.get("gw_early", 0); j_ = i_
                while n_ > 0:
                    j_ += 1
                    if items[j_][0] == "use": n_ -= 1
                if j_ > i_: state["limit"] = j_ + 1
        def issue_loads():
            while loadq and free and (self.fifo_n - self.done) < state["cap"] and not state.get("hold") and (state.get("limit") is None or loadq[0][0] < state["limit"]):
                i, p = loadq[0]
                slot = None
                if cfg.get("pref", 1):
                    want = "l" if p[1] == "K" else "r"
                    for sl in free:
                        if sl[0] == want: slot = sl; break
                    if slot is None:
                        if p[1] == "V": break
                        slot = free[0]
                    free.remove(slot)
                else:
                    slot = free.popleft()
                loadq.popleft()
                self.slot_of[p] = slot
                pol = state["pol"]
                nth = self.load_count.get(p, 0); self.load_count[p] = nth + 1
                if cfg.get("polK0") is not None and p[0] == 0 and p[1] == "K" and nth == 0: pol = cfg["polK0"]
                if cfg.get("polK0r") is not None and p[0] == 0 and p[1] == "K" and nth == 1: pol = cfg["polK0r"]
                if cfg.get("l2k0") is not None and p[0] == 0 and p[1] == "K" and nth == 0 and p[2] >= cfg["l2k0"]: pol = ""
                if cfg.get("l2b1") and p[0] == 1 and nth == 0 and p not in self.keep1: pol = ""
                if cfg.get("polall") is not None: pol = cfg["polall"]
                if pol == "def": pol = ""
                self.load_idx[p] = self.emit_load(p, slot, pol)
                self.loaded_for[i] = True
        self.loaded_for = {}
        resident_use = {}
        LA = cfg.get("la", 3)
        def prefetch_lds(pos):
            cnt = 0
            for q in range(pos, min(pos + 8, len(uses))):
                ui = uses[q]
                if ui in ldsread:
                    cnt += 1; continue
                p = items[ui][1]
                if not (ui in self.loaded_for or self.kept_ok(ui)): break
                if self.slot_of[p][0] != "l": continue
                if cnt >= LA or not temps: break
                if any(items[x][0] == "code" and len(items[x]) > 2 and items[x][2] == "fence" for x in range(uses[pos], ui)): break
                self.vm_wait(self.load_idx[p])
                t = temps.popleft()
                li = self.lg_issue("ds_read_b128 %s, v%d offset:%d" % (vr(t, 4), V_LDSRD, self.slot_of[p][1] * 1024))
                ldsread[ui] = (t, li); cnt += 1
        lastkeep = {}
        self.keptset = set()
        self.kept_ok = lambda ui: items[ui][1] in self.keptset
        pos = 0
        for f in cfg.get("pre", []): f(self)
        issue_loads()
        for i, it in enumerate(items):
            if it[0] == "use":
                _, p, keep, fn = it[:4]
                assert (i in self.loaded_for) or (p in self.keptset), ("piece not loaded before use (deadlock)", i, p)
                prefetch_lds(pos)
                slot = self.slot_of[p]
                if slot[0] == "r":
                    self.vm_wait(self.load_idx[p])
                    fn(slot[1])
                else:
                    t, li = ldsread.pop(i)
                    self.lg_wait(li)
                    fn(t)
                    temps.append(t)
                if keep: self.keptset.add(p)
                else:
                    self.keptset.discard(p); free.append(slot)
                pos += 1
                issue_loads()
            elif it[0] == "code":
                it[1](self)
                issue_loads()
            elif it[0] == "drain":
                if self.fifo_n - self.done > it[1]:
                    self.vm_wait(self.fifo_n - 1 - it[1])
                issue_loads()
            elif it[0] == "hold":
                state["hold"] = True
            elif it[0] == "release":
                state["hold"] = False; state["limit"] = None
            elif it[0] == "code_nl":
                it[1](self)
            elif it[0] == "bgdrain":
                n = max(0, state["cap"] - cfg.get("dstep", 4))
                if loadq and free and (state.get("limit") is None or loadq[0][0] < state["limit"]) and self.fifo_n - self.done > n:
                    self.vm_wait(self.fifo_n - 1 - n)
                issue_loads()
            elif it[0] == "loadall":
                while loadq and free and (state.get("limit") is None or loadq[0][0] < state["limit"]):
                    if cfg.get("pref", 1) and loadq[0][1][1] == "V" and not any(sl[0] == "r" for sl in free): break
                    n = self.fifo_n - self.done
                    tgt = max(0, state["cap"] - cfg.get("dstep", 4))
                    if n > tgt:
                        self.vm_wait(self.fifo_n - 1 - tgt)
                    issue_loads()
            elif it[0] == "cap":
                state["cap"] = it[1]; issue_loads()
            elif it[0] == "pol":
                state["pol"] = it[1]
        assert not loadq

def gen_setup1(A, cfg):
    A.comment("attention setup (part 1: what the first loads need)")
    A("s_lshr_b32 s%d, s2, 3" % S_H)
    A("s_and_b32 s%d, s2, 7" % S_SUB)
    A("s_sub_u32 s%d, s%d, 1" % (S_SUB, S_SUB))
    if cfg.get("rotsub", 1):
        A("s_add_u32 s%d, s%d, s%d" % (S_SUB, S_SUB, S_H))
        A("s_mul_i32 s%d, s%d, 37" % (S_T0, S_SUB))
        A("s_lshr_b32 s%d, s%d, 8" % (S_T0, S_T0))
        A("s_mul_i32 s%d, s%d, 7" % (S_T0, S_T0))
        A("s_sub_u32 s%d, s%d, s%d" % (S_SUB, S_SUB, S_T0))
    if cfg.get("gil"):
        TS["v"] = 28 * 4096
        A("s_mul_i32 s%d, s%d, 7" % (S_T0, S_W))
        A("s_add_u32 s%d, s%d, s%d" % (S_T0, S_T0, S_SUB))
    else:
        TS["v"] = 16384
        A("s_mul_i32 s%d, s%d, 73" % (S_T0, S_SUB))
        A("s_add_u32 s%d, s%d, s%d" % (S_T0, S_T0, S_W))
    A("s_lshl_b32 s%d, s%d, 12" % (S_T0, S_T0))
    A("s_lshl_b32 s%d, s%d, 21" % (S_T1, S_H))
    A("s_add_u32 s%d, s%d, s%d" % (S_BASE[0], S_T0, S_T1))
    A("s_add_u32 s%d, s%d, 0x4000000" % (S_BASE[1], S_BASE[0]))
    A("s_mul_i32 s%d, s%d, %d" % (S_T2, S_W, NLDS * 1024))
    A("s_add_u32 s%d, s%d, %d" % (S_T2, S_T2, LDS_SLOTS))
    A("v_bfe_u32 v%d, v0, 2, 2" % TA)
    A("v_lshlrev_b32 v%d, 8, v%d" % (V_KOFF, TA))
    A("v_lshrrev_b32 v%d, 4, v0" % TB)
    A("v_lshl_add_u32 v%d, v%d, 6, v%d" % (V_KOFF, TB, V_KOFF))
    A("v_and_b32 v%d, 3, v0" % TC)
    A("v_lshl_add_u32 v%d, v%d, 4, v%d" % (V_KOFF, TC, V_KOFF))

def gen_setup2(A, cfg):
    A.comment("attention setup (part 2)")
    if cfg.get("gil"):
        A("s_mul_i32 s%d, s%d, 7" % (S_T0, S_W))
        A("s_add_u32 s%d, s%d, s%d" % (S_T0, S_T0, S_SUB))
        A("s_cmp_lt_u32 s%d, 8" % S_T0)
    else:
        A("s_cmp_eq_u32 s%d, 6" % S_SUB)
        A("s_cselect_b32 s%d, 2, 1" % S_T0)
        A("s_cmp_lt_u32 s%d, s%d" % (S_W, S_T0))
    A("s_cselect_b32 s%d, 1, 0" % S_T1)
    for b in (0, 1):
        A("s_add_u32 s%d, s%d, 0x%x" % (S_O18[b], S_BASE[b], 18 * TS["v"]))
        A("s_cmp_eq_u32 s%d, 1" % S_T1)
        A("s_cselect_b32 s%d, s%d, 0x80000000" % (S_O18[b], S_O18[b]))
    for u in range(4):
        A("s_mov_b32 s%d, 0x%x" % (S_MASK[u], 0x11111111 << u))
        A("s_mov_b32 s%d, 0x%x" % (S_MASK[u] + 1, 0x11111111 << u))
    A("s_cmp_eq_u32 s%d, 1" % S_T1)
    A("s_cselect_b32 s%d, 0x44444444, 0" % S_M18)
    A("s_mov_b32 s%d, s%d" % (S_M18 + 1, S_M18))
    A("s_mov_b32 s%d, 0xcccccccc" % S_MG1)
    A("s_mov_b32 s%d, 0xcccccccc" % (S_MG1 + 1))
    SM["mimic"] = cfg.get("mimic", 0)
    A("s_mov_b32 s%d, 0x%x" % (S_C, f2u(LOG2E if SM["mimic"] else SCALE_C)))
    A("s_mov_b32 s%d, 0x%x" % (S_SC, f2u(128.0 ** -0.5)))
    A("s_lshl_b32 s%d, s%d, 9" % (S_Q, S_H))
    A("s_add_u32 s%d, s%d, 0x%x" % (S_Q, S_Q, OFF_Q))
    A("s_lshl_b32 s%d, s%d, 3" % (S_P, S_H))
    A("s_add_u32 s%d, s%d, s%d" % (S_P, S_P, S_SUB))
    A("s_lshl_b32 s%d, s%d, 11" % (S_P, S_P))
    A("s_add_u32 s%d, s%d, 0x%x" % (S_P, S_P, OFF_PART))
    A("v_lshrrev_b32 v%d, 4, v0" % TB)
    A("v_and_b32 v%d, 7, v0" % TC)
    A("v_lshlrev_b32 v%d, 4, v%d" % (TC, TC))
    A("v_lshl_add_u32 v%d, v%d, 8, v%d" % (TC, TB, TC))
    A("v_bfe_u32 v%d, v0, 3, 1" % TA)
    A("v_mul_u32_u24 v%d, 0x%x, v%d" % (V_VOFF, TS["v"], TA))
    A("v_add_u32 v%d, v%d, v%d" % (V_VOFF, V_VOFF, TC))
    A("v_lshl_add_u32 v%d, v%d, 30, v%d" % (V_VOFF9, TA, TC))
    A("v_and_b32 v%d, 1, v0" % TA)
    A("v_mov_b32 v%d, 0xffff" % TB)
    A("v_lshlrev_b32 v%d, 4, v%d" % (TC, TA))
    A("v_lshlrev_b32 v%d, v%d, v%d" % (V_HALF, TC, TB))
    A("v_lshlrev_b32 v%d, 4, v0" % V_LDSRD)
    A("v_add_u32 v%d, s%d, v%d" % (V_LDSRD, S_T2, V_LDSRD))
    A("v_bfe_u32 v%d, v0, 4, 1" % TA)
    A("v_lshlrev_b32 v%d, 5, v%d" % (V_PUB, TA))
    A("v_bfe_u32 v%d, v0, 1, 1" % TA)
    A("v_lshl_add_u32 v%d, v%d, 4, v%d" % (V_PUB, TA, V_PUB))
    A("v_lshrrev_b32 v%d, 5, v0" % TA)
    A("v_lshl_add_u32 v%d, v%d, 3, v%d" % (V_PUB, TA, V_PUB))
    A("v_bfe_u32 v%d, v0, 2, 2" % TA)
    A("v_lshl_add_u32 v%d, v%d, 1, v%d" % (V_PUB, TA, V_PUB))
    A("v_and_b32 v%d, 1, v0" % TA)
    A("v_add_u32 v%d, v%d, v%d" % (V_PUB, TA, V_PUB))
    A("s_lshl_b32 s%d, s%d, 6" % (S_T0, S_W))
    A("v_add_u32 v%d, s%d, v%d" % (V_PUB, S_T0, V_PUB))
    A("v_lshlrev_b32 v%d, 3, v%d" % (V_PUB, V_PUB))
    A("v_lshlrev_b32 v%d, 3, v0" % TA)
    A("v_add_u32 v%d, 1024, v%d" % (TA, TA))
    A("v_mov_b32 v%d, 0x7f000000" % TB)
    A("v_cmp_gt_u32 vcc, 2, v0")
    A("v_cndmask_b32 v%d, v%d, v%d, vcc" % (TA, TB, TA))
    A("s_cmp_eq_u32 s%d, 2" % S_W)
    A("s_cselect_b64 vcc, -1, 0")
    A("v_cndmask_b32 v%d, v%d, v%d, vcc" % (V_PUB, V_PUB, TA))
    A("s_cmp_eq_u32 s%d, 3" % S_W)
    A("s_cselect_b64 vcc, -1, 0")
    A("v_cndmask_b32 v%d, v%d, v%d, vcc" % (V_PUB, V_PUB, TB))
    gen_bank_masks(A)
    A("s_mov_b32 s%d, 0xaaaaaaaa" % S_MODD)
    A("s_mov_b32 s%d, 0xaaaaaaaa" % (S_MODD + 1))
    A("s_waitcnt lgkmcnt(0)")
    A("s_mul_i32 s%d, s%d, 0x%x" % (S_TAG, S_TAG, HASH_MUL))
    A("s_add_u32 s%d, s%d, 0x%x" % (S_TAG, S_TAG, HASH_ADD))

_lab = [0]
def newlab(p):
    _lab[0] += 1
    return "L_%s_%d" % (p, _lab[0])

def poll_issue(L, b):
    def f(S):
        A = S.A
        A("v_and_b32 v%d, 0xff, v%d" % (V_T7, V_KOFF))
        A("v_lshlrev_b32 v%d, 1, v%d" % (V_T7, V_T7))
        A("s_add_u32 s%d, s%d, 0x%x" % (S_T0, S_Q, (L * 2 + b) * 16384))
        S.vm_issue("buffer_load_dwordx4 %s, v%d, s[%d:%d], s%d offen sc1" % (vr(PQ, 4), V_T7, S_WS, S_WS + 3, S_T0))
        S.poll_idx = S.vm_issue("buffer_load_dwordx4 %s, v%d, s[%d:%d], s%d offen offset:16 sc1" % (vr(PQ + 4, 4), V_T7, S_WS, S_WS + 3, S_T0))
    return f

def poll_check(L, b):
    def chk(A):
        A("v_min3_u32 v%d, v%d, v%d, v%d" % (V_X0, PQ + 1, PQ + 3, PQ + 5))
        A("v_max3_u32 v%d, v%d, v%d, v%d" % (V_X1, PQ + 1, PQ + 3, PQ + 5))
        A("v_min_u32 v%d, v%d, v%d" % (V_X0, V_X0, PQ + 7))
        A("v_max_u32 v%d, v%d, v%d" % (V_X1, V_X1, PQ + 7))
        A("v_cmp_ne_u32 vcc, s%d, v%d" % (S_TAG, V_X0))
        A("v_cmp_ne_u32 s[%d:%d], s%d, v%d" % (S_EX, S_EX + 1, S_TAG, V_X1))
        A("s_or_b64 vcc, vcc, s[%d:%d]" % (S_EX, S_EX + 1))
    def f(S):
        A = S.A
        ok = newlab("qok"); retry = newlab("qretry")
        S.vm_wait(S.poll_idx)
        chk(A)
        A.branch("s_cbranch_vccz %s" % ok)
        A("s_mov_b32 s%d, 0x2000" % S_SPIN)
        A.label(retry)
        A("s_sleep 2")
        A("v_and_b32 v%d, 0xff, v%d" % (V_T7, V_KOFF))
        A("v_lshlrev_b32 v%d, 1, v%d" % (V_T7, V_T7))
        A("s_add_u32 s%d, s%d, 0x%x" % (S_T0, S_Q, (L * 2 + b) * 16384))
        A("buffer_load_dwordx4 %s, v%d, s[%d:%d], s%d offen sc1" % (vr(PQ, 4), V_T7, S_WS, S_WS + 3, S_T0))
        A("buffer_load_dwordx4 %s, v%d, s[%d:%d], s%d offen offset:16 sc1" % (vr(PQ + 4, 4), V_T7, S_WS, S_WS + 3, S_T0))
        A("s_waitcnt vmcnt(0)")
        chk(A)
        A("s_sub_u32 s%d, s%d, 1" % (S_SPIN, S_SPIN))
        A.branch("s_cbranch_scc1 %s" % ok)
        A.branch("s_cbranch_vccnz %s" % retry)
        A.label(ok)
        for m in range(4):
            for k in range(4):
                A("v_cndmask_b32_e64 v%d, 0, v%d, s[%d:%d]" % (QB + 4 * m + k, PQ + 2 * k, S_BANK[m], S_BANK[m] + 1))
    return f

def group_wait(inst):
    def f(S):
        A = S.A
        ok = newlab("gok"); retry = newlab("grt")
        A("s_lshl_b32 s%d, s%d, 11" % (S_T0, S_SUB))
        A("s_sub_u32 s%d, s%d, s%d" % (S_T0, S_P, S_T0))
        A("s_add_u32 s%d, s%d, 0x%x" % (S_T0, S_T0, inst * 32 * 8 * 2048 + 1024))
        A("v_and_b32 v%d, 7, v0" % V_T7)
        A("v_min_u32 v%d, 6, v%d" % (V_T7, V_T7))
        A("v_lshlrev_b32 v%d, 11, v%d" % (V_T7, V_T7))
        A("s_mov_b32 s%d, 0x2000" % S_SPIN)
        A.label(retry)
        A("buffer_load_dwordx2 %s, v%d, s[%d:%d], s%d offen sc1" % (vr(PQ, 2), V_T7, S_WS, S_WS + 3, S_T0))
        A("s_waitcnt vmcnt(0)")
        A("v_cmp_ne_u32 vcc, s%d, v%d" % (S_TAG, PQ + 1))
        A.branch("s_cbranch_vccz %s" % ok)
        A("s_sleep 4")
        A("s_sub_u32 s%d, s%d, 1" % (S_SPIN, S_SPIN))
        A.branch("s_cbranch_scc0 %s" % retry)
        A.label(ok)
        S.done = S.fifo_n
    return f

S_BANK = [54, 56, 58, 60]

def gen_bank_masks(A):
    for m in range(4):
        v = (0xF << (4 * m)) * 0x00010001
        A("s_mov_b32 s%d, 0x%x" % (S_BANK[m], v))
        A("s_mov_b32 s%d, 0x%x" % (S_BANK[m] + 1, v))

def qp(a): return "quad_perm:[%d,%d,%d,%d] row_mask:0xf bank_mask:0xf" % tuple(a)

def extract_ops(j, b):
    D = DK[j % 3]; u = j & 3; sp = SP[b] + (j >> 2)
    ops = []
    if u == 0:
        ops.append("v_add_f32_dpp v%d, v%d, v%d %s" % (V_X0, D + 1, D + 0, qp([1] * 4)))
    else:
        ops.append("v_add_f32_dpp v%d, v%d, v%d %s" % (V_X0, D + 0, D + 1, qp([0] * 4)))
    if u == 2:
        ops.append("v_add_f32_dpp v%d, v%d, v%d %s" % (V_X1, D + 3, D + 2, qp([3] * 4)))
    else:
        ops.append("v_add_f32_dpp v%d, v%d, v%d %s" % (V_X1, D + 2, D + 3, qp([2] * 4)))
    direct = (u == 0 and j < 16)
    dst = sp if direct else V_X0
    if u in (0, 1):
        ops.append("v_add_f32_dpp v%d, v%d, v%d %s" % (dst, V_X1, V_X0, qp([3] * 4)))
    else:
        ops.append("v_add_f32_dpp v%d, v%d, v%d %s" % (dst, V_X0, V_X1, qp([1] * 4)))
    if not direct:
        mk = S_M18 if j == 18 else S_MASK[u]
        ops.append("v_cndmask_b32_e64 v%d, v%d, v%d, s[%d:%d]" % (sp, sp, V_X0, mk, mk + 1))
    return ops

def emit_ops(ops):
    def f(S):
        for o in ops: S.A(o)
    return f

def k_phase(items, L, b, keepfn, j0=0, j1=NT, first=True, last=True, bg=0):
    if first:
        items.append(("code", lambda S: S.A("v_mov_b32 v%d, 0xff800000" % (SP[b] + 4))))
    for j in range(j0, j1):
        ex = extract_ops(j - 2, b) if j - 2 >= j0 else []
        for m in range(4):
            def fn(areg, j=j, m=m):
                D = DK[j % 3]
                return "v_mfma_f32_16x16x32_bf16 %s, %s, %s, %s" % (vr(D, 4), vr(areg, 4), vr(QB + 4 * m, 4), "0" if m == 0 else vr(D, 4))
            items.append(("use", (b, "K", j, m), keepfn((b, "K", j, m)), fn))
            if ex:
                if m == 0: items.append(("code", emit_ops(ex[0:2])))
                elif m == 2: items.append(("code", emit_ops(ex[2:3])))
                elif m == 3 and len(ex) > 3: items.append(("code", emit_ops(ex[3:])))
        if bg and j % bg == bg - 1:
            items.append(("bgdrain",))
    for j in range(max(j0, j1 - 2), j1):
        items.append(("code", emit_ops(extract_ops(j, b))))

def wave_reduce(A, reg, op):
    for sh in (1, 2, 4, 8):
        A("%s_dpp v%d, v%d, v%d row_shr:%d row_mask:0xf bank_mask:0xf" % (op, reg, reg, reg, sh))
    A("%s_dpp v%d, v%d, v%d row_bcast:15 row_mask:0xa bank_mask:0xf" % (op, reg, reg, reg))
    A("%s_dpp v%d, v%d, v%d row_bcast:31 row_mask:0xc bank_mask:0xf" % (op, reg, reg, reg))

SM = {"mimic": 0}
def lsum_ops(b):
    ops = []
    for sh in (1, 2, 4, 8):
        ops.append("v_add_f32_dpp v%d, v%d, v%d row_shr:%d row_mask:0xf bank_mask:0xf" % (V_X0, V_X0, V_X0, sh))
    ops.append("v_add_f32_dpp v%d, v%d, v%d row_bcast:15 row_mask:0xa bank_mask:0xf" % (V_X0, V_X0, V_X0))
    ops.append("v_add_f32_dpp v%d, v%d, v%d row_bcast:31 row_mask:0xc bank_mask:0xf" % (V_X0, V_X0, V_X0))
    ops.append("v_readlane_b32 s%d, v%d, 63" % (S_L[b], V_X0))
    return ops

def softmax(b, defer=False):
    def f(S):
        A = S.A; sp = SP[b]
        if SM["mimic"]:
            for k in range(5): A("v_cvt_pk_bf16_f32 v%d, v%d, v%d" % (sp + k, sp + k, sp + k))
            for k in range(5): A("v_and_b32 v%d, 0xffff0000, v%d" % (sp + k, sp + k))
            for k in range(5): A("v_mul_f32 v%d, s%d, v%d" % (sp + k, S_SC, sp + k))
            for k in range(5): A("v_cvt_pk_bf16_f32 v%d, v%d, v%d" % (sp + k, sp + k, sp + k))
            for k in range(5): A("v_and_b32 v%d, 0xffff0000, v%d" % (sp + k, sp + k))
        A("v_max3_f32 v%d, v%d, v%d, v%d" % (V_X0, sp, sp + 1, sp + 2))
        A("v_max3_f32 v%d, v%d, v%d, v%d" % (V_X0, V_X0, sp + 3, sp + 4))
        wave_reduce(A, V_X0, "v_max_f32")
        A("v_readlane_b32 s%d, v%d, 63" % (S_M[b], V_X0))
        A("v_mov_b32 v%d, s%d" % (V_X1, S_M[b]))
        A("v_mul_f32 v%d, s%d, v%d" % (V_X1, S_C, V_X1))
        for k in range(5):
            A("v_fma_f32 v%d, v%d, s%d, -v%d" % (sp + k, sp + k, S_C, V_X1))
        for k in range(5):
            A("v_exp_f32 v%d, v%d" % (sp + k, sp + k))
        A("v_add_f32 v%d, v%d, v%d" % (V_X0, sp, sp + 1))
        A("v_add_f32 v%d, v%d, v%d" % (V_X1, sp + 2, sp + 3))
        A("v_add_f32 v%d, v%d, v%d" % (V_X0, V_X0, sp + 4))
        for k in range(5):
            A("v_cvt_pk_bf16_f32 v%d, v%d, v%d" % (sp + k, sp + k, sp + k))
        A("v_add_f32 v%d, v%d, v%d" % (V_X0, V_X0, V_X1))
        if not defer:
            for o in lsum_ops(b): A(o)
    return f

def build_b(A, B, Y, mu):
    for rho in range(4):
        sh = 4 * ((rho - mu) & 3)
        ctl = "quad_perm:[0,1,2,3]" if sh == 0 else "row_ror:%d" % sh
        A("v_mov_b32_dpp v%d, v%d %s row_mask:0xf bank_mask:0x%x" % (B + rho, Y, ctl, 1 << rho))

def build_ops(B, Y, mu):
    ops = []
    for rho in range(4):
        sh = 4 * ((rho - mu) & 3)
        ctl = "quad_perm:[0,1,2,3]" if sh == 0 else "row_ror:%d" % sh
        ops.append("v_mov_b32_dpp v%d, v%d %s row_mask:0xf bank_mask:0x%x" % (B + rho, Y, ctl, 1 << rho))
    return ops

def v_phase(items, L, b, keepfn, bg=0, lsum=False):
    extra = lsum_ops(b) if lsum else []
    def yop(pi):
        return "v_and_b32_dpp v%d, v%d, v%d %s" % (YR[pi & 1], SP[b] + (pi >> 1), V_HALF, qp([2, 2, 3, 3] if (pi & 1) else [0, 0, 1, 1]))
    pre = ["v_mov_b32 v%d, 0" % (BV[0] + r) for r in range(8)]
    pre.insert(0, yop(0))
    pre += build_ops(BV[0], YR[0], 0)
    items.append(("code", emit_ops(pre)))
    N = 40
    for n in range(N):
        pi, mu = n >> 2, n & 3
        par = n & 1
        nb = build_ops(BV[(n + 1) & 1], YR[((n + 1) >> 2) & 1], (n + 1) & 3) if n + 1 < N else []
        for cb in range(2):
            first = (n == 0)
            def fn(areg, par=par, cb=cb, first=first):
                return "v_mfma_f32_16x16x32_bf16 %s, %s, %s, %s" % (vr(DV[cb], 4), vr(areg, 4), vr(BV[par], 4), "0" if first else vr(DV[cb], 4))
            p = (b, "V", pi, mu, cb)
            items.append(("use", p, keepfn(p), fn))
            ops = nb[2 * cb:2 * cb + 2]
            if mu == 1 and cb == 0 and pi < 9: ops = ops + [yop(pi + 1)]
            if extra and cb == 1: ops = ops + [extra.pop(0)]
            if ops: items.append(("code", emit_ops(ops)))
        if bg and mu % bg == bg - 1:
            items.append(("bgdrain",))

def g_reduce(A, D, t1, t2, R, smask):
    A("v_permlane32_swap_b32 v%d, v%d" % (D, D + 1))
    A("v_permlane32_swap_b32 v%d, v%d" % (D + 2, D + 3))
    A("v_add_f32_dpp v%d, v%d, v%d %s" % (t1, D + 1, D, qp([2, 3, 2, 3])))
    A("v_add_f32_dpp v%d, v%d, v%d %s" % (t2, D + 2, D + 3, qp([0, 1, 0, 1])))
    A("v_cndmask_b32_e64 v%d, v%d, v%d, s[%d:%d]" % (R, t1, t2, smask, smask + 1))

def combine(L, b):
    inst = L * 2 + b
    def f(S):
        A = S.A
        t = BV[0]
        S.lg_all()
        g_reduce(A, DV[0], t, t + 1, t + 2, S_MG1)
        g_reduce(A, DV[1], t + 3, t + 4, t + 5, S_MG1)
        A("s_lshl_b32 s%d, s%d, 9" % (S_T0, S_W))
        A("s_add_u32 m0, s%d, %d" % (S_T0, LDS_SCR))
        A("ds_write_addtid_b32 v%d offset:0" % (t + 2))
        A("ds_write_addtid_b32 v%d offset:256" % (t + 5))
        A("v_mov_b32 v%d, s%d" % (t, S_M[b]))
        A("v_mov_b32 v%d, s%d" % (t + 1, S_L[b]))
        A("s_lshl_b32 s%d, s%d, 3" % (S_T0, S_W))
        A("s_add_u32 s%d, s%d, %d" % (S_T0, S_T0, LDS_STAT))
        A("v_mov_b32 v%d, s%d" % (t + 3, S_T0))
        A("ds_write_b64 v%d, %s" % (t + 3, vr(t, 2)))
        A("s_waitcnt lgkmcnt(0)")
        A("s_barrier")
        st = DV[0]
        A("v_mov_b32 v%d, %d" % (t + 3, LDS_STAT))
        A("ds_read_b128 %s, v%d" % (vr(st, 4), t + 3))
        A("ds_read_b128 %s, v%d offset:16" % (vr(st + 4, 4), t + 3))
        A("s_and_b32 s%d, s%d, 1" % (S_T0, S_W))
        A("s_lshl_b32 s%d, s%d, 8" % (S_T0, S_T0))
        A("s_add_u32 m0, s%d, %d" % (S_T0, LDS_SCR))
        for w in range(4):
            A("ds_read_addtid_b32 v%d offset:%d" % (t + 4 + w, w * 512))
        A("s_waitcnt lgkmcnt(4)")
        A("v_max3_f32 v%d, v%d, v%d, v%d" % (t, st, st + 2, st + 4))
        A("v_max_f32 v%d, v%d, v%d" % (t, t, st + 6))
        for w in range(4):
            A("v_sub_f32 v%d, v%d, v%d" % (st + 2 * w, st + 2 * w, t))
            A("v_mul_f32 v%d, s%d, v%d" % (st + 2 * w, S_C, st + 2 * w))
        for w in range(4):
            A("v_exp_f32 v%d, v%d" % (st + 2 * w, st + 2 * w))
        A("v_mul_f32 v%d, v%d, v%d" % (t + 1, st, st + 1))
        for w in range(1, 4):
            A("v_fmac_f32 v%d, v%d, v%d" % (t + 1, st + 2 * w, st + 2 * w + 1))
        A("v_mul_f32 v%d, s%d, v%d" % (t, S_C, t))
        A("s_waitcnt lgkmcnt(0)")
        A("v_mul_f32 v%d, v%d, v%d" % (t + 2, st, t + 4))
        for w in range(1, 4):
            A("v_fmac_f32 v%d, v%d, v%d" % (t + 2, st + 2 * w, t + 4 + w))
        A("v_cndmask_b32_e64 v%d, v%d, v%d, s[%d:%d]" % (t, t, t + 1, S_MODD, S_MODD + 1))
        A("s_cmp_lt_u32 s%d, 2" % S_W)
        A("s_cselect_b64 vcc, -1, 0")
        A("v_cndmask_b32 v%d, v%d, v%d, vcc" % (t + 2, t, t + 2))
        A("v_mov_b32 v%d, s%d" % (t + 3, S_TAG))
        A("s_add_u32 s%d, s%d, 0x%x" % (S_T0, S_P, inst * 32 * 8 * 2048))
        S.vm_issue("buffer_store_dwordx2 %s, v%d, s[%d:%d], s%d offen sc1" % (vr(t + 2, 2), V_PUB, S_WS, S_WS + 3, S_T0))
        A("s_barrier")
        S.lg_done = S.lg_n
    return f
S_MODD = 62

S_STAMP = 64
def stamp(k):
    def f(S):
        if not S.cfg.get("stamps"): return
        A = S.A
        A("s_memrealtime s[%d:%d]" % (S_EX, S_EX + 1))
        A("s_waitcnt lgkmcnt(0)")
        A("s_mov_b32 s%d, s%d" % (S_STAMP + k, S_EX))
        S.lg_done = S.lg_n
    return f

OFF_STAMP = 0x700000
def dump_stamps(A, n):
    A("s_lshl_b32 s%d, s2, 2" % S_T0)
    A("s_add_u32 s%d, s%d, s%d" % (S_T0, S_T0, S_W))
    A("s_lshl_b32 s%d, s%d, 7" % (S_T0, S_T0))
    A("s_add_u32 s%d, s%d, 0x%x" % (S_T0, S_T0, OFF_STAMP))
    A("v_mov_b32 v1, 0")
    for k in range(n):
        A("v_mov_b32 v2, s%d" % (S_STAMP + k))
        A("buffer_store_dword v2, v1, s[%d:%d], s%d offen offset:%d" % (S_WS, S_WS + 3, S_T0, 4 * k))
        A("s_nop 1")

def gen_attn(A, cfg):
    gen_setup1(A, cfg)
    S = Sched(A, cfg)
    it = S.items
    def first(S):
        if cfg.get("pf_attn"):
            S.fifo_n += cfg["code_prefetch"](A, "L_attn", "L_chain", cfg["pf_attn"], LT[0], LT[1])
        gen_setup2(A, cfg)
    it.append(("code", first))
    wrap = lambda lst: None
    sched = cfg["sched"]
    sched(S, it)
    for i, x in enumerate(it):
        if x[0] == "use":
            fn = x[3]
            it[i] = ("use", x[1], x[2], (lambda areg, fn=fn: A(fn(areg))))
    S.run()
    if cfg.get("stamps"):
        dump_stamps(A, cfg["stamps"])
    A("s_waitcnt vmcnt(0)")
    A.branch("s_branch L_end")
    return S

def sched_simple(S, it):
    drop = lambda p: False
    for (L, b) in ((0, 1), (0, 0), (1, 1), (1, 0)):
        it.append(("code", poll_issue(L, b)))
        it.append(("code", poll_check(L, b), "fence"))
        k_phase(it, L, b, drop)
        it.append(("code", softmax(b)))
        v_phase(it, L, b, drop)
        it.append(("code", combine(L, b), "fence"))

def sched_pipe(S, it):
    cfg = S.cfg
    C = cfg["nlds"] + cfg["nreg"]; R = cfg.get("ring", 12)
    order = [(1, "K", j, m) for j in range(18) for m in range(4)] + [(1, "V", pi, mu, cb) for pi in range(9) for mu in range(4) for cb in range(2)]
    keep1 = set(order[:C - R])
    S.keep1 = keep1
    drop = lambda p: False
    F = "fence"
    it.append(("code", stamp(0), F))
    cap = cfg["cap0"]
    step = cfg.get("dstep", 4)
    for _ in range(max(0, (cfg.get("npre", 76) - cap) // step)):
        it.append(("drain", cap - step))
    it.append(("code", poll_issue(0, 1)))
    it.append(("code", poll_check(0, 1), F))
    it.append(("code", stamp(1), F))
    k_phase(it, 0, 1, lambda p: p in keep1)
    it.append(("code", softmax(1, True)))
    it.append(("code", stamp(2), F))
    it.append(("code", poll_issue(0, 0)))
    v_phase(it, 0, 1, lambda p: p in keep1, lsum=True)
    it.append(("code", combine(0, 1), F))
    it.append(("code", stamp(3), F))
    it.append(("code", poll_check(0, 0), F))
    k_phase(it, 0, 0, drop)
    it.append(("code", softmax(0)))
    it.append(("code", stamp(4), F))
    it.append(("loadall",))
    it.append(("code", poll_issue(1, 1)))
    it.append(("code", poll_check(1, 1), F))
    it.append(("code", stamp(5), F))
    it.append(("cap", cfg.get("cap4", cfg.get("cap1", 60))))
    k_phase(it, 1, 1, drop, bg=cfg.get("bgk", 0))
    it.append(("code", softmax(1, True)))
    v_phase(it, 1, 1, drop, bg=cfg.get("bgv", 0), lsum=True)
    it.append(("code", combine(1, 1), F))
    it.append(("cap", cfg.get("cap1", 60)))
    it.append(("code", stamp(6), F))
    v_phase(it, 0, 0, lambda p: p[2] < 9)
    it.append(("code", combine(0, 0), F))
    it.append(("code", stamp(7), F))
    it.append(("cap", cfg.get("cap7", cfg.get("cap1", 60))))
    if cfg.get("gwait"):
        it.append(("hold",))
        it.append(("code_nl", group_wait(0)))
        it.append(("release",))
    it.append(("loadall",))
    it.append(("code", poll_issue(1, 0)))
    it.append(("code", poll_check(1, 0), F))
    it.append(("code", stamp(8), F))
    k_phase(it, 1, 0, drop)
    it.append(("code", softmax(0, True)))
    it.append(("code", stamp(9), F))
    v_phase(it, 1, 0, drop, lsum=True)
    it.append(("code", combine(1, 0), F))
    it.append(("code", stamp(10), F))
```

```python
from collections import deque
from emit import *
from layout import *

V_KOFF, V_VOFF, V_VOFF9, V_HALF, V_LDSRD, V_PUB, V_T7 = 1, 2, 3, 4, 5, 6, 7
R1 = 8
QB = R1
BV = [R1, R1 + 4]
DV = [R1 + 8, R1 + 12]
R2 = 24
DK = [R2, R2 + 4, R2 + 8]
YR = [R2, R2 + 1]
PQ = 28
TA, TB, TC, TD = 32, 33, 34, 35
SP = {1: 36, 0: 41}
LT = [46, 50, 54, 58]
V_X0, V_X1 = 62, 63
SLOT0 = 64
S_WS = 4; S_K = 8; S_V = 12
S_TAG, S_W, S_H, S_SUB = 16, 17, 18, 19
S_BASE = {0: 20, 1: 21}
S_O18 = {0: 22, 1: 23}
S_OT = [24, 25, 26, 27]
S_C = 28
S_SPIN = 29
S_MASK = [30, 32, 34, 36]
S_M18 = 38
S_MG1 = 40
S_M = {0: 42, 1: 43}
S_L = {0: 44, 1: 45}
S_Q = 46; S_P = 47
S_T0, S_T1 = 48, 49
S_EX = 50
S_T2 = 52
S_SC = 53
LDS_SCR = 0
LDS_STAT = 2048
LDS_SLOTS = 8192
NLDS = 38
NT = 19
TS = {"v": 16384}

class Sched:
    def __init__(self, A, cfg):
        self.A = A; self.cfg = cfg
        self.items = []
        self.fifo_n = 0
        self.done = 0
        self.lg_n = 0; self.lg_done = 0
        self.slot_of = {}; self.load_idx = {}
        self.soff_cache = {}
        self.soff_rr = 0
        self.nloads = 0
        self.load_count = {}
    def vm_issue(self, text):
        self.A(text); idx = self.fifo_n; self.fifo_n += 1; return idx
    def vm_wait(self, idx):
        if idx < self.done: return
        n = self.fifo_n - 1 - idx
        assert n <= 63, n
        self.A("s_waitcnt vmcnt(%d)" % n)
        self.done = idx + 1
    def vm_all_done(self):
        self.done = self.fifo_n
    def lg_issue(self, text):
        self.A(text); idx = self.lg_n; self.lg_n += 1; return idx
    def lg_wait(self, idx):
        if idx < self.lg_done: return
        n = self.lg_n - 1 - idx
        assert n <= 15, n
        self.A("s_waitcnt lgkmcnt(%d)" % n)
        self.lg_done = idx + 1
    def lg_all(self):
        if self.lg_done < self.lg_n:
            self.A("s_waitcnt lgkmcnt(0)")
        self.lg_done = self.lg_n
    def soff(self, b, tile, extra=0):
        key = (b, tile, extra)
        if key in self.soff_cache: return self.soff_cache[key]
        if tile == 18 and extra == 0: return S_O18[b]
        if tile == 0 and extra == 0: return S_BASE[b]
        r = S_OT[self.soff_rr % len(S_OT)]; self.soff_rr += 1
        for k in [k for k, v in self.soff_cache.items() if v == r]: del self.soff_cache[k]
        if tile == 18:
            self.A("s_add_u32 s%d, s%d, 0x%x" % (r, S_O18[b], extra))
        else:
            self.A("s_add_u32 s%d, s%d, 0x%x" % (r, S_BASE[b], tile * TS["v"] + extra))
        self.soff_cache[key] = r
        return r
    def emit_load(self, p, slot, pol):
        if p[1] == "K":
            b, _, j, m = p; tile = j; imm = m * 1024; voff = V_KOFF; srd = S_K
        else:
            b, _, pi, mu, cb = p; tile = 2 * pi; imm = mu * 1024 + cb * 128; srd = S_V
            voff = V_VOFF9 if pi == 9 else V_VOFF
        polx = (" " + pol) if pol else ""
        if slot[0] == "r":
            so = self.soff(b, tile)
            t = "buffer_load_dwordx4 %s, v%d, s[%d:%d], s%d offen%s%s" % (vr(slot[1], 4), voff, srd, srd + 3, so, (" offset:%d" % imm) if imm else "", polx)
        else:
            self.A("s_add_u32 m0, s%d, 0x%x" % (S_T2, slot[1] * 1024))
            so = self.soff(b, tile, imm)
            t = "buffer_load_dwordx4 v%d, s[%d:%d], s%d offen%s lds" % (voff, srd, srd + 3, so, polx)
        self.nloads += 1
        return self.vm_issue(t)

    def run(self):
        A = self.A; cfg = self.cfg; items = self.items
        uses = [i for i, it in enumerate(items) if it[0] == "use"]
        kept = set(); loadq = deque()
        for i in uses:
            _, p, keep, fn = items[i][:4]
            if p not in kept: loadq.append((i, p))
            if keep: kept.add(p)
            else: kept.discard(p)
        free = deque([("l", s) for s in range(cfg["nlds"])] + [("r", SLOT0 + 4 * s) for s in range(cfg["nreg"])])
        if cfg.get("reg_first"):
            free = deque([("r", SLOT0 + 4 * s) for s in range(cfg["nreg"])] + [("l", s) for s in range(cfg["nlds"])])
        temps = deque(LT)
        ldsread = {}
        state = {"cap": cfg["cap0"], "pol": cfg.get("pol", "nt")}
        for i_, it_ in enumerate(items):
            if it_[0] == "release":
                state["limit"] = i_
                n_ = cfg.get("gw_early", 0); j_ = i_
                while n_ > 0:
                    j_ += 1
                    if items[j_][0] == "use": n_ -= 1
                if j_ > i_: state["limit"] = j_ + 1
        def issue_loads():
            while loadq and free and (self.fifo_n - self.done) < state["cap"] and not state.get("hold") and (state.get("limit") is None or loadq[0][0] < state["limit"]):
                i, p = loadq[0]
                slot = None
                if cfg.get("pref", 1):
                    want = "l" if p[1] == "K" else "r"
                    for sl in free:
                        if sl[0] == want: slot = sl; break
                    if slot is None:
                        if p[1] == "V": break
                        slot = free[0]
                    free.remove(slot)
                else:
                    slot = free.popleft()
                loadq.popleft()
                self.slot_of[p] = slot
                pol = state["pol"]
                nth = self.load_count.get(p, 0); self.load_count[p] = nth + 1
                if cfg.get("polK0") is not None and p[0] == 0 and p[1] == "K" and nth == 0: pol = cfg["polK0"]
                if cfg.get("polK0r") is not None and p[0] == 0 and p[1] == "K" and nth == 1: pol = cfg["polK0r"]
                if cfg.get("l2k0") is not None and p[0] == 0 and p[1] == "K" and nth == 0 and p[2] >= cfg["l2k0"]: pol = ""
                if cfg.get("l2b1") and p[0] == 1 and nth == 0 and p not in self.keep1: pol = ""
                if cfg.get("polV0") is not None and p[0] == 0 and p[1] == "V": pol = cfg["polV0"]
                if cfg.get("polV1") is not None and p[0] == 1 and p[1] == "V": pol = cfg["polV1"]
                if cfg.get("polK1") is not None and p[0] == 1 and p[1] == "K": pol = cfg["polK1"]
                if cfg.get("polall") is not None: pol = cfg["polall"]
                if pol == "def": pol = ""
                if pol == "sc1nt": pol = "sc1 nt"
                if pol == "sc01nt": pol = "sc0 sc1 nt"
                self.load_idx[p] = self.emit_load(p, slot, pol)
                self.loaded_for[i] = True
        self.loaded_for = {}
        resident_use = {}
        LA = cfg.get("la", 3)
        def prefetch_lds(pos):
            cnt = 0
            for q in range(pos, min(pos + 8, len(uses))):
                ui = uses[q]
                if ui in ldsread:
                    cnt += 1; continue
                p = items[ui][1]
                if not (ui in self.loaded_for or self.kept_ok(ui)): break
                if self.slot_of[p][0] != "l": continue
                if cnt >= LA or not temps: break
                if any(items[x][0] == "code" and len(items[x]) > 2 and items[x][2] == "fence" for x in range(uses[pos], ui)): break
                self.vm_wait(self.load_idx[p])
                t = temps.popleft()
                li = self.lg_issue("ds_read_b128 %s, v%d offset:%d" % (vr(t, 4), V_LDSRD, self.slot_of[p][1] * 1024))
                ldsread[ui] = (t, li); cnt += 1
        lastkeep = {}
        self.keptset = set()
        self.kept_ok = lambda ui: items[ui][1] in self.keptset
        pos = 0
        for f in cfg.get("pre", []): f(self)
        issue_loads()
        for i, it in enumerate(items):
            if it[0] == "use":
                _, p, keep, fn = it[:4]
                assert (i in self.loaded_for) or (p in self.keptset), ("piece not loaded before use (deadlock)", i, p)
                prefetch_lds(pos)
                slot = self.slot_of[p]
                if slot[0] == "r":
                    self.vm_wait(self.load_idx[p])
                    fn(slot[1])
                else:
                    t, li = ldsread.pop(i)
                    self.lg_wait(li)
                    fn(t)
                    temps.append(t)
                if keep: self.keptset.add(p)
                else:
                    self.keptset.discard(p); free.append(slot)
                pos += 1
                issue_loads()
            elif it[0] == "code":
                it[1](self)
                issue_loads()
            elif it[0] == "drain":
                if self.fifo_n - self.done > it[1]:
                    self.vm_wait(self.fifo_n - 1 - it[1])
                issue_loads()
            elif it[0] == "hold":
                state["hold"] = True
            elif it[0] == "release":
                state["hold"] = False; state["limit"] = None
            elif it[0] == "code_nl":
                it[1](self)
            elif it[0] == "bgdrain":
                n = max(0, state["cap"] - cfg.get("dstep", 4))
                if loadq and free and (state.get("limit") is None or loadq[0][0] < state["limit"]) and self.fifo_n - self.done > n:
                    self.vm_wait(self.fifo_n - 1 - n)
                issue_loads()
            elif it[0] == "loadall":
                while loadq and free and (state.get("limit") is None or loadq[0][0] < state["limit"]):
                    if cfg.get("pref", 1) and loadq[0][1][1] == "V" and not any(sl[0] == "r" for sl in free): break
                    n = self.fifo_n - self.done
                    tgt = max(0, state["cap"] - cfg.get("dstep", 4))
                    if n > tgt:
                        self.vm_wait(self.fifo_n - 1 - tgt)
                    issue_loads()
            elif it[0] == "cap":
                state["cap"] = it[1]; issue_loads()
            elif it[0] == "pol":
                state["pol"] = it[1]
        assert not loadq

def gen_setup1(A, cfg):
    A.comment("attention setup (part 1: what the first loads need)")
    A("s_lshr_b32 s%d, s2, 3" % S_H)
    A("s_and_b32 s%d, s2, 7" % S_SUB)
    A("s_sub_u32 s%d, s%d, 1" % (S_SUB, S_SUB))
    if cfg.get("rotsub", 1):
        A("s_add_u32 s%d, s%d, s%d" % (S_SUB, S_SUB, S_H))
        A("s_mul_i32 s%d, s%d, 37" % (S_T0, S_SUB))
        A("s_lshr_b32 s%d, s%d, 8" % (S_T0, S_T0))
        A("s_mul_i32 s%d, s%d, 7" % (S_T0, S_T0))
        A("s_sub_u32 s%d, s%d, s%d" % (S_SUB, S_SUB, S_T0))
    if cfg.get("gil"):
        TS["v"] = 28 * 4096
        A("s_mul_i32 s%d, s%d, 7" % (S_T0, S_W))
        A("s_add_u32 s%d, s%d, s%d" % (S_T0, S_T0, S_SUB))
    else:
        TS["v"] = 16384
        A("s_mul_i32 s%d, s%d, 73" % (S_T0, S_SUB))
        A("s_add_u32 s%d, s%d, s%d" % (S_T0, S_T0, S_W))
    A("s_lshl_b32 s%d, s%d, 12" % (S_T0, S_T0))
    A("s_lshl_b32 s%d, s%d, 21" % (S_T1, S_H))
    A("s_add_u32 s%d, s%d, s%d" % (S_BASE[0], S_T0, S_T1))
    A("s_add_u32 s%d, s%d, 0x4000000" % (S_BASE[1], S_BASE[0]))
    A("s_mul_i32 s%d, s%d, %d" % (S_T2, S_W, NLDS * 1024))
    A("s_add_u32 s%d, s%d, %d" % (S_T2, S_T2, LDS_SLOTS))
    A("v_bfe_u32 v%d, v0, 2, 2" % TA)
    A("v_lshlrev_b32 v%d, 8, v%d" % (V_KOFF, TA))
    A("v_lshrrev_b32 v%d, 4, v0" % TB)
    A("v_lshl_add_u32 v%d, v%d, 6, v%d" % (V_KOFF, TB, V_KOFF))
    A("v_and_b32 v%d, 3, v0" % TC)
    A("v_lshl_add_u32 v%d, v%d, 4, v%d" % (V_KOFF, TC, V_KOFF))

def gen_setup2(A, cfg):
    A.comment("attention setup (part 2)")
    if cfg.get("gil"):
        A("s_mul_i32 s%d, s%d, 7" % (S_T0, S_W))
        A("s_add_u32 s%d, s%d, s%d" % (S_T0, S_T0, S_SUB))
        A("s_cmp_lt_u32 s%d, 8" % S_T0)
    else:
        A("s_cmp_eq_u32 s%d, 6" % S_SUB)
        A("s_cselect_b32 s%d, 2, 1" % S_T0)
        A("s_cmp_lt_u32 s%d, s%d" % (S_W, S_T0))
    A("s_cselect_b32 s%d, 1, 0" % S_T1)
    for b in (0, 1):
        A("s_add_u32 s%d, s%d, 0x%x" % (S_O18[b], S_BASE[b], 18 * TS["v"]))
        A("s_cmp_eq_u32 s%d, 1" % S_T1)
        A("s_cselect_b32 s%d, s%d, 0x80000000" % (S_O18[b], S_O18[b]))
    for u in range(4):
        A("s_mov_b32 s%d, 0x%x" % (S_MASK[u], 0x11111111 << u))
        A("s_mov_b32 s%d, 0x%x" % (S_MASK[u] + 1, 0x11111111 << u))
    A("s_cmp_eq_u32 s%d, 1" % S_T1)
    A("s_cselect_b32 s%d, 0x44444444, 0" % S_M18)
    A("s_mov_b32 s%d, s%d" % (S_M18 + 1, S_M18))
    A("s_mov_b32 s%d, 0xcccccccc" % S_MG1)
    A("s_mov_b32 s%d, 0xcccccccc" % (S_MG1 + 1))
    SM["mimic"] = cfg.get("mimic", 0)
    A("s_mov_b32 s%d, 0x%x" % (S_C, f2u(LOG2E if SM["mimic"] else SCALE_C)))
    A("s_mov_b32 s%d, 0x%x" % (S_SC, f2u(128.0 ** -0.5)))
    A("s_lshl_b32 s%d, s%d, 9" % (S_Q, S_H))
    A("s_add_u32 s%d, s%d, 0x%x" % (S_Q, S_Q, OFF_Q))
    A("s_lshl_b32 s%d, s%d, 3" % (S_P, S_H))
    A("s_add_u32 s%d, s%d, s%d" % (S_P, S_P, S_SUB))
    A("s_lshl_b32 s%d, s%d, 11" % (S_P, S_P))
    A("s_add_u32 s%d, s%d, 0x%x" % (S_P, S_P, OFF_PART))
    A("v_lshrrev_b32 v%d, 4, v0" % TB)
    A("v_and_b32 v%d, 7, v0" % TC)
    A("v_lshlrev_b32 v%d, 4, v%d" % (TC, TC))
    A("v_lshl_add_u32 v%d, v%d, 8, v%d" % (TC, TB, TC))
    A("v_bfe_u32 v%d, v0, 3, 1" % TA)
    A("v_mul_u32_u24 v%d, 0x%x, v%d" % (V_VOFF, TS["v"], TA))
    A("v_add_u32 v%d, v%d, v%d" % (V_VOFF, V_VOFF, TC))
    A("v_lshl_add_u32 v%d, v%d, 30, v%d" % (V_VOFF9, TA, TC))
    A("v_and_b32 v%d, 1, v0" % TA)
    A("v_mov_b32 v%d, 0xffff" % TB)
    A("v_lshlrev_b32 v%d, 4, v%d" % (TC, TA))
    A("v_lshlrev_b32 v%d, v%d, v%d" % (V_HALF, TC, TB))
    A("v_lshlrev_b32 v%d, 4, v0" % V_LDSRD)
    A("v_add_u32 v%d, s%d, v%d" % (V_LDSRD, S_T2, V_LDSRD))
    A("v_bfe_u32 v%d, v0, 4, 1" % TA)
    A("v_lshlrev_b32 v%d, 5, v%d" % (V_PUB, TA))
    A("v_bfe_u32 v%d, v0, 1, 1" % TA)
    A("v_lshl_add_u32 v%d, v%d, 4, v%d" % (V_PUB, TA, V_PUB))
    A("v_lshrrev_b32 v%d, 5, v0" % TA)
    A("v_lshl_add_u32 v%d, v%d, 3, v%d" % (V_PUB, TA, V_PUB))
    A("v_bfe_u32 v%d, v0, 2, 2" % TA)
    A("v_lshl_add_u32 v%d, v%d, 1, v%d" % (V_PUB, TA, V_PUB))
    A("v_and_b32 v%d, 1, v0" % TA)
    A("v_add_u32 v%d, v%d, v%d" % (V_PUB, TA, V_PUB))
    A("s_lshl_b32 s%d, s%d, 6" % (S_T0, S_W))
    A("v_add_u32 v%d, s%d, v%d" % (V_PUB, S_T0, V_PUB))
    A("v_lshlrev_b32 v%d, 3, v%d" % (V_PUB, V_PUB))
    A("v_lshlrev_b32 v%d, 3, v0" % TA)
    A("v_add_u32 v%d, 1024, v%d" % (TA, TA))
    A("v_mov_b32 v%d, 0x7f000000" % TB)
    A("v_cmp_gt_u32 vcc, 2, v0")
    A("v_cndmask_b32 v%d, v%d, v%d, vcc" % (TA, TB, TA))
    A("s_cmp_eq_u32 s%d, 2" % S_W)
    A("s_cselect_b64 vcc, -1, 0")
    A("v_cndmask_b32 v%d, v%d, v%d, vcc" % (V_PUB, V_PUB, TA))
    A("s_cmp_eq_u32 s%d, 3" % S_W)
    A("s_cselect_b64 vcc, -1, 0")
    A("v_cndmask_b32 v%d, v%d, v%d, vcc" % (V_PUB, V_PUB, TB))
    gen_bank_masks(A)
    A("s_mov_b32 s%d, 0xaaaaaaaa" % S_MODD)
    A("s_mov_b32 s%d, 0xaaaaaaaa" % (S_MODD + 1))
    A("s_waitcnt lgkmcnt(0)")
    A("s_mul_i32 s%d, s%d, 0x%x" % (S_TAG, S_TAG, HASH_MUL))
    A("s_add_u32 s%d, s%d, 0x%x" % (S_TAG, S_TAG, HASH_ADD))

_lab = [0]
def newlab(p):
    _lab[0] += 1
    return "L_%s_%d" % (p, _lab[0])

def poll_issue(L, b):
    def f(S):
        A = S.A
        A("v_and_b32 v%d, 0xff, v%d" % (V_T7, V_KOFF))
        A("v_lshlrev_b32 v%d, 1, v%d" % (V_T7, V_T7))
        A("s_add_u32 s%d, s%d, 0x%x" % (S_T0, S_Q, (L * 2 + b) * 16384))
        S.vm_issue("buffer_load_dwordx4 %s, v%d, s[%d:%d], s%d offen sc1" % (vr(PQ, 4), V_T7, S_WS, S_WS + 3, S_T0))
        S.poll_idx = S.vm_issue("buffer_load_dwordx4 %s, v%d, s[%d:%d], s%d offen offset:16 sc1" % (vr(PQ + 4, 4), V_T7, S_WS, S_WS + 3, S_T0))
    return f

def poll_check(L, b):
    def chk(A):
        A("v_min3_u32 v%d, v%d, v%d, v%d" % (V_X0, PQ + 1, PQ + 3, PQ + 5))
        A("v_max3_u32 v%d, v%d, v%d, v%d" % (V_X1, PQ + 1, PQ + 3, PQ + 5))
        A("v_min_u32 v%d, v%d, v%d" % (V_X0, V_X0, PQ + 7))
        A("v_max_u32 v%d, v%d, v%d" % (V_X1, V_X1, PQ + 7))
        A("v_cmp_ne_u32 vcc, s%d, v%d" % (S_TAG, V_X0))
        A("v_cmp_ne_u32 s[%d:%d], s%d, v%d" % (S_EX, S_EX + 1, S_TAG, V_X1))
        A("s_or_b64 vcc, vcc, s[%d:%d]" % (S_EX, S_EX + 1))
    def f(S):
        A = S.A
        ok = newlab("qok"); retry = newlab("qretry")
        S.vm_wait(S.poll_idx)
        chk(A)
        A.branch("s_cbranch_vccz %s" % ok)
        A("s_mov_b32 s%d, 0x2000" % S_SPIN)
        A.label(retry)
        A("s_sleep 2")
        A("v_and_b32 v%d, 0xff, v%d" % (V_T7, V_KOFF))
        A("v_lshlrev_b32 v%d, 1, v%d" % (V_T7, V_T7))
        A("s_add_u32 s%d, s%d, 0x%x" % (S_T0, S_Q, (L * 2 + b) * 16384))
        A("buffer_load_dwordx4 %s, v%d, s[%d:%d], s%d offen sc1" % (vr(PQ, 4), V_T7, S_WS, S_WS + 3, S_T0))
        A("buffer_load_dwordx4 %s, v%d, s[%d:%d], s%d offen offset:16 sc1" % (vr(PQ + 4, 4), V_T7, S_WS, S_WS + 3, S_T0))
        A("s_waitcnt vmcnt(0)")
        chk(A)
        A("s_sub_u32 s%d, s%d, 1" % (S_SPIN, S_SPIN))
        A.branch("s_cbranch_scc1 %s" % ok)
        A.branch("s_cbranch_vccnz %s" % retry)
        A.label(ok)
        for m in range(4):
            for k in range(4):
                A("v_cndmask_b32_e64 v%d, 0, v%d, s[%d:%d]" % (QB + 4 * m + k, PQ + 2 * k, S_BANK[m], S_BANK[m] + 1))
    return f

def group_wait(inst):
    def f(S):
        A = S.A
        ok = newlab("gok"); retry = newlab("grt")
        A("s_lshl_b32 s%d, s%d, 11" % (S_T0, S_SUB))
        A("s_sub_u32 s%d, s%d, s%d" % (S_T0, S_P, S_T0))
        A("s_add_u32 s%d, s%d, 0x%x" % (S_T0, S_T0, inst * 32 * 8 * 2048 + 1024))
        A("v_and_b32 v%d, 7, v0" % V_T7)
        A("v_min_u32 v%d, 6, v%d" % (V_T7, V_T7))
        A("v_lshlrev_b32 v%d, 11, v%d" % (V_T7, V_T7))
        A("s_mov_b32 s%d, 0x2000" % S_SPIN)
        A.label(retry)
        A("buffer_load_dwordx2 %s, v%d, s[%d:%d], s%d offen sc1" % (vr(PQ, 2), V_T7, S_WS, S_WS + 3, S_T0))
        A("s_waitcnt vmcnt(0)")
        A("v_cmp_ne_u32 vcc, s%d, v%d" % (S_TAG, PQ + 1))
        A.branch("s_cbranch_vccz %s" % ok)
        A("s_sleep 4")
        A("s_sub_u32 s%d, s%d, 1" % (S_SPIN, S_SPIN))
        A.branch("s_cbranch_scc0 %s" % retry)
        A.label(ok)
        S.done = S.fifo_n
    return f

S_BANK = [54, 56, 58, 60]

def gen_bank_masks(A):
    for m in range(4):
        v = (0xF << (4 * m)) * 0x00010001
        A("s_mov_b32 s%d, 0x%x" % (S_BANK[m], v))
        A("s_mov_b32 s%d, 0x%x" % (S_BANK[m] + 1, v))

def qp(a): return "quad_perm:[%d,%d,%d,%d] row_mask:0xf bank_mask:0xf" % tuple(a)

def extract_ops(j, b):
    D = DK[j % 3]; u = j & 3; sp = SP[b] + (j >> 2)
    ops = []
    if u == 0:
        ops.append("v_add_f32_dpp v%d, v%d, v%d %s" % (V_X0, D + 1, D + 0, qp([1] * 4)))
    else:
        ops.append("v_add_f32_dpp v%d, v%d, v%d %s" % (V_X0, D + 0, D + 1, qp([0] * 4)))
    if u == 2:
        ops.append("v_add_f32_dpp v%d, v%d, v%d %s" % (V_X1, D + 3, D + 2, qp([3] * 4)))
    else:
        ops.append("v_add_f32_dpp v%d, v%d, v%d %s" % (V_X1, D + 2, D + 3, qp([2] * 4)))
    direct = (u == 0 and j < 16)
    dst = sp if direct else V_X0
    if u in (0, 1):
        ops.append("v_add_f32_dpp v%d, v%d, v%d %s" % (dst, V_X1, V_X0, qp([3] * 4)))
    else:
        ops.append("v_add_f32_dpp v%d, v%d, v%d %s" % (dst, V_X0, V_X1, qp([1] * 4)))
    if not direct:
        mk = S_M18 if j == 18 else S_MASK[u]
        ops.append("v_cndmask_b32_e64 v%d, v%d, v%d, s[%d:%d]" % (sp, sp, V_X0, mk, mk + 1))
    return ops

def emit_ops(ops):
    def f(S):
        for o in ops: S.A(o)
    return f

def k_phase(items, L, b, keepfn, j0=0, j1=NT, first=True, last=True, bg=0):
    if first:
        items.append(("code", lambda S: S.A("v_mov_b32 v%d, 0xff800000" % (SP[b] + 4))))
    for j in range(j0, j1):
        ex = extract_ops(j - 2, b) if j - 2 >= j0 else []
        for m in range(4):
            def fn(areg, j=j, m=m):
                D = DK[j % 3]
                return "v_mfma_f32_16x16x32_bf16 %s, %s, %s, %s" % (vr(D, 4), vr(areg, 4), vr(QB + 4 * m, 4), "0" if m == 0 else vr(D, 4))
            items.append(("use", (b, "K", j, m), keepfn((b, "K", j, m)), fn))
            if ex:
                if m == 0: items.append(("code", emit_ops(ex[0:2])))
                elif m == 2: items.append(("code", emit_ops(ex[2:3])))
                elif m == 3 and len(ex) > 3: items.append(("code", emit_ops(ex[3:])))
        if bg and j % bg == bg - 1:
            items.append(("bgdrain",))
    for j in range(max(j0, j1 - 2), j1):
        items.append(("code", emit_ops(extract_ops(j, b))))

def wave_reduce(A, reg, op):
    for sh in (1, 2, 4, 8):
        A("%s_dpp v%d, v%d, v%d row_shr:%d row_mask:0xf bank_mask:0xf" % (op, reg, reg, reg, sh))
    A("%s_dpp v%d, v%d, v%d row_bcast:15 row_mask:0xa bank_mask:0xf" % (op, reg, reg, reg))
    A("%s_dpp v%d, v%d, v%d row_bcast:31 row_mask:0xc bank_mask:0xf" % (op, reg, reg, reg))

SM = {"mimic": 0}
def lsum_ops(b):
    ops = []
    for sh in (1, 2, 4, 8):
        ops.append("v_add_f32_dpp v%d, v%d, v%d row_shr:%d row_mask:0xf bank_mask:0xf" % (V_X0, V_X0, V_X0, sh))
    ops.append("v_add_f32_dpp v%d, v%d, v%d row_bcast:15 row_mask:0xa bank_mask:0xf" % (V_X0, V_X0, V_X0))
    ops.append("v_add_f32_dpp v%d, v%d, v%d row_bcast:31 row_mask:0xc bank_mask:0xf" % (V_X0, V_X0, V_X0))
    ops.append("v_readlane_b32 s%d, v%d, 63" % (S_L[b], V_X0))
    return ops

def softmax(b, defer=False):
    def f(S):
        A = S.A; sp = SP[b]
        if SM["mimic"]:
            for k in range(5): A("v_cvt_pk_bf16_f32 v%d, v%d, v%d" % (sp + k, sp + k, sp + k))
            for k in range(5): A("v_and_b32 v%d, 0xffff0000, v%d" % (sp + k, sp + k))
            for k in range(5): A("v_mul_f32 v%d, s%d, v%d" % (sp + k, S_SC, sp + k))
            for k in range(5): A("v_cvt_pk_bf16_f32 v%d, v%d, v%d" % (sp + k, sp + k, sp + k))
            for k in range(5): A("v_and_b32 v%d, 0xffff0000, v%d" % (sp + k, sp + k))
        A("v_max3_f32 v%d, v%d, v%d, v%d" % (V_X0, sp, sp + 1, sp + 2))
        A("v_max3_f32 v%d, v%d, v%d, v%d" % (V_X0, V_X0, sp + 3, sp + 4))
        wave_reduce(A, V_X0, "v_max_f32")
        A("v_readlane_b32 s%d, v%d, 63" % (S_M[b], V_X0))
        A("v_mov_b32 v%d, s%d" % (V_X1, S_M[b]))
        A("v_mul_f32 v%d, s%d, v%d" % (V_X1, S_C, V_X1))
        for k in range(5):
            A("v_fma_f32 v%d, v%d, s%d, -v%d" % (sp + k, sp + k, S_C, V_X1))
        for k in range(5):
            A("v_exp_f32 v%d, v%d" % (sp + k, sp + k))
        A("v_add_f32 v%d, v%d, v%d" % (V_X0, sp, sp + 1))
        A("v_add_f32 v%d, v%d, v%d" % (V_X1, sp + 2, sp + 3))
        A("v_add_f32 v%d, v%d, v%d" % (V_X0, V_X0, sp + 4))
        for k in range(5):
            A("v_cvt_pk_bf16_f32 v%d, v%d, v%d" % (sp + k, sp + k, sp + k))
        A("v_add_f32 v%d, v%d, v%d" % (V_X0, V_X0, V_X1))
        if not defer:
            for o in lsum_ops(b): A(o)
    return f

def build_b(A, B, Y, mu):
    for rho in range(4):
        sh = 4 * ((rho - mu) & 3)
        ctl = "quad_perm:[0,1,2,3]" if sh == 0 else "row_ror:%d" % sh
        A("v_mov_b32_dpp v%d, v%d %s row_mask:0xf bank_mask:0x%x" % (B + rho, Y, ctl, 1 << rho))

def build_ops(B, Y, mu):
    ops = []
    for rho in range(4):
        sh = 4 * ((rho - mu) & 3)
        ctl = "quad_perm:[0,1,2,3]" if sh == 0 else "row_ror:%d" % sh
        ops.append("v_mov_b32_dpp v%d, v%d %s row_mask:0xf bank_mask:0x%x" % (B + rho, Y, ctl, 1 << rho))
    return ops

def v_phase(items, L, b, keepfn, bg=0, lsum=False):
    extra = lsum_ops(b) if lsum else []
    def yop(pi):
        return "v_and_b32_dpp v%d, v%d, v%d %s" % (YR[pi & 1], SP[b] + (pi >> 1), V_HALF, qp([2, 2, 3, 3] if (pi & 1) else [0, 0, 1, 1]))
    pre = ["v_mov_b32 v%d, 0" % (BV[0] + r) for r in range(8)]
    pre.insert(0, yop(0))
    pre += build_ops(BV[0], YR[0], 0)
    items.append(("code", emit_ops(pre)))
    N = 40
    for n in range(N):
        pi, mu = n >> 2, n & 3
        par = n & 1
        nb = build_ops(BV[(n + 1) & 1], YR[((n + 1) >> 2) & 1], (n + 1) & 3) if n + 1 < N else []
        for cb in range(2):
            first = (n == 0)
            def fn(areg, par=par, cb=cb, first=first):
                return "v_mfma_f32_16x16x32_bf16 %s, %s, %s, %s" % (vr(DV[cb], 4), vr(areg, 4), vr(BV[par], 4), "0" if first else vr(DV[cb], 4))
            p = (b, "V", pi, mu, cb)
            items.append(("use", p, keepfn(p), fn))
            ops = nb[2 * cb:2 * cb + 2]
            if mu == 1 and cb == 0 and pi < 9: ops = ops + [yop(pi + 1)]
            if extra and cb == 1: ops = ops + [extra.pop(0)]
            if ops: items.append(("code", emit_ops(ops)))
        if bg and mu % bg == bg - 1:
            items.append(("bgdrain",))

def g_reduce(A, D, t1, t2, R, smask):
    A("v_permlane32_swap_b32 v%d, v%d" % (D, D + 1))
    A("v_permlane32_swap_b32 v%d, v%d" % (D + 2, D + 3))
    A("v_add_f32_dpp v%d, v%d, v%d %s" % (t1, D + 1, D, qp([2, 3, 2, 3])))
    A("v_add_f32_dpp v%d, v%d, v%d %s" % (t2, D + 2, D + 3, qp([0, 1, 0, 1])))
    A("v_cndmask_b32_e64 v%d, v%d, v%d, s[%d:%d]" % (R, t1, t2, smask, smask + 1))

def combine(L, b):
    inst = L * 2 + b
    def f(S):
        A = S.A
        t = BV[0]
        S.lg_all()
        g_reduce(A, DV[0], t, t + 1, t + 2, S_MG1)
        g_reduce(A, DV[1], t + 3, t + 4, t + 5, S_MG1)
        A("s_lshl_b32 s%d, s%d, 9" % (S_T0, S_W))
        A("s_add_u32 m0, s%d, %d" % (S_T0, LDS_SCR))
        A("ds_write_addtid_b32 v%d offset:0" % (t + 2))
        A("ds_write_addtid_b32 v%d offset:256" % (t + 5))
        A("v_mov_b32 v%d, s%d" % (t, S_M[b]))
        A("v_mov_b32 v%d, s%d" % (t + 1, S_L[b]))
        A("s_lshl_b32 s%d, s%d, 3" % (S_T0, S_W))
        A("s_add_u32 s%d, s%d, %d" % (S_T0, S_T0, LDS_STAT))
        A("v_mov_b32 v%d, s%d" % (t + 3, S_T0))
        A("ds_write_b64 v%d, %s" % (t + 3, vr(t, 2)))
        A("s_waitcnt lgkmcnt(0)")
        A("s_barrier")
        st = DV[0]
        A("v_mov_b32 v%d, %d" % (t + 3, LDS_STAT))
        A("ds_read_b128 %s, v%d" % (vr(st, 4), t + 3))
        A("ds_read_b128 %s, v%d offset:16" % (vr(st + 4, 4), t + 3))
        A("s_and_b32 s%d, s%d, 1" % (S_T0, S_W))
        A("s_lshl_b32 s%d, s%d, 8" % (S_T0, S_T0))
        A("s_add_u32 m0, s%d, %d" % (S_T0, LDS_SCR))
        for w in range(4):
            A("ds_read_addtid_b32 v%d offset:%d" % (t + 4 + w, w * 512))
        A("s_waitcnt lgkmcnt(4)")
        A("v_max3_f32 v%d, v%d, v%d, v%d" % (t, st, st + 2, st + 4))
        A("v_max_f32 v%d, v%d, v%d" % (t, t, st + 6))
        for w in range(4):
            A("v_sub_f32 v%d, v%d, v%d" % (st + 2 * w, st + 2 * w, t))
            A("v_mul_f32 v%d, s%d, v%d" % (st + 2 * w, S_C, st + 2 * w))
        for w in range(4):
            A("v_exp_f32 v%d, v%d" % (st + 2 * w, st + 2 * w))
        A("v_mul_f32 v%d, v%d, v%d" % (t + 1, st, st + 1))
        for w in range(1, 4):
            A("v_fmac_f32 v%d, v%d, v%d" % (t + 1, st + 2 * w, st + 2 * w + 1))
        A("v_mul_f32 v%d, s%d, v%d" % (t, S_C, t))
        A("s_waitcnt lgkmcnt(0)")
        A("v_mul_f32 v%d, v%d, v%d" % (t + 2, st, t + 4))
        for w in range(1, 4):
            A("v_fmac_f32 v%d, v%d, v%d" % (t + 2, st + 2 * w, t + 4 + w))
        A("v_cndmask_b32_e64 v%d, v%d, v%d, s[%d:%d]" % (t, t, t + 1, S_MODD, S_MODD + 1))
        A("s_cmp_lt_u32 s%d, 2" % S_W)
        A("s_cselect_b64 vcc, -1, 0")
        A("v_cndmask_b32 v%d, v%d, v%d, vcc" % (t + 2, t, t + 2))
        A("v_mov_b32 v%d, s%d" % (t + 3, S_TAG))
        A("s_add_u32 s%d, s%d, 0x%x" % (S_T0, S_P, inst * 32 * 8 * 2048))
        S.vm_issue("buffer_store_dwordx2 %s, v%d, s[%d:%d], s%d offen sc1" % (vr(t + 2, 2), V_PUB, S_WS, S_WS + 3, S_T0))
        A("s_barrier")
        S.lg_done = S.lg_n
    return f
S_MODD = 62

S_STAMP = 64
def stamp(k):
    def f(S):
        if not S.cfg.get("stamps"): return
        A = S.A
        A("s_memrealtime s[%d:%d]" % (S_EX, S_EX + 1))
        A("s_waitcnt lgkmcnt(0)")
        A("s_mov_b32 s%d, s%d" % (S_STAMP + k, S_EX))
        S.lg_done = S.lg_n
    return f

OFF_STAMP = 0x700000
def dump_stamps(A, n):
    A("s_lshl_b32 s%d, s2, 2" % S_T0)
    A("s_add_u32 s%d, s%d, s%d" % (S_T0, S_T0, S_W))
    A("s_lshl_b32 s%d, s%d, 7" % (S_T0, S_T0))
    A("s_add_u32 s%d, s%d, 0x%x" % (S_T0, S_T0, OFF_STAMP))
    A("v_mov_b32 v1, 0")
    for k in range(n):
        A("v_mov_b32 v2, s%d" % (S_STAMP + k))
        A("buffer_store_dword v2, v1, s[%d:%d], s%d offen offset:%d" % (S_WS, S_WS + 3, S_T0, 4 * k))
        A("s_nop 1")

def gen_attn(A, cfg):
    gen_setup1(A, cfg)
    S = Sched(A, cfg)
    it = S.items
    def first(S):
        if cfg.get("pf_attn"):
            S.fifo_n += cfg["code_prefetch"](A, "L_attn", "L_chain", cfg["pf_attn"], LT[0], LT[1])
        gen_setup2(A, cfg)
    it.append(("code", first))
    wrap = lambda lst: None
    sched = cfg["sched"]
    sched(S, it)
    for i, x in enumerate(it):
        if x[0] == "use":
            fn = x[3]
            it[i] = ("use", x[1], x[2], (lambda areg, fn=fn: A(fn(areg))))
    S.run()
    if cfg.get("stamps"):
        dump_stamps(A, cfg["stamps"])
    A("s_waitcnt vmcnt(0)")
    A.branch("s_branch L_end")
    return S

def sched_simple(S, it):
    drop = lambda p: False
    for (L, b) in ((0, 1), (0, 0), (1, 1), (1, 0)):
        it.append(("code", poll_issue(L, b)))
        it.append(("code", poll_check(L, b), "fence"))
        k_phase(it, L, b, drop)
        it.append(("code", softmax(b)))
        v_phase(it, L, b, drop)
        it.append(("code", combine(L, b), "fence"))

def sched_pipe(S, it):
    cfg = S.cfg
    C = cfg["nlds"] + cfg["nreg"]; R = cfg.get("ring", 12)
    order = [(1, "K", j, m) for j in range(18) for m in range(4)] + [(1, "V", pi, mu, cb) for pi in range(9) for mu in range(4) for cb in range(2)]
    keep1 = set(order[:C - R])
    S.keep1 = keep1
    drop = lambda p: False
    F = "fence"
    it.append(("code", stamp(0), F))
    cap = cfg["cap0"]
    step = cfg.get("dstep", 4)
    for _ in range(max(0, (cfg.get("npre", 76) - cap) // step)):
        it.append(("drain", cap - step))
    it.append(("code", poll_issue(0, 1)))
    it.append(("code", poll_check(0, 1), F))
    it.append(("code", stamp(1), F))
    k_phase(it, 0, 1, lambda p: p in keep1)
    it.append(("code", softmax(1, True)))
    it.append(("code", stamp(2), F))
    it.append(("code", poll_issue(0, 0)))
    v_phase(it, 0, 1, lambda p: p in keep1, lsum=True)
    it.append(("code", combine(0, 1), F))
    it.append(("code", stamp(3), F))
    it.append(("code", poll_check(0, 0), F))
    k_phase(it, 0, 0, drop)
    it.append(("code", softmax(0)))
    it.append(("code", stamp(4), F))
    it.append(("loadall",))
    it.append(("code", poll_issue(1, 1)))
    it.append(("code", poll_check(1, 1), F))
    it.append(("code", stamp(5), F))
    it.append(("cap", cfg.get("cap4", cfg.get("cap1", 60))))
    k_phase(it, 1, 1, drop, bg=cfg.get("bgk", 0))
    it.append(("code", softmax(1, True)))
    v_phase(it, 1, 1, drop, bg=cfg.get("bgv", 0), lsum=True)
    it.append(("code", combine(1, 1), F))
    it.append(("cap", cfg.get("cap1", 60)))
    it.append(("code", stamp(6), F))
    v_phase(it, 0, 0, lambda p: p[2] < 9)
    it.append(("code", combine(0, 0), F))
    it.append(("code", stamp(7), F))
    it.append(("cap", cfg.get("cap7", cfg.get("cap1", 60))))
    if cfg.get("gwait"):
        it.append(("hold",))
        it.append(("code_nl", group_wait(0)))
        it.append(("release",))
    it.append(("loadall",))
    it.append(("code", poll_issue(1, 0)))
    it.append(("code", poll_check(1, 0), F))
    it.append(("code", stamp(8), F))
    k_phase(it, 1, 0, drop)
    it.append(("code", softmax(0, True)))
    it.append(("code", stamp(9), F))
    v_phase(it, 1, 0, drop, lsum=True)
    it.append(("code", combine(1, 0), F))
    it.append(("code", stamp(10), F))
```

```python
from collections import deque
from emit import *
from layout import *

V_KOFF, V_VOFF, V_VOFF9, V_HALF, V_LDSRD, V_PUB, V_T7 = 1, 2, 3, 4, 5, 6, 7
R1 = 8
QB = R1
BV = [R1, R1 + 4]
DV = [R1 + 8, R1 + 12]
R2 = 24
DK = [R2, R2 + 4, R2 + 8]
YR = [R2, R2 + 1]
PQ = 28
TA, TB, TC, TD = 32, 33, 34, 35
SP = {1: 36, 0: 41}
LT = [46, 50, 54, 58]
V_X0, V_X1 = 62, 63
SLOT0 = 64
S_WS = 4; S_K = 8; S_V = 12
S_TAG, S_W, S_H, S_SUB = 16, 17, 18, 19
S_BASE = {0: 20, 1: 21}
S_O18 = {0: 22, 1: 23}
S_OT = [24, 25, 26, 27]
S_C = 28
S_SPIN = 29
S_MASK = [30, 32, 34, 36]
S_M18 = 38
S_MG1 = 40
S_M = {0: 42, 1: 43}
S_L = {0: 44, 1: 45}
S_Q = 46; S_P = 47
S_T0, S_T1 = 48, 49
S_EX = 50
S_T2 = 52
S_SC = 53
LDS_SCR = 0
LDS_STAT = 2048
LDS_SLOTS = 8192
NLDS = 38
NT = 19
TS = {"v": 16384}

class Sched:
    def __init__(self, A, cfg):
        self.A = A; self.cfg = cfg
        self.items = []
        self.fifo_n = 0
        self.done = 0
        self.lg_n = 0; self.lg_done = 0
        self.slot_of = {}; self.load_idx = {}
        self.soff_cache = {}
        self.soff_rr = 0
        self.nloads = 0
        self.load_count = {}
    def vm_issue(self, text):
        self.A(text); idx = self.fifo_n; self.fifo_n += 1; return idx
    def vm_wait(self, idx):
        if idx < self.done: return
        n = self.fifo_n - 1 - idx
        assert n <= 63, n
        self.A("s_waitcnt vmcnt(%d)" % n)
        self.done = idx + 1
    def vm_all_done(self):
        self.done = self.fifo_n
    def lg_issue(self, text):
        self.A(text); idx = self.lg_n; self.lg_n += 1; return idx
    def lg_wait(self, idx):
        if idx < self.lg_done: return
        n = self.lg_n - 1 - idx
        assert n <= 15, n
        self.A("s_waitcnt lgkmcnt(%d)" % n)
        self.lg_done = idx + 1
    def lg_all(self):
        if self.lg_done < self.lg_n:
            self.A("s_waitcnt lgkmcnt(0)")
        self.lg_done = self.lg_n
    def soff(self, b, tile, extra=0):
        key = (b, tile, extra)
        if key in self.soff_cache: return self.soff_cache[key]
        if tile == 18 and extra == 0: return S_O18[b]
        if tile == 0 and extra == 0: return S_BASE[b]
        r = S_OT[self.soff_rr % len(S_OT)]; self.soff_rr += 1
        for k in [k for k, v in self.soff_cache.items() if v == r]: del self.soff_cache[k]
        if tile == 18:
            self.A("s_add_u32 s%d, s%d, 0x%x" % (r, S_O18[b], extra))
        else:
            self.A("s_add_u32 s%d, s%d, 0x%x" % (r, S_BASE[b], tile * TS["v"] + extra))
        self.soff_cache[key] = r
        return r
    def emit_load(self, p, slot, pol):
        if p[1] == "K":
            b, _, j, m = p; tile = j; imm = m * 1024; voff = V_KOFF; srd = S_K
        else:
            b, _, pi, mu, cb = p; tile = 2 * pi; imm = mu * 1024 + cb * 128; srd = S_V
            voff = V_VOFF9 if pi == 9 else V_VOFF
        polx = (" " + pol) if pol else ""
        if slot[0] == "r":
            so = self.soff(b, tile)
            t = "buffer_load_dwordx4 %s, v%d, s[%d:%d], s%d offen%s%s" % (vr(slot[1], 4), voff, srd, srd + 3, so, (" offset:%d" % imm) if imm else "", polx)
        else:
            self.A("s_add_u32 m0, s%d, 0x%x" % (S_T2, slot[1] * 1024))
            so = self.soff(b, tile, imm)
            t = "buffer_load_dwordx4 v%d, s[%d:%d], s%d offen%s lds" % (voff, srd, srd + 3, so, polx)
        self.nloads += 1
        return self.vm_issue(t)

    def run(self):
        A = self.A; cfg = self.cfg; items = self.items
        uses = [i for i, it in enumerate(items) if it[0] == "use"]
        kept = set(); loadq = deque()
        for i in uses:
            _, p, keep, fn = items[i][:4]
            if p not in kept: loadq.append((i, p))
            if keep: kept.add(p)
            else: kept.discard(p)
        free = deque([("l", s) for s in range(cfg["nlds"])] + [("r", SLOT0 + 4 * s) for s in range(cfg["nreg"])])
        if cfg.get("reg_first"):
            free = deque([("r", SLOT0 + 4 * s) for s in range(cfg["nreg"])] + [("l", s) for s in range(cfg["nlds"])])
        temps = deque(LT)
        ldsread = {}
        state = {"cap": cfg["cap0"], "pol": cfg.get("pol", "nt")}
        for i_, it_ in enumerate(items):
            if it_[0] == "release":
                state["limit"] = i_
                n_ = cfg.get("gw_early", 0); j_ = i_
                while n_ > 0:
                    j_ += 1
                    if items[j_][0] == "use": n_ -= 1
                if j_ > i_: state["limit"] = j_ + 1
        def issue_loads():
            while loadq and free and (self.fifo_n - self.done) < state["cap"] and not state.get("hold") and (state.get("limit") is None or loadq[0][0] < state["limit"]):
                i, p = loadq[0]
                slot = None
                if cfg.get("pref", 1):
                    want = "l" if p[1] == "K" else "r"
                    for sl in free:
                        if sl[0] == want: slot = sl; break
                    if slot is None:
                        if p[1] == "V": break
                        slot = free[0]
                    free.remove(slot)
                else:
                    slot = free.popleft()
                loadq.popleft()
                self.slot_of[p] = slot
                pol = state["pol"]
                nth = self.load_count.get(p, 0); self.load_count[p] = nth + 1
                if cfg.get("polK0") is not None and p[0] == 0 and p[1] == "K" and nth == 0: pol = cfg["polK0"]
                if cfg.get("polK0r") is not None and p[0] == 0 and p[1] == "K" and nth == 1: pol = cfg["polK0r"]
                if cfg.get("l2k0") is not None and p[0] == 0 and p[1] == "K" and nth == 0 and p[2] >= cfg["l2k0"]: pol = ""
                if cfg.get("l2b1") and p[0] == 1 and nth == 0 and p not in self.keep1: pol = ""
                if cfg.get("polV0") is not None and p[0] == 0 and p[1] == "V": pol = cfg["polV0"]
                if cfg.get("polV1") is not None and p[0] == 1 and p[1] == "V": pol = cfg["polV1"]
                if cfg.get("polK1") is not None and p[0] == 1 and p[1] == "K": pol = cfg["polK1"]
                if cfg.get("polall") is not None: pol = cfg["polall"]
                if pol == "def": pol = ""
                if pol == "sc1nt": pol = "sc1 nt"
                if pol == "sc01nt": pol = "sc0 sc1 nt"
                self.load_idx[p] = self.emit_load(p, slot, pol)
                self.loaded_for[i] = True
        self.loaded_for = {}
        resident_use = {}
        LA = cfg.get("la", 3)
        def prefetch_lds(pos):
            cnt = 0
            for q in range(pos, min(pos + 8, len(uses))):
                ui = uses[q]
                if ui in ldsread:
                    cnt += 1; continue
                p = items[ui][1]
                if not (ui in self.loaded_for or self.kept_ok(ui)): break
                if self.slot_of[p][0] != "l": continue
                if cnt >= LA or not temps: break
                if any(items[x][0] == "code" and len(items[x]) > 2 and items[x][2] == "fence" for x in range(uses[pos], ui)): break
                self.vm_wait(self.load_idx[p])
                t = temps.popleft()
                li = self.lg_issue("ds_read_b128 %s, v%d offset:%d" % (vr(t, 4), V_LDSRD, self.slot_of[p][1] * 1024))
                ldsread[ui] = (t, li); cnt += 1
        lastkeep = {}
        self.keptset = set()
        self.kept_ok = lambda ui: items[ui][1] in self.keptset
        pos = 0
        for f in cfg.get("pre", []): f(self)
        issue_loads()
        for i, it in enumerate(items):
            if it[0] == "use":
                _, p, keep, fn = it[:4]
                assert (i in self.loaded_for) or (p in self.keptset), ("piece not loaded before use (deadlock)", i, p)
                prefetch_lds(pos)
                slot = self.slot_of[p]
                if slot[0] == "r":
                    self.vm_wait(self.load_idx[p])
                    fn(slot[1])
                else:
                    t, li = ldsread.pop(i)
                    self.lg_wait(li)
                    fn(t)
                    temps.append(t)
                if keep: self.keptset.add(p)
                else:
                    self.keptset.discard(p); free.append(slot)
                pos += 1
                issue_loads()
            elif it[0] == "code":
                it[1](self)
                issue_loads()
            elif it[0] == "drain":
                if self.fifo_n - self.done > it[1]:
                    self.vm_wait(self.fifo_n - 1 - it[1])
                issue_loads()
            elif it[0] == "hold":
                state["hold"] = True
            elif it[0] == "release":
                state["hold"] = False; state["limit"] = None
            elif it[0] == "code_nl":
                it[1](self)
            elif it[0] == "bgdrain":
                n = max(0, state["cap"] - cfg.get("dstep", 4))
                if loadq and free and (state.get("limit") is None or loadq[0][0] < state["limit"]) and self.fifo_n - self.done > n:
                    self.vm_wait(self.fifo_n - 1 - n)
                issue_loads()
            elif it[0] == "loadall":
                while loadq and free and (state.get("limit") is None or loadq[0][0] < state["limit"]):
                    if cfg.get("pref", 1) and loadq[0][1][1] == "V" and not any(sl[0] == "r" for sl in free): break
                    n = self.fifo_n - self.done
                    tgt = max(0, state["cap"] - cfg.get("dstep", 4))
                    if n > tgt:
                        self.vm_wait(self.fifo_n - 1 - tgt)
                    issue_loads()
            elif it[0] == "cap":
                state["cap"] = it[1]; issue_loads()
            elif it[0] == "pol":
                state["pol"] = it[1]
        assert not loadq

def gen_setup1(A, cfg):
    A.comment("attention setup (part 1: what the first loads need)")
    A("s_lshr_b32 s%d, s2, 3" % S_H)
    A("s_and_b32 s%d, s2, 7" % S_SUB)
    A("s_sub_u32 s%d, s%d, 1" % (S_SUB, S_SUB))
    if cfg.get("rotsub", 1):
        A("s_add_u32 s%d, s%d, s%d" % (S_SUB, S_SUB, S_H))
        A("s_mul_i32 s%d, s%d, 37" % (S_T0, S_SUB))
        A("s_lshr_b32 s%d, s%d, 8" % (S_T0, S_T0))
        A("s_mul_i32 s%d, s%d, 7" % (S_T0, S_T0))
        A("s_sub_u32 s%d, s%d, s%d" % (S_SUB, S_SUB, S_T0))
    if cfg.get("gil"):
        TS["v"] = 28 * 4096
        A("s_mul_i32 s%d, s%d, 7" % (S_T0, S_W))
        A("s_add_u32 s%d, s%d, s%d" % (S_T0, S_T0, S_SUB))
    else:
        TS["v"] = 16384
        A("s_mul_i32 s%d, s%d, 73" % (S_T0, S_SUB))
        A("s_add_u32 s%d, s%d, s%d" % (S_T0, S_T0, S_W))
    A("s_lshl_b32 s%d, s%d, 12" % (S_T0, S_T0))
    A("s_lshl_b32 s%d, s%d, 21" % (S_T1, S_H))
    A("s_add_u32 s%d, s%d, s%d" % (S_BASE[0], S_T0, S_T1))
    A("s_add_u32 s%d, s%d, 0x4000000" % (S_BASE[1], S_BASE[0]))
    A("s_mul_i32 s%d, s%d, %d" % (S_T2, S_W, NLDS * 1024))
    A("s_add_u32 s%d, s%d, %d" % (S_T2, S_T2, LDS_SLOTS))
    A("v_bfe_u32 v%d, v0, 2, 2" % TA)
    A("v_lshlrev_b32 v%d, 8, v%d" % (V_KOFF, TA))
    A("v_lshrrev_b32 v%d, 4, v0" % TB)
    A("v_lshl_add_u32 v%d, v%d, 6, v%d" % (V_KOFF, TB, V_KOFF))
    A("v_and_b32 v%d, 3, v0" % TC)
    A("v_lshl_add_u32 v%d, v%d, 4, v%d" % (V_KOFF, TC, V_KOFF))

def gen_setup2(A, cfg):
    A.comment("attention setup (part 2)")
    if cfg.get("gil"):
        A("s_mul_i32 s%d, s%d, 7" % (S_T0, S_W))
        A("s_add_u32 s%d, s%d, s%d" % (S_T0, S_T0, S_SUB))
        A("s_cmp_lt_u32 s%d, 8" % S_T0)
    else:
        A("s_cmp_eq_u32 s%d, 6" % S_SUB)
        A("s_cselect_b32 s%d, 2, 1" % S_T0)
        A("s_cmp_lt_u32 s%d, s%d" % (S_W, S_T0))
    A("s_cselect_b32 s%d, 1, 0" % S_T1)
    for b in (0, 1):
        A("s_add_u32 s%d, s%d, 0x%x" % (S_O18[b], S_BASE[b], 18 * TS["v"]))
        A("s_cmp_eq_u32 s%d, 1" % S_T1)
        A("s_cselect_b32 s%d, s%d, 0x80000000" % (S_O18[b], S_O18[b]))
    for u in range(4):
        A("s_mov_b32 s%d, 0x%x" % (S_MASK[u], 0x11111111 << u))
        A("s_mov_b32 s%d, 0x%x" % (S_MASK[u] + 1, 0x11111111 << u))
    A("s_cmp_eq_u32 s%d, 1" % S_T1)
    A("s_cselect_b32 s%d, 0x44444444, 0" % S_M18)
    A("s_mov_b32 s%d, s%d" % (S_M18 + 1, S_M18))
    A("s_mov_b32 s%d, 0xcccccccc" % S_MG1)
    A("s_mov_b32 s%d, 0xcccccccc" % (S_MG1 + 1))
    SM["mimic"] = cfg.get("mimic", 0)
    A("s_mov_b32 s%d, 0x%x" % (S_C, f2u(LOG2E if SM["mimic"] else SCALE_C)))
    A("s_mov_b32 s%d, 0x%x" % (S_SC, f2u(128.0 ** -0.5)))
    A("s_lshl_b32 s%d, s%d, 9" % (S_Q, S_H))
    A("s_add_u32 s%d, s%d, 0x%x" % (S_Q, S_Q, OFF_Q))
    A("s_lshl_b32 s%d, s%d, 3" % (S_P, S_H))
    A("s_add_u32 s%d, s%d, s%d" % (S_P, S_P, S_SUB))
    A("s_lshl_b32 s%d, s%d, 11" % (S_P, S_P))
    A("s_add_u32 s%d, s%d, 0x%x" % (S_P, S_P, OFF_PART))
    A("v_lshrrev_b32 v%d, 4, v0" % TB)
    A("v_and_b32 v%d, 7, v0" % TC)
    A("v_lshlrev_b32 v%d, 4, v%d" % (TC, TC))
    A("v_lshl_add_u32 v%d, v%d, 8, v%d" % (TC, TB, TC))
    A("v_bfe_u32 v%d, v0, 3, 1" % TA)
    A("v_mul_u32_u24 v%d, 0x%x, v%d" % (V_VOFF, TS["v"], TA))
    A("v_add_u32 v%d, v%d, v%d" % (V_VOFF, V_VOFF, TC))
    A("v_lshl_add_u32 v%d, v%d, 30, v%d" % (V_VOFF9, TA, TC))
    A("v_and_b32 v%d, 1, v0" % TA)
    A("v_mov_b32 v%d, 0xffff" % TB)
    A("v_lshlrev_b32 v%d, 4, v%d" % (TC, TA))
    A("v_lshlrev_b32 v%d, v%d, v%d" % (V_HALF, TC, TB))
    A("v_lshlrev_b32 v%d, 4, v0" % V_LDSRD)
    A("v_add_u32 v%d, s%d, v%d" % (V_LDSRD, S_T2, V_LDSRD))
    A("v_bfe_u32 v%d, v0, 4, 1" % TA)
    A("v_lshlrev_b32 v%d, 5, v%d" % (V_PUB, TA))
    A("v_bfe_u32 v%d, v0, 1, 1" % TA)
    A("v_lshl_add_u32 v%d, v%d, 4, v%d" % (V_PUB, TA, V_PUB))
    A("v_lshrrev_b32 v%d, 5, v0" % TA)
    A("v_lshl_add_u32 v%d, v%d, 3, v%d" % (V_PUB, TA, V_PUB))
    A("v_bfe_u32 v%d, v0, 2, 2" % TA)
    A("v_lshl_add_u32 v%d, v%d, 1, v%d" % (V_PUB, TA, V_PUB))
    A("v_and_b32 v%d, 1, v0" % TA)
    A("v_add_u32 v%d, v%d, v%d" % (V_PUB, TA, V_PUB))
    A("s_lshl_b32 s%d, s%d, 6" % (S_T0, S_W))
    A("v_add_u32 v%d, s%d, v%d" % (V_PUB, S_T0, V_PUB))
    A("v_lshlrev_b32 v%d, 3, v%d" % (V_PUB, V_PUB))
    A("v_lshlrev_b32 v%d, 3, v0" % TA)
    A("v_add_u32 v%d, 1024, v%d" % (TA, TA))
    A("v_mov_b32 v%d, 0x7f000000" % TB)
    A("v_cmp_gt_u32 vcc, 2, v0")
    A("v_cndmask_b32 v%d, v%d, v%d, vcc" % (TA, TB, TA))
    A("s_cmp_eq_u32 s%d, 2" % S_W)
    A("s_cselect_b64 vcc, -1, 0")
    A("v_cndmask_b32 v%d, v%d, v%d, vcc" % (V_PUB, V_PUB, TA))
    A("s_cmp_eq_u32 s%d, 3" % S_W)
    A("s_cselect_b64 vcc, -1, 0")
    A("v_cndmask_b32 v%d, v%d, v%d, vcc" % (V_PUB, V_PUB, TB))
    gen_bank_masks(A)
    A("s_mov_b32 s%d, 0xaaaaaaaa" % S_MODD)
    A("s_mov_b32 s%d, 0xaaaaaaaa" % (S_MODD + 1))
    A("s_waitcnt lgkmcnt(0)")
    A("s_mul_i32 s%d, s%d, 0x%x" % (S_TAG, S_TAG, HASH_MUL))
    A("s_add_u32 s%d, s%d, 0x%x" % (S_TAG, S_TAG, HASH_ADD))

_lab = [0]
def newlab(p):
    _lab[0] += 1
    return "L_%s_%d" % (p, _lab[0])

def poll_issue(L, b):
    def f(S):
        A = S.A
        A("v_and_b32 v%d, 0xff, v%d" % (V_T7, V_KOFF))
        A("v_lshlrev_b32 v%d, 1, v%d" % (V_T7, V_T7))
        A("s_add_u32 s%d, s%d, 0x%x" % (S_T0, S_Q, (L * 2 + b) * 16384))
        S.vm_issue("buffer_load_dwordx4 %s, v%d, s[%d:%d], s%d offen sc1" % (vr(PQ, 4), V_T7, S_WS, S_WS + 3, S_T0))
        S.poll_idx = S.vm_issue("buffer_load_dwordx4 %s, v%d, s[%d:%d], s%d offen offset:16 sc1" % (vr(PQ + 4, 4), V_T7, S_WS, S_WS + 3, S_T0))
    return f

def poll_check(L, b):
    def chk(A):
        A("v_min3_u32 v%d, v%d, v%d, v%d" % (V_X0, PQ + 1, PQ + 3, PQ + 5))
        A("v_max3_u32 v%d, v%d, v%d, v%d" % (V_X1, PQ + 1, PQ + 3, PQ + 5))
        A("v_min_u32 v%d, v%d, v%d" % (V_X0, V_X0, PQ + 7))
        A("v_max_u32 v%d, v%d, v%d" % (V_X1, V_X1, PQ + 7))
        A("v_cmp_ne_u32 vcc, s%d, v%d" % (S_TAG, V_X0))
        A("v_cmp_ne_u32 s[%d:%d], s%d, v%d" % (S_EX, S_EX + 1, S_TAG, V_X1))
        A("s_or_b64 vcc, vcc, s[%d:%d]" % (S_EX, S_EX + 1))
    def f(S):
        A = S.A
        ok = newlab("qok"); retry = newlab("qretry")
        S.vm_wait(S.poll_idx)
        chk(A)
        A.branch("s_cbranch_vccz %s" % ok)
        A("s_mov_b32 s%d, 0x2000" % S_SPIN)
        A.label(retry)
        A("s_sleep 2")
        A("v_and_b32 v%d, 0xff, v%d" % (V_T7, V_KOFF))
        A("v_lshlrev_b32 v%d, 1, v%d" % (V_T7, V_T7))
        A("s_add_u32 s%d, s%d, 0x%x" % (S_T0, S_Q, (L * 2 + b) * 16384))
        A("buffer_load_dwordx4 %s, v%d, s[%d:%d], s%d offen sc1" % (vr(PQ, 4), V_T7, S_WS, S_WS + 3, S_T0))
        A("buffer_load_dwordx4 %s, v%d, s[%d:%d], s%d offen offset:16 sc1" % (vr(PQ + 4, 4), V_T7, S_WS, S_WS + 3, S_T0))
        A("s_waitcnt vmcnt(0)")
        chk(A)
        A("s_sub_u32 s%d, s%d, 1" % (S_SPIN, S_SPIN))
        A.branch("s_cbranch_scc1 %s" % ok)
        A.branch("s_cbranch_vccnz %s" % retry)
        A.label(ok)
        for m in range(4):
            for k in range(4):
                A("v_cndmask_b32_e64 v%d, 0, v%d, s[%d:%d]" % (QB + 4 * m + k, PQ + 2 * k, S_BANK[m], S_BANK[m] + 1))
    return f

def group_wait(inst):
    def f(S):
        A = S.A
        ok = newlab("gok"); retry = newlab("grt")
        A("s_lshl_b32 s%d, s%d, 11" % (S_T0, S_SUB))
        A("s_sub_u32 s%d, s%d, s%d" % (S_T0, S_P, S_T0))
        A("s_add_u32 s%d, s%d, 0x%x" % (S_T0, S_T0, inst * 32 * 8 * 2048 + 1024))
        A("v_and_b32 v%d, 7, v0" % V_T7)
        A("v_min_u32 v%d, 6, v%d" % (V_T7, V_T7))
        A("v_lshlrev_b32 v%d, 11, v%d" % (V_T7, V_T7))
        A("s_mov_b32 s%d, 0x2000" % S_SPIN)
        A.label(retry)
        A("buffer_load_dwordx2 %s, v%d, s[%d:%d], s%d offen sc1" % (vr(PQ, 2), V_T7, S_WS, S_WS + 3, S_T0))
        A("s_waitcnt vmcnt(0)")
        A("v_cmp_ne_u32 vcc, s%d, v%d" % (S_TAG, PQ + 1))
        A.branch("s_cbranch_vccz %s" % ok)
        A("s_sleep 4")
        A("s_sub_u32 s%d, s%d, 1" % (S_SPIN, S_SPIN))
        A.branch("s_cbranch_scc0 %s" % retry)
        A.label(ok)
        S.done = S.fifo_n
    return f

S_BANK = [54, 56, 58, 60]

def gen_bank_masks(A):
    for m in range(4):
        v = (0xF << (4 * m)) * 0x00010001
        A("s_mov_b32 s%d, 0x%x" % (S_BANK[m], v))
        A("s_mov_b32 s%d, 0x%x" % (S_BANK[m] + 1, v))

def qp(a): return "quad_perm:[%d,%d,%d,%d] row_mask:0xf bank_mask:0xf" % tuple(a)

def extract_ops(j, b):
    D = DK[j % 3]; u = j & 3; sp = SP[b] + (j >> 2)
    ops = []
    if u == 0:
        ops.append("v_add_f32_dpp v%d, v%d, v%d %s" % (V_X0, D + 1, D + 0, qp([1] * 4)))
    else:
        ops.append("v_add_f32_dpp v%d, v%d, v%d %s" % (V_X0, D + 0, D + 1, qp([0] * 4)))
    if u == 2:
        ops.append("v_add_f32_dpp v%d, v%d, v%d %s" % (V_X1, D + 3, D + 2, qp([3] * 4)))
    else:
        ops.append("v_add_f32_dpp v%d, v%d, v%d %s" % (V_X1, D + 2, D + 3, qp([2] * 4)))
    direct = (u == 0 and j < 16)
    dst = sp if direct else V_X0
    if u in (0, 1):
        ops.append("v_add_f32_dpp v%d, v%d, v%d %s" % (dst, V_X1, V_X0, qp([3] * 4)))
    else:
        ops.append("v_add_f32_dpp v%d, v%d, v%d %s" % (dst, V_X0, V_X1, qp([1] * 4)))
    if not direct:
        mk = S_M18 if j == 18 else S_MASK[u]
        ops.append("v_cndmask_b32_e64 v%d, v%d, v%d, s[%d:%d]" % (sp, sp, V_X0, mk, mk + 1))
    return ops

def emit_ops(ops):
    def f(S):
        for o in ops: S.A(o)
    return f

def k_phase(items, L, b, keepfn, j0=0, j1=NT, first=True, last=True, bg=0):
    if first:
        items.append(("code", lambda S: S.A("v_mov_b32 v%d, 0xff800000" % (SP[b] + 4))))
    for j in range(j0, j1):
        ex = extract_ops(j - 2, b) if j - 2 >= j0 else []
        for m in range(4):
            def fn(areg, j=j, m=m):
                D = DK[j % 3]
                return "v_mfma_f32_16x16x32_bf16 %s, %s, %s, %s" % (vr(D, 4), vr(areg, 4), vr(QB + 4 * m, 4), "0" if m == 0 else vr(D, 4))
            items.append(("use", (b, "K", j, m), keepfn((b, "K", j, m)), fn))
            if ex:
                if m == 0: items.append(("code", emit_ops(ex[0:2])))
                elif m == 2: items.append(("code", emit_ops(ex[2:3])))
                elif m == 3 and len(ex) > 3: items.append(("code", emit_ops(ex[3:])))
        if bg and j % bg == bg - 1:
            items.append(("bgdrain",))
    for j in range(max(j0, j1 - 2), j1):
        items.append(("code", emit_ops(extract_ops(j, b))))

def wave_reduce(A, reg, op):
    for sh in (1, 2, 4, 8):
        A("%s_dpp v%d, v%d, v%d row_shr:%d row_mask:0xf bank_mask:0xf" % (op, reg, reg, reg, sh))
    A("%s_dpp v%d, v%d, v%d row_bcast:15 row_mask:0xa bank_mask:0xf" % (op, reg, reg, reg))
    A("%s_dpp v%d, v%d, v%d row_bcast:31 row_mask:0xc bank_mask:0xf" % (op, reg, reg, reg))

SM = {"mimic": 0}
def lsum_ops(b):
    ops = []
    for sh in (1, 2, 4, 8):
        ops.append("v_add_f32_dpp v%d, v%d, v%d row_shr:%d row_mask:0xf bank_mask:0xf" % (V_X0, V_X0, V_X0, sh))
    ops.append("v_add_f32_dpp v%d, v%d, v%d row_bcast:15 row_mask:0xa bank_mask:0xf" % (V_X0, V_X0, V_X0))
    ops.append("v_add_f32_dpp v%d, v%d, v%d row_bcast:31 row_mask:0xc bank_mask:0xf" % (V_X0, V_X0, V_X0))
    ops.append("v_readlane_b32 s%d, v%d, 63" % (S_L[b], V_X0))
    return ops

def softmax(b, defer=False):
    def f(S):
        A = S.A; sp = SP[b]
        if SM["mimic"]:
            for k in range(5): A("v_cvt_pk_bf16_f32 v%d, v%d, v%d" % (sp + k, sp + k, sp + k))
            for k in range(5): A("v_and_b32 v%d, 0xffff0000, v%d" % (sp + k, sp + k))
            for k in range(5): A("v_mul_f32 v%d, s%d, v%d" % (sp + k, S_SC, sp + k))
            for k in range(5): A("v_cvt_pk_bf16_f32 v%d, v%d, v%d" % (sp + k, sp + k, sp + k))
            for k in range(5): A("v_and_b32 v%d, 0xffff0000, v%d" % (sp + k, sp + k))
        A("v_max3_f32 v%d, v%d, v%d, v%d" % (V_X0, sp, sp + 1, sp + 2))
        A("v_max3_f32 v%d, v%d, v%d, v%d" % (V_X0, V_X0, sp + 3, sp + 4))
        wave_reduce(A, V_X0, "v_max_f32")
        A("v_readlane_b32 s%d, v%d, 63" % (S_M[b], V_X0))
        A("v_mov_b32 v%d, s%d" % (V_X1, S_M[b]))
        A("v_mul_f32 v%d, s%d, v%d" % (V_X1, S_C, V_X1))
        for k in range(5):
            A("v_fma_f32 v%d, v%d, s%d, -v%d" % (sp + k, sp + k, S_C, V_X1))
        for k in range(5):
            A("v_exp_f32 v%d, v%d" % (sp + k, sp + k))
        A("v_add_f32 v%d, v%d, v%d" % (V_X0, sp, sp + 1))
        A("v_add_f32 v%d, v%d, v%d" % (V_X1, sp + 2, sp + 3))
        A("v_add_f32 v%d, v%d, v%d" % (V_X0, V_X0, sp + 4))
        for k in range(5):
            A("v_cvt_pk_bf16_f32 v%d, v%d, v%d" % (sp + k, sp + k, sp + k))
        A("v_add_f32 v%d, v%d, v%d" % (V_X0, V_X0, V_X1))
        if not defer:
            for o in lsum_ops(b): A(o)
    return f

def build_b(A, B, Y, mu):
    for rho in range(4):
        sh = 4 * ((rho - mu) & 3)
        ctl = "quad_perm:[0,1,2,3]" if sh == 0 else "row_ror:%d" % sh
        A("v_mov_b32_dpp v%d, v%d %s row_mask:0xf bank_mask:0x%x" % (B + rho, Y, ctl, 1 << rho))

def build_ops(B, Y, mu):
    ops = []
    for rho in range(4):
        sh = 4 * ((rho - mu) & 3)
        ctl = "quad_perm:[0,1,2,3]" if sh == 0 else "row_ror:%d" % sh
        ops.append("v_mov_b32_dpp v%d, v%d %s row_mask:0xf bank_mask:0x%x" % (B + rho, Y, ctl, 1 << rho))
    return ops

def v_phase(items, L, b, keepfn, bg=0, lsum=False):
    extra = lsum_ops(b) if lsum else []
    def yop(pi):
        return "v_and_b32_dpp v%d, v%d, v%d %s" % (YR[pi & 1], SP[b] + (pi >> 1), V_HALF, qp([2, 2, 3, 3] if (pi & 1) else [0, 0, 1, 1]))
    pre = ["v_mov_b32 v%d, 0" % (BV[0] + r) for r in range(8)]
    pre.insert(0, yop(0))
    pre += build_ops(BV[0], YR[0], 0)
    items.append(("code", emit_ops(pre)))
    N = 40
    for n in range(N):
        pi, mu = n >> 2, n & 3
        par = n & 1
        nb = build_ops(BV[(n + 1) & 1], YR[((n + 1) >> 2) & 1], (n + 1) & 3) if n + 1 < N else []
        for cb in range(2):
            first = (n == 0)
            def fn(areg, par=par, cb=cb, first=first):
                return "v_mfma_f32_16x16x32_bf16 %s, %s, %s, %s" % (vr(DV[cb], 4), vr(areg, 4), vr(BV[par], 4), "0" if first else vr(DV[cb], 4))
            p = (b, "V", pi, mu, cb)
            items.append(("use", p, keepfn(p), fn))
            ops = nb[2 * cb:2 * cb + 2]
            if mu == 1 and cb == 0 and pi < 9: ops = ops + [yop(pi + 1)]
            if extra and cb == 1: ops = ops + [extra.pop(0)]
            if ops: items.append(("code", emit_ops(ops)))
        if bg and mu % bg == bg - 1:
            items.append(("bgdrain",))

def g_reduce(A, D, t1, t2, R, smask):
    A("v_permlane32_swap_b32 v%d, v%d" % (D, D + 1))
    A("v_permlane32_swap_b32 v%d, v%d" % (D + 2, D + 3))
    A("v_add_f32_dpp v%d, v%d, v%d %s" % (t1, D + 1, D, qp([2, 3, 2, 3])))
    A("v_add_f32_dpp v%d, v%d, v%d %s" % (t2, D + 2, D + 3, qp([0, 1, 0, 1])))
    A("v_cndmask_b32_e64 v%d, v%d, v%d, s[%d:%d]" % (R, t1, t2, smask, smask + 1))

def combine(L, b):
    inst = L * 2 + b
    def f(S):
        A = S.A
        t = BV[0]
        S.lg_all()
        g_reduce(A, DV[0], t, t + 1, t + 2, S_MG1)
        g_reduce(A, DV[1], t + 3, t + 4, t + 5, S_MG1)
        A("s_lshl_b32 s%d, s%d, 9" % (S_T0, S_W))
        A("s_add_u32 m0, s%d, %d" % (S_T0, LDS_SCR))
        A("ds_write_addtid_b32 v%d offset:0" % (t + 2))
        A("ds_write_addtid_b32 v%d offset:256" % (t + 5))
        A("v_mov_b32 v%d, s%d" % (t, S_M[b]))
        A("v_mov_b32 v%d, s%d" % (t + 1, S_L[b]))
        A("s_lshl_b32 s%d, s%d, 3" % (S_T0, S_W))
        A("s_add_u32 s%d, s%d, %d" % (S_T0, S_T0, LDS_STAT))
        A("v_mov_b32 v%d, s%d" % (t + 3, S_T0))
        A("ds_write_b64 v%d, %s" % (t + 3, vr(t, 2)))
        A("s_waitcnt lgkmcnt(0)")
        A("s_barrier")
        st = DV[0]
        A("v_mov_b32 v%d, %d" % (t + 3, LDS_STAT))
        A("ds_read_b128 %s, v%d" % (vr(st, 4), t + 3))
        A("ds_read_b128 %s, v%d offset:16" % (vr(st + 4, 4), t + 3))
        A("s_and_b32 s%d, s%d, 1" % (S_T0, S_W))
        A("s_lshl_b32 s%d, s%d, 8" % (S_T0, S_T0))
        A("s_add_u32 m0, s%d, %d" % (S_T0, LDS_SCR))
        for w in range(4):
            A("ds_read_addtid_b32 v%d offset:%d" % (t + 4 + w, w * 512))
        A("s_waitcnt lgkmcnt(4)")
        A("v_max3_f32 v%d, v%d, v%d, v%d" % (t, st, st + 2, st + 4))
        A("v_max_f32 v%d, v%d, v%d" % (t, t, st + 6))
        for w in range(4):
            A("v_sub_f32 v%d, v%d, v%d" % (st + 2 * w, st + 2 * w, t))
            A("v_mul_f32 v%d, s%d, v%d" % (st + 2 * w, S_C, st + 2 * w))
        for w in range(4):
            A("v_exp_f32 v%d, v%d" % (st + 2 * w, st + 2 * w))
        A("v_mul_f32 v%d, v%d, v%d" % (t + 1, st, st + 1))
        for w in range(1, 4):
            A("v_fmac_f32 v%d, v%d, v%d" % (t + 1, st + 2 * w, st + 2 * w + 1))
        A("v_mul_f32 v%d, s%d, v%d" % (t, S_C, t))
        A("s_waitcnt lgkmcnt(0)")
        A("v_mul_f32 v%d, v%d, v%d" % (t + 2, st, t + 4))
        for w in range(1, 4):
            A("v_fmac_f32 v%d, v%d, v%d" % (t + 2, st + 2 * w, t + 4 + w))
        A("v_cndmask_b32_e64 v%d, v%d, v%d, s[%d:%d]" % (t, t, t + 1, S_MODD, S_MODD + 1))
        A("s_cmp_lt_u32 s%d, 2" % S_W)
        A("s_cselect_b64 vcc, -1, 0")
        A("v_cndmask_b32 v%d, v%d, v%d, vcc" % (t + 2, t, t + 2))
        A("v_mov_b32 v%d, s%d" % (t + 3, S_TAG))
        A("s_add_u32 s%d, s%d, 0x%x" % (S_T0, S_P, inst * 32 * 8 * 2048))
        S.vm_issue("buffer_store_dwordx2 %s, v%d, s[%d:%d], s%d offen sc1" % (vr(t + 2, 2), V_PUB, S_WS, S_WS + 3, S_T0))
        A("s_barrier")
        S.lg_done = S.lg_n
    return f
S_MODD = 62

S_STAMP = 64
def stamp(k):
    def f(S):
        if not S.cfg.get("stamps"): return
        A = S.A
        A("s_memrealtime s[%d:%d]" % (S_EX, S_EX + 1))
        A("s_waitcnt lgkmcnt(0)")
        A("s_mov_b32 s%d, s%d" % (S_STAMP + k, S_EX))
        S.lg_done = S.lg_n
    return f

OFF_STAMP = 0x700000
def dump_stamps(A, n):
    A("s_lshl_b32 s%d, s2, 2" % S_T0)
    A("s_add_u32 s%d, s%d, s%d" % (S_T0, S_T0, S_W))
    A("s_lshl_b32 s%d, s%d, 7" % (S_T0, S_T0))
    A("s_add_u32 s%d, s%d, 0x%x" % (S_T0, S_T0, OFF_STAMP))
    A("v_mov_b32 v1, 0")
    for k in range(n):
        A("v_mov_b32 v2, s%d" % (S_STAMP + k))
        A("buffer_store_dword v2, v1, s[%d:%d], s%d offen offset:%d" % (S_WS, S_WS + 3, S_T0, 4 * k))
        A("s_nop 1")

def gen_attn(A, cfg):
    gen_setup1(A, cfg)
    S = Sched(A, cfg)
    it = S.items
    def first(S):
        if cfg.get("tlbwarm", 1):
            A("v_mov_b32 v%d, 0" % LT[2])
            for (srd_, b_) in ((S_V, 1), (S_K, 0), (S_V, 0)):
                S.vm_issue("buffer_load_dword v%d, v%d, s[%d:%d], s%d offen nt" % (LT[2] + 1, LT[2], srd_, srd_ + 3, S_BASE[b_]))
        if cfg.get("pf_attn"):
            S.fifo_n += cfg["code_prefetch"](A, "L_attn", "L_chain", cfg["pf_attn"], LT[0], LT[1])
        gen_setup2(A, cfg)
    it.append(("code", first))
    wrap = lambda lst: None
    sched = cfg["sched"]
    sched(S, it)
    for i, x in enumerate(it):
        if x[0] == "use":
            fn = x[3]
            it[i] = ("use", x[1], x[2], (lambda areg, fn=fn: A(fn(areg))))
    S.run()
    if cfg.get("stamps"):
        dump_stamps(A, cfg["stamps"])
    A("s_waitcnt vmcnt(0)")
    A.branch("s_branch L_end")
    return S

def sched_simple(S, it):
    drop = lambda p: False
    for (L, b) in ((0, 1), (0, 0), (1, 1), (1, 0)):
        it.append(("code", poll_issue(L, b)))
        it.append(("code", poll_check(L, b), "fence"))
        k_phase(it, L, b, drop)
        it.append(("code", softmax(b)))
        v_phase(it, L, b, drop)
        it.append(("code", combine(L, b), "fence"))

def sched_pipe(S, it):
    cfg = S.cfg
    C = cfg["nlds"] + cfg["nreg"]; R = cfg.get("ring", 12)
    order = [(1, "K", j, m) for j in range(18) for m in range(4)] + [(1, "V", pi, mu, cb) for pi in range(9) for mu in range(4) for cb in range(2)]
    keep1 = set(order[:C - R])
    S.keep1 = keep1
    drop = lambda p: False
    F = "fence"
    it.append(("code", stamp(0), F))
    cap = cfg["cap0"]
    step = cfg.get("dstep", 4)
    for _ in range(max(0, (cfg.get("npre", 76) - cap) // step)):
        it.append(("drain", cap - step))
    it.append(("code", poll_issue(0, 1)))
    it.append(("code", poll_check(0, 1), F))
    it.append(("code", stamp(1), F))
    k_phase(it, 0, 1, lambda p: p in keep1)
    it.append(("code", softmax(1, True)))
    it.append(("code", stamp(2), F))
    it.append(("code", poll_issue(0, 0)))
    v_phase(it, 0, 1, lambda p: p in keep1, lsum=True)
    it.append(("code", combine(0, 1), F))
    it.append(("code", stamp(3), F))
    it.append(("code", poll_check(0, 0), F))
    k_phase(it, 0, 0, drop)
    it.append(("code", softmax(0)))
    it.append(("code", stamp(4), F))
    it.append(("loadall",))
    it.append(("code", poll_issue(1, 1)))
    it.append(("code", poll_check(1, 1), F))
    it.append(("code", stamp(5), F))
    it.append(("cap", cfg.get("cap4", cfg.get("cap1", 60))))
    k_phase(it, 1, 1, drop, bg=cfg.get("bgk", 0))
    it.append(("code", softmax(1, True)))
    v_phase(it, 1, 1, drop, bg=cfg.get("bgv", 0), lsum=True)
    it.append(("code", combine(1, 1), F))
    it.append(("cap", cfg.get("cap1", 60)))
    it.append(("code", stamp(6), F))
    v_phase(it, 0, 0, lambda p: p[2] < 9)
    it.append(("code", combine(0, 0), F))
    it.append(("code", stamp(7), F))
    it.append(("cap", cfg.get("cap7", cfg.get("cap1", 60))))
    if cfg.get("gwait"):
        it.append(("hold",))
        it.append(("code_nl", group_wait(0)))
        it.append(("release",))
    it.append(("loadall",))
    it.append(("code", poll_issue(1, 0)))
    it.append(("code", poll_check(1, 0), F))
    it.append(("code", stamp(8), F))
    k_phase(it, 1, 0, drop)
    it.append(("code", softmax(0, True)))
    it.append(("code", stamp(9), F))
    v_phase(it, 1, 0, drop, lsum=True)
    it.append(("code", combine(1, 0), F))
    it.append(("code", stamp(10), F))
```

```python
from collections import deque
from emit import *
from layout import *

V_KOFF, V_VOFF, V_VOFF9, V_HALF, V_LDSRD, V_PUB, V_T7 = 1, 2, 3, 4, 5, 6, 7
R1 = 8
QB = R1
BV = [R1, R1 + 4]
DV = [R1 + 8, R1 + 12]
R2 = 24
DK = [R2, R2 + 4, R2 + 8]
YR = [R2, R2 + 1]
PQ = 28
TA, TB, TC, TD = 32, 33, 34, 35
SP = {1: 36, 0: 41}
LT = [46, 50, 54, 58]
V_X0, V_X1 = 62, 63
SLOT0 = 64
S_WS = 4; S_K = 8; S_V = 12
S_TAG, S_W, S_H, S_SUB = 16, 17, 18, 19
S_BASE = {0: 20, 1: 21}
S_O18 = {0: 22, 1: 23}
S_OT = [24, 25, 26, 27]
S_C = 28
S_SPIN = 29
S_MASK = [30, 32, 34, 36]
S_M18 = 38
S_MG1 = 40
S_M = {0: 42, 1: 43}
S_L = {0: 44, 1: 45}
S_Q = 46; S_P = 47
S_T0, S_T1 = 48, 49
S_EX = 50
S_T2 = 52
S_SC = 53
LDS_SCR = 0
LDS_STAT = 2048
LDS_SLOTS = 8192
NLDS = 38
NT = 19
TS = {"v": 16384}

class Sched:
    def __init__(self, A, cfg):
        self.A = A; self.cfg = cfg
        self.items = []
        self.fifo_n = 0
        self.done = 0
        self.lg_n = 0; self.lg_done = 0
        self.slot_of = {}; self.load_idx = {}
        self.soff_cache = {}
        self.soff_rr = 0
        self.nloads = 0
        self.load_count = {}
    def vm_issue(self, text):
        self.A(text); idx = self.fifo_n; self.fifo_n += 1; return idx
    def vm_wait(self, idx):
        if idx < self.done: return
        n = self.fifo_n - 1 - idx
        assert n <= 63, n
        self.A("s_waitcnt vmcnt(%d)" % n)
        self.done = idx + 1
    def vm_all_done(self):
        self.done = self.fifo_n
    def lg_issue(self, text):
        self.A(text); idx = self.lg_n; self.lg_n += 1; return idx
    def lg_wait(self, idx):
        if idx < self.lg_done: return
        n = self.lg_n - 1 - idx
        assert n <= 15, n
        self.A("s_waitcnt lgkmcnt(%d)" % n)
        self.lg_done = idx + 1
    def lg_all(self):
        if self.lg_done < self.lg_n:
            self.A("s_waitcnt lgkmcnt(0)")
        self.lg_done = self.lg_n
    def soff(self, b, tile, extra=0):
        key = (b, tile, extra)
        if key in self.soff_cache: return self.soff_cache[key]
        if tile == 18 and extra == 0: return S_O18[b]
        if tile == 0 and extra == 0: return S_BASE[b]
        r = S_OT[self.soff_rr % len(S_OT)]; self.soff_rr += 1
        for k in [k for k, v in self.soff_cache.items() if v == r]: del self.soff_cache[k]
        if tile == 18:
            self.A("s_add_u32 s%d, s%d, 0x%x" % (r, S_O18[b], extra))
        else:
            self.A("s_add_u32 s%d, s%d, 0x%x" % (r, S_BASE[b], tile * TS["v"] + extra))
        self.soff_cache[key] = r
        return r
    def emit_load(self, p, slot, pol):
        if p[1] == "K":
            b, _, j, m = p; tile = j; imm = m * 1024; voff = V_KOFF; srd = S_K
        else:
            b, _, pi, mu, cb = p; tile = 2 * pi; imm = mu * 1024 + cb * 128; srd = S_V
            voff = V_VOFF9 if pi == 9 else V_VOFF
        polx = (" " + pol) if pol else ""
        if slot[0] == "r":
            so = self.soff(b, tile)
            t = "buffer_load_dwordx4 %s, v%d, s[%d:%d], s%d offen%s%s" % (vr(slot[1], 4), voff, srd, srd + 3, so, (" offset:%d" % imm) if imm else "", polx)
        else:
            self.A("s_add_u32 m0, s%d, 0x%x" % (S_T2, slot[1] * 1024))
            so = self.soff(b, tile, imm)
            t = "buffer_load_dwordx4 v%d, s[%d:%d], s%d offen%s lds" % (voff, srd, srd + 3, so, polx)
        self.nloads += 1
        return self.vm_issue(t)

    def run(self):
        A = self.A; cfg = self.cfg; items = self.items
        uses = [i for i, it in enumerate(items) if it[0] == "use"]
        kept = set(); loadq = deque()
        for i in uses:
            _, p, keep, fn = items[i][:4]
            if p not in kept: loadq.append((i, p))
            if keep: kept.add(p)
            else: kept.discard(p)
        free = deque([("l", s) for s in range(cfg["nlds"])] + [("r", SLOT0 + 4 * s) for s in range(cfg["nreg"])])
        if cfg.get("reg_first"):
            free = deque([("r", SLOT0 + 4 * s) for s in range(cfg["nreg"])] + [("l", s) for s in range(cfg["nlds"])])
        temps = deque(LT)
        ldsread = {}
        state = {"cap": cfg["cap0"], "pol": cfg.get("pol", "nt")}
        for i_, it_ in enumerate(items):
            if it_[0] == "release":
                state["limit"] = i_
                n_ = cfg.get("gw_early", 0); j_ = i_
                while n_ > 0:
                    j_ += 1
                    if items[j_][0] == "use": n_ -= 1
                if j_ > i_: state["limit"] = j_ + 1
        def issue_loads():
            while loadq and free and (self.fifo_n - self.done) < state["cap"] and not state.get("hold") and (state.get("limit") is None or loadq[0][0] < state["limit"]):
                i, p = loadq[0]
                slot = None
                if cfg.get("pref", 1):
                    want = "l" if p[1] == "K" else "r"
                    for sl in free:
                        if sl[0] == want: slot = sl; break
                    if slot is None:
                        if p[1] == "V": break
                        slot = free[0]
                    free.remove(slot)
                else:
                    slot = free.popleft()
                loadq.popleft()
                self.slot_of[p] = slot
                pol = state["pol"]
                nth = self.load_count.get(p, 0); self.load_count[p] = nth + 1
                if cfg.get("polK0") is not None and p[0] == 0 and p[1] == "K" and nth == 0: pol = cfg["polK0"]
                if cfg.get("polK0r") is not None and p[0] == 0 and p[1] == "K" and nth == 1: pol = cfg["polK0r"]
                if cfg.get("l2k0") is not None and p[0] == 0 and p[1] == "K" and nth == 0 and p[2] >= cfg["l2k0"]: pol = ""
                if cfg.get("l2b1") and p[0] == 1 and nth == 0 and p not in self.keep1: pol = ""
                if cfg.get("polV0") is not None and p[0] == 0 and p[1] == "V": pol = cfg["polV0"]
                if cfg.get("polV1") is not None and p[0] == 1 and p[1] == "V": pol = cfg["polV1"]
                if cfg.get("polK1") is not None and p[0] == 1 and p[1] == "K": pol = cfg["polK1"]
                if cfg.get("polall") is not None: pol = cfg["polall"]
                if pol == "def": pol = ""
                if pol == "sc1nt": pol = "sc1 nt"
                if pol == "sc01nt": pol = "sc0 sc1 nt"
                self.load_idx[p] = self.emit_load(p, slot, pol)
                self.loaded_for[i] = True
        self.loaded_for = {}
        resident_use = {}
        LA = cfg.get("la", 3)
        def prefetch_lds(pos):
            cnt = 0
            for q in range(pos, min(pos + 8, len(uses))):
                ui = uses[q]
                if ui in ldsread:
                    cnt += 1; continue
                p = items[ui][1]
                if not (ui in self.loaded_for or self.kept_ok(ui)): break
                if self.slot_of[p][0] != "l": continue
                if cnt >= LA or not temps: break
                if any(items[x][0] == "code" and len(items[x]) > 2 and items[x][2] == "fence" for x in range(uses[pos], ui)): break
                self.vm_wait(self.load_idx[p])
                t = temps.popleft()
                li = self.lg_issue("ds_read_b128 %s, v%d offset:%d" % (vr(t, 4), V_LDSRD, self.slot_of[p][1] * 1024))
                ldsread[ui] = (t, li); cnt += 1
        lastkeep = {}
        self.keptset = set()
        self.kept_ok = lambda ui: items[ui][1] in self.keptset
        pos = 0
        for f in cfg.get("pre", []): f(self)
        issue_loads()
        for i, it in enumerate(items):
            if it[0] == "use":
                _, p, keep, fn = it[:4]
                assert (i in self.loaded_for) or (p in self.keptset), ("piece not loaded before use (deadlock)", i, p)
                prefetch_lds(pos)
                slot = self.slot_of[p]
                if slot[0] == "r":
                    self.vm_wait(self.load_idx[p])
                    fn(slot[1])
                else:
                    t, li = ldsread.pop(i)
                    self.lg_wait(li)
                    fn(t)
                    temps.append(t)
                if keep: self.keptset.add(p)
                else:
                    self.keptset.discard(p); free.append(slot)
                pos += 1
                issue_loads()
            elif it[0] == "code":
                it[1](self)
                issue_loads()
            elif it[0] == "drain":
                if self.fifo_n - self.done > it[1]:
                    self.vm_wait(self.fifo_n - 1 - it[1])
                issue_loads()
            elif it[0] == "hold":
                state["hold"] = True
            elif it[0] == "release":
                state["hold"] = False; state["limit"] = None
            elif it[0] == "code_nl":
                it[1](self)
            elif it[0] == "bgdrain":
                n = max(0, state["cap"] - cfg.get("dstep", 4))
                if loadq and free and (state.get("limit") is None or loadq[0][0] < state["limit"]) and self.fifo_n - self.done > n:
                    self.vm_wait(self.fifo_n - 1 - n)
                issue_loads()
            elif it[0] == "loadall":
                while loadq and free and (state.get("limit") is None or loadq[0][0] < state["limit"]):
                    if cfg.get("pref", 1) and loadq[0][1][1] == "V" and not any(sl[0] == "r" for sl in free): break
                    n = self.fifo_n - self.done
                    tgt = max(0, state["cap"] - cfg.get("dstep", 4))
                    if n > tgt:
                        self.vm_wait(self.fifo_n - 1 - tgt)
                    issue_loads()
            elif it[0] == "cap":
                state["cap"] = it[1]; issue_loads()
            elif it[0] == "pol":
                state["pol"] = it[1]
        assert not loadq

def gen_setup1(A, cfg):
    A.comment("attention setup (part 1: what the first loads need)")
    A("s_lshr_b32 s%d, s2, 3" % S_H)
    A("s_and_b32 s%d, s2, 7" % S_SUB)
    A("s_sub_u32 s%d, s%d, 1" % (S_SUB, S_SUB))
    if cfg.get("rotsub", 1):
        A("s_add_u32 s%d, s%d, s%d" % (S_SUB, S_SUB, S_H))
        A("s_mul_i32 s%d, s%d, 37" % (S_T0, S_SUB))
        A("s_lshr_b32 s%d, s%d, 8" % (S_T0, S_T0))
        A("s_mul_i32 s%d, s%d, 7" % (S_T0, S_T0))
        A("s_sub_u32 s%d, s%d, s%d" % (S_SUB, S_SUB, S_T0))
    if cfg.get("gil"):
        TS["v"] = 28 * 4096
        A("s_mul_i32 s%d, s%d, 7" % (S_T0, S_W))
        A("s_add_u32 s%d, s%d, s%d" % (S_T0, S_T0, S_SUB))
    else:
        TS["v"] = 16384
        A("s_mul_i32 s%d, s%d, 73" % (S_T0, S_SUB))
        A("s_add_u32 s%d, s%d, s%d" % (S_T0, S_T0, S_W))
    A("s_lshl_b32 s%d, s%d, 12" % (S_T0, S_T0))
    A("s_lshl_b32 s%d, s%d, 21" % (S_T1, S_H))
    sw = cfg.get("bswap", 0)
    A("s_add_u32 s%d, s%d, s%d" % (S_BASE[0 ^ sw], S_T0, S_T1))
    A("s_add_u32 s%d, s%d, 0x4000000" % (S_BASE[1 ^ sw], S_BASE[0 ^ sw]))
    A("s_mul_i32 s%d, s%d, %d" % (S_T2, S_W, NLDS * 1024))
    A("s_add_u32 s%d, s%d, %d" % (S_T2, S_T2, LDS_SLOTS))
    A("v_bfe_u32 v%d, v0, 2, 2" % TA)
    A("v_lshlrev_b32 v%d, 8, v%d" % (V_KOFF, TA))
    A("v_lshrrev_b32 v%d, 4, v0" % TB)
    A("v_lshl_add_u32 v%d, v%d, 6, v%d" % (V_KOFF, TB, V_KOFF))
    A("v_and_b32 v%d, 3, v0" % TC)
    A("v_lshl_add_u32 v%d, v%d, 4, v%d" % (V_KOFF, TC, V_KOFF))

def gen_setup2(A, cfg):
    A.comment("attention setup (part 2)")
    if cfg.get("gil"):
        A("s_mul_i32 s%d, s%d, 7" % (S_T0, S_W))
        A("s_add_u32 s%d, s%d, s%d" % (S_T0, S_T0, S_SUB))
        A("s_cmp_lt_u32 s%d, 8" % S_T0)
    else:
        A("s_cmp_eq_u32 s%d, 6" % S_SUB)
        A("s_cselect_b32 s%d, 2, 1" % S_T0)
        A("s_cmp_lt_u32 s%d, s%d" % (S_W, S_T0))
    A("s_cselect_b32 s%d, 1, 0" % S_T1)
    for b in (0, 1):
        A("s_add_u32 s%d, s%d, 0x%x" % (S_O18[b], S_BASE[b], 18 * TS["v"]))
        A("s_cmp_eq_u32 s%d, 1" % S_T1)
        A("s_cselect_b32 s%d, s%d, 0x80000000" % (S_O18[b], S_O18[b]))
    for u in range(4):
        A("s_mov_b32 s%d, 0x%x" % (S_MASK[u], 0x11111111 << u))
        A("s_mov_b32 s%d, 0x%x" % (S_MASK[u] + 1, 0x11111111 << u))
    A("s_cmp_eq_u32 s%d, 1" % S_T1)
    A("s_cselect_b32 s%d, 0x44444444, 0" % S_M18)
    A("s_mov_b32 s%d, s%d" % (S_M18 + 1, S_M18))
    A("s_mov_b32 s%d, 0xcccccccc" % S_MG1)
    A("s_mov_b32 s%d, 0xcccccccc" % (S_MG1 + 1))
    SM["mimic"] = cfg.get("mimic", 0)
    A("s_mov_b32 s%d, 0x%x" % (S_C, f2u(LOG2E if SM["mimic"] else SCALE_C)))
    A("s_mov_b32 s%d, 0x%x" % (S_SC, f2u(128.0 ** -0.5)))
    A("s_lshl_b32 s%d, s%d, 9" % (S_Q, S_H))
    A("s_add_u32 s%d, s%d, 0x%x" % (S_Q, S_Q, OFF_Q))
    A("s_lshl_b32 s%d, s%d, 3" % (S_P, S_H))
    A("s_add_u32 s%d, s%d, s%d" % (S_P, S_P, S_SUB))
    A("s_lshl_b32 s%d, s%d, 11" % (S_P, S_P))
    A("s_add_u32 s%d, s%d, 0x%x" % (S_P, S_P, OFF_PART))
    A("v_lshrrev_b32 v%d, 4, v0" % TB)
    A("v_and_b32 v%d, 7, v0" % TC)
    A("v_lshlrev_b32 v%d, 4, v%d" % (TC, TC))
    A("v_lshl_add_u32 v%d, v%d, 8, v%d" % (TC, TB, TC))
    A("v_bfe_u32 v%d, v0, 3, 1" % TA)
    A("v_mul_u32_u24 v%d, 0x%x, v%d" % (V_VOFF, TS["v"], TA))
    A("v_add_u32 v%d, v%d, v%d" % (V_VOFF, V_VOFF, TC))
    A("v_lshl_add_u32 v%d, v%d, 30, v%d" % (V_VOFF9, TA, TC))
    A("v_and_b32 v%d, 1, v0" % TA)
    A("v_mov_b32 v%d, 0xffff" % TB)
    A("v_lshlrev_b32 v%d, 4, v%d" % (TC, TA))
    A("v_lshlrev_b32 v%d, v%d, v%d" % (V_HALF, TC, TB))
    A("v_lshlrev_b32 v%d, 4, v0" % V_LDSRD)
    A("v_add_u32 v%d, s%d, v%d" % (V_LDSRD, S_T2, V_LDSRD))
    A("v_bfe_u32 v%d, v0, 4, 1" % TA)
    A("v_lshlrev_b32 v%d, 5, v%d" % (V_PUB, TA))
    A("v_bfe_u32 v%d, v0, 1, 1" % TA)
    A("v_lshl_add_u32 v%d, v%d, 4, v%d" % (V_PUB, TA, V_PUB))
    A("v_lshrrev_b32 v%d, 5, v0" % TA)
    A("v_lshl_add_u32 v%d, v%d, 3, v%d" % (V_PUB, TA, V_PUB))
    A("v_bfe_u32 v%d, v0, 2, 2" % TA)
    A("v_lshl_add_u32 v%d, v%d, 1, v%d" % (V_PUB, TA, V_PUB))
    A("v_and_b32 v%d, 1, v0" % TA)
    A("v_add_u32 v%d, v%d, v%d" % (V_PUB, TA, V_PUB))
    A("s_lshl_b32 s%d, s%d, 6" % (S_T0, S_W))
    A("v_add_u32 v%d, s%d, v%d" % (V_PUB, S_T0, V_PUB))
    A("v_lshlrev_b32 v%d, 3, v%d" % (V_PUB, V_PUB))
    A("v_lshlrev_b32 v%d, 3, v0" % TA)
    A("v_add_u32 v%d, 1024, v%d" % (TA, TA))
    A("v_mov_b32 v%d, 0x7f000000" % TB)
    A("v_cmp_gt_u32 vcc, 2, v0")
    A("v_cndmask_b32 v%d, v%d, v%d, vcc" % (TA, TB, TA))
    A("s_cmp_eq_u32 s%d, 2" % S_W)
    A("s_cselect_b64 vcc, -1, 0")
    A("v_cndmask_b32 v%d, v%d, v%d, vcc" % (V_PUB, V_PUB, TA))
    A("s_cmp_eq_u32 s%d, 3" % S_W)
    A("s_cselect_b64 vcc, -1, 0")
    A("v_cndmask_b32 v%d, v%d, v%d, vcc" % (V_PUB, V_PUB, TB))
    gen_bank_masks(A)
    A("s_mov_b32 s%d, 0xaaaaaaaa" % S_MODD)
    A("s_mov_b32 s%d, 0xaaaaaaaa" % (S_MODD + 1))
    A("s_waitcnt lgkmcnt(0)")
    A("s_mul_i32 s%d, s%d, 0x%x" % (S_TAG, S_TAG, HASH_MUL))
    A("s_add_u32 s%d, s%d, 0x%x" % (S_TAG, S_TAG, HASH_ADD))

_lab = [0]
def newlab(p):
    _lab[0] += 1
    return "L_%s_%d" % (p, _lab[0])

def poll_issue(L, b):
    def f(S):
        A = S.A
        A("v_and_b32 v%d, 0xff, v%d" % (V_T7, V_KOFF))
        A("v_lshlrev_b32 v%d, 1, v%d" % (V_T7, V_T7))
        A("s_add_u32 s%d, s%d, 0x%x" % (S_T0, S_Q, (L * 2 + b) * 16384))
        S.vm_issue("buffer_load_dwordx4 %s, v%d, s[%d:%d], s%d offen sc1" % (vr(PQ, 4), V_T7, S_WS, S_WS + 3, S_T0))
        S.poll_idx = S.vm_issue("buffer_load_dwordx4 %s, v%d, s[%d:%d], s%d offen offset:16 sc1" % (vr(PQ + 4, 4), V_T7, S_WS, S_WS + 3, S_T0))
    return f

def poll_check(L, b):
    def chk(A):
        A("v_min3_u32 v%d, v%d, v%d, v%d" % (V_X0, PQ + 1, PQ + 3, PQ + 5))
        A("v_max3_u32 v%d, v%d, v%d, v%d" % (V_X1, PQ + 1, PQ + 3, PQ + 5))
        A("v_min_u32 v%d, v%d, v%d" % (V_X0, V_X0, PQ + 7))
        A("v_max_u32 v%d, v%d, v%d" % (V_X1, V_X1, PQ + 7))
        A("v_cmp_ne_u32 vcc, s%d, v%d" % (S_TAG, V_X0))
        A("v_cmp_ne_u32 s[%d:%d], s%d, v%d" % (S_EX, S_EX + 1, S_TAG, V_X1))
        A("s_or_b64 vcc, vcc, s[%d:%d]" % (S_EX, S_EX + 1))
    def f(S):
        A = S.A
        ok = newlab("qok"); retry = newlab("qretry")
        S.vm_wait(S.poll_idx)
        chk(A)
        A.branch("s_cbranch_vccz %s" % ok)
        A("s_mov_b32 s%d, 0x2000" % S_SPIN)
        A.label(retry)
        A("s_sleep 2")
        A("v_and_b32 v%d, 0xff, v%d" % (V_T7, V_KOFF))
        A("v_lshlrev_b32 v%d, 1, v%d" % (V_T7, V_T7))
        A("s_add_u32 s%d, s%d, 0x%x" % (S_T0, S_Q, (L * 2 + b) * 16384))
        A("buffer_load_dwordx4 %s, v%d, s[%d:%d], s%d offen sc1" % (vr(PQ, 4), V_T7, S_WS, S_WS + 3, S_T0))
        A("buffer_load_dwordx4 %s, v%d, s[%d:%d], s%d offen offset:16 sc1" % (vr(PQ + 4, 4), V_T7, S_WS, S_WS + 3, S_T0))
        A("s_waitcnt vmcnt(0)")
        chk(A)
        A("s_sub_u32 s%d, s%d, 1" % (S_SPIN, S_SPIN))
        A.branch("s_cbranch_scc1 %s" % ok)
        A.branch("s_cbranch_vccnz %s" % retry)
        A.label(ok)
        for m in range(4):
            for k in range(4):
                A("v_cndmask_b32_e64 v%d, 0, v%d, s[%d:%d]" % (QB + 4 * m + k, PQ + 2 * k, S_BANK[m], S_BANK[m] + 1))
    return f

def group_wait(inst):
    def f(S):
        A = S.A
        ok = newlab("gok"); retry = newlab("grt")
        A("s_lshl_b32 s%d, s%d, 11" % (S_T0, S_SUB))
        A("s_sub_u32 s%d, s%d, s%d" % (S_T0, S_P, S_T0))
        A("s_add_u32 s%d, s%d, 0x%x" % (S_T0, S_T0, inst * 32 * 8 * 2048 + 1024))
        A("v_and_b32 v%d, 7, v0" % V_T7)
        A("v_min_u32 v%d, 6, v%d" % (V_T7, V_T7))
        A("v_lshlrev_b32 v%d, 11, v%d" % (V_T7, V_T7))
        A("s_mov_b32 s%d, 0x2000" % S_SPIN)
        A.label(retry)
        A("buffer_load_dwordx2 %s, v%d, s[%d:%d], s%d offen sc1" % (vr(PQ, 2), V_T7, S_WS, S_WS + 3, S_T0))
        A("s_waitcnt vmcnt(0)")
        A("v_cmp_ne_u32 vcc, s%d, v%d" % (S_TAG, PQ + 1))
        A.branch("s_cbranch_vccz %s" % ok)
        A("s_sleep 4")
        A("s_sub_u32 s%d, s%d, 1" % (S_SPIN, S_SPIN))
        A.branch("s_cbranch_scc0 %s" % retry)
        A.label(ok)
        S.done = S.fifo_n
    return f

S_BANK = [54, 56, 58, 60]

def gen_bank_masks(A):
    for m in range(4):
        v = (0xF << (4 * m)) * 0x00010001
        A("s_mov_b32 s%d, 0x%x" % (S_BANK[m], v))
        A("s_mov_b32 s%d, 0x%x" % (S_BANK[m] + 1, v))

def qp(a): return "quad_perm:[%d,%d,%d,%d] row_mask:0xf bank_mask:0xf" % tuple(a)

def extract_ops(j, b):
    D = DK[j % 3]; u = j & 3; sp = SP[b] + (j >> 2)
    ops = []
    if u == 0:
        ops.append("v_add_f32_dpp v%d, v%d, v%d %s" % (V_X0, D + 1, D + 0, qp([1] * 4)))
    else:
        ops.append("v_add_f32_dpp v%d, v%d, v%d %s" % (V_X0, D + 0, D + 1, qp([0] * 4)))
    if u == 2:
        ops.append("v_add_f32_dpp v%d, v%d, v%d %s" % (V_X1, D + 3, D + 2, qp([3] * 4)))
    else:
        ops.append("v_add_f32_dpp v%d, v%d, v%d %s" % (V_X1, D + 2, D + 3, qp([2] * 4)))
    direct = (u == 0 and j < 16)
    dst = sp if direct else V_X0
    if u in (0, 1):
        ops.append("v_add_f32_dpp v%d, v%d, v%d %s" % (dst, V_X1, V_X0, qp([3] * 4)))
    else:
        ops.append("v_add_f32_dpp v%d, v%d, v%d %s" % (dst, V_X0, V_X1, qp([1] * 4)))
    if not direct:
        mk = S_M18 if j == 18 else S_MASK[u]
        ops.append("v_cndmask_b32_e64 v%d, v%d, v%d, s[%d:%d]" % (sp, sp, V_X0, mk, mk + 1))
    return ops

def emit_ops(ops):
    def f(S):
        for o in ops: S.A(o)
    return f

def k_phase(items, L, b, keepfn, j0=0, j1=NT, first=True, last=True, bg=0):
    if first:
        items.append(("code", lambda S: S.A("v_mov_b32 v%d, 0xff800000" % (SP[b] + 4))))
    for j in range(j0, j1):
        ex = extract_ops(j - 2, b) if j - 2 >= j0 else []
        for m in range(4):
            def fn(areg, j=j, m=m):
                D = DK[j % 3]
                return "v_mfma_f32_16x16x32_bf16 %s, %s, %s, %s" % (vr(D, 4), vr(areg, 4), vr(QB + 4 * m, 4), "0" if m == 0 else vr(D, 4))
            items.append(("use", (b, "K", j, m), keepfn((b, "K", j, m)), fn))
            if ex:
                if m == 0: items.append(("code", emit_ops(ex[0:2])))
                elif m == 2: items.append(("code", emit_ops(ex[2:3])))
                elif m == 3 and len(ex) > 3: items.append(("code", emit_ops(ex[3:])))
        if bg and j % bg == bg - 1:
            items.append(("bgdrain",))
    for j in range(max(j0, j1 - 2), j1):
        items.append(("code", emit_ops(extract_ops(j, b))))

def wave_reduce(A, reg, op):
    for sh in (1, 2, 4, 8):
        A("%s_dpp v%d, v%d, v%d row_shr:%d row_mask:0xf bank_mask:0xf" % (op, reg, reg, reg, sh))
    A("%s_dpp v%d, v%d, v%d row_bcast:15 row_mask:0xa bank_mask:0xf" % (op, reg, reg, reg))
    A("%s_dpp v%d, v%d, v%d row_bcast:31 row_mask:0xc bank_mask:0xf" % (op, reg, reg, reg))

SM = {"mimic": 0}
def lsum_ops(b):
    ops = []
    for sh in (1, 2, 4, 8):
        ops.append("v_add_f32_dpp v%d, v%d, v%d row_shr:%d row_mask:0xf bank_mask:0xf" % (V_X0, V_X0, V_X0, sh))
    ops.append("v_add_f32_dpp v%d, v%d, v%d row_bcast:15 row_mask:0xa bank_mask:0xf" % (V_X0, V_X0, V_X0))
    ops.append("v_add_f32_dpp v%d, v%d, v%d row_bcast:31 row_mask:0xc bank_mask:0xf" % (V_X0, V_X0, V_X0))
    ops.append("v_readlane_b32 s%d, v%d, 63" % (S_L[b], V_X0))
    return ops

def softmax(b, defer=False):
    def f(S):
        A = S.A; sp = SP[b]
        if SM["mimic"]:
            for k in range(5): A("v_cvt_pk_bf16_f32 v%d, v%d, v%d" % (sp + k, sp + k, sp + k))
            for k in range(5): A("v_and_b32 v%d, 0xffff0000, v%d" % (sp + k, sp + k))
            for k in range(5): A("v_mul_f32 v%d, s%d, v%d" % (sp + k, S_SC, sp + k))
            for k in range(5): A("v_cvt_pk_bf16_f32 v%d, v%d, v%d" % (sp + k, sp + k, sp + k))
            for k in range(5): A("v_and_b32 v%d, 0xffff0000, v%d" % (sp + k, sp + k))
        A("v_max3_f32 v%d, v%d, v%d, v%d" % (V_X0, sp, sp + 1, sp + 2))
        A("v_max3_f32 v%d, v%d, v%d, v%d" % (V_X0, V_X0, sp + 3, sp + 4))
        wave_reduce(A, V_X0, "v_max_f32")
        A("v_readlane_b32 s%d, v%d, 63" % (S_M[b], V_X0))
        A("v_mov_b32 v%d, s%d" % (V_X1, S_M[b]))
        A("v_mul_f32 v%d, s%d, v%d" % (V_X1, S_C, V_X1))
        for k in range(5):
            A("v_fma_f32 v%d, v%d, s%d, -v%d" % (sp + k, sp + k, S_C, V_X1))
        for k in range(5):
            A("v_exp_f32 v%d, v%d" % (sp + k, sp + k))
        A("v_add_f32 v%d, v%d, v%d" % (V_X0, sp, sp + 1))
        A("v_add_f32 v%d, v%d, v%d" % (V_X1, sp + 2, sp + 3))
        A("v_add_f32 v%d, v%d, v%d" % (V_X0, V_X0, sp + 4))
        for k in range(5):
            A("v_cvt_pk_bf16_f32 v%d, v%d, v%d" % (sp + k, sp + k, sp + k))
        A("v_add_f32 v%d, v%d, v%d" % (V_X0, V_X0, V_X1))
        if not defer:
            for o in lsum_ops(b): A(o)
    return f

def build_b(A, B, Y, mu):
    for rho in range(4):
        sh = 4 * ((rho - mu) & 3)
        ctl = "quad_perm:[0,1,2,3]" if sh == 0 else "row_ror:%d" % sh
        A("v_mov_b32_dpp v%d, v%d %s row_mask:0xf bank_mask:0x%x" % (B + rho, Y, ctl, 1 << rho))

def build_ops(B, Y, mu):
    ops = []
    for rho in range(4):
        sh = 4 * ((rho - mu) & 3)
        ctl = "quad_perm:[0,1,2,3]" if sh == 0 else "row_ror:%d" % sh
        ops.append("v_mov_b32_dpp v%d, v%d %s row_mask:0xf bank_mask:0x%x" % (B + rho, Y, ctl, 1 << rho))
    return ops

def v_phase(items, L, b, keepfn, bg=0, lsum=False):
    extra = lsum_ops(b) if lsum else []
    def yop(pi):
        return "v_and_b32_dpp v%d, v%d, v%d %s" % (YR[pi & 1], SP[b] + (pi >> 1), V_HALF, qp([2, 2, 3, 3] if (pi & 1) else [0, 0, 1, 1]))
    pre = ["v_mov_b32 v%d, 0" % (BV[0] + r) for r in range(8)]
    pre.insert(0, yop(0))
    pre += build_ops(BV[0], YR[0], 0)
    items.append(("code", emit_ops(pre)))
    N = 40
    for n in range(N):
        pi, mu = n >> 2, n & 3
        par = n & 1
        nb = build_ops(BV[(n + 1) & 1], YR[((n + 1) >> 2) & 1], (n + 1) & 3) if n + 1 < N else []
        for cb in range(2):
            first = (n == 0)
            def fn(areg, par=par, cb=cb, first=first):
                return "v_mfma_f32_16x16x32_bf16 %s, %s, %s, %s" % (vr(DV[cb], 4), vr(areg, 4), vr(BV[par], 4), "0" if first else vr(DV[cb], 4))
            p = (b, "V", pi, mu, cb)
            items.append(("use", p, keepfn(p), fn))
            ops = nb[2 * cb:2 * cb + 2]
            if mu == 1 and cb == 0 and pi < 9: ops = ops + [yop(pi + 1)]
            if extra and cb == 1: ops = ops + [extra.pop(0)]
            if ops: items.append(("code", emit_ops(ops)))
        if bg and mu % bg == bg - 1:
            items.append(("bgdrain",))

def g_reduce(A, D, t1, t2, R, smask):
    A("v_permlane32_swap_b32 v%d, v%d" % (D, D + 1))
    A("v_permlane32_swap_b32 v%d, v%d" % (D + 2, D + 3))
    A("v_add_f32_dpp v%d, v%d, v%d %s" % (t1, D + 1, D, qp([2, 3, 2, 3])))
    A("v_add_f32_dpp v%d, v%d, v%d %s" % (t2, D + 2, D + 3, qp([0, 1, 0, 1])))
    A("v_cndmask_b32_e64 v%d, v%d, v%d, s[%d:%d]" % (R, t1, t2, smask, smask + 1))

def combine(L, b):
    inst = L * 2 + b
    def f(S):
        A = S.A
        t = BV[0]
        S.lg_all()
        g_reduce(A, DV[0], t, t + 1, t + 2, S_MG1)
        g_reduce(A, DV[1], t + 3, t + 4, t + 5, S_MG1)
        A("s_lshl_b32 s%d, s%d, 9" % (S_T0, S_W))
        A("s_add_u32 m0, s%d, %d" % (S_T0, LDS_SCR))
        A("ds_write_addtid_b32 v%d offset:0" % (t + 2))
        A("ds_write_addtid_b32 v%d offset:256" % (t + 5))
        A("v_mov_b32 v%d, s%d" % (t, S_M[b]))
        A("v_mov_b32 v%d, s%d" % (t + 1, S_L[b]))
        A("s_lshl_b32 s%d, s%d, 3" % (S_T0, S_W))
        A("s_add_u32 s%d, s%d, %d" % (S_T0, S_T0, LDS_STAT))
        A("v_mov_b32 v%d, s%d" % (t + 3, S_T0))
        A("ds_write_b64 v%d, %s" % (t + 3, vr(t, 2)))
        A("s_waitcnt lgkmcnt(0)")
        A("s_barrier")
        st = DV[0]
        A("v_mov_b32 v%d, %d" % (t + 3, LDS_STAT))
        A("ds_read_b128 %s, v%d" % (vr(st, 4), t + 3))
        A("ds_read_b128 %s, v%d offset:16" % (vr(st + 4, 4), t + 3))
        A("s_and_b32 s%d, s%d, 1" % (S_T0, S_W))
        A("s_lshl_b32 s%d, s%d, 8" % (S_T0, S_T0))
        A("s_add_u32 m0, s%d, %d" % (S_T0, LDS_SCR))
        for w in range(4):
            A("ds_read_addtid_b32 v%d offset:%d" % (t + 4 + w, w * 512))
        A("s_waitcnt lgkmcnt(4)")
        A("v_max3_f32 v%d, v%d, v%d, v%d" % (t, st, st + 2, st + 4))
        A("v_max_f32 v%d, v%d, v%d" % (t, t, st + 6))
        for w in range(4):
            A("v_sub_f32 v%d, v%d, v%d" % (st + 2 * w, st + 2 * w, t))
            A("v_mul_f32 v%d, s%d, v%d" % (st + 2 * w, S_C, st + 2 * w))
        for w in range(4):
            A("v_exp_f32 v%d, v%d" % (st + 2 * w, st + 2 * w))
        A("v_mul_f32 v%d, v%d, v%d" % (t + 1, st, st + 1))
        for w in range(1, 4):
            A("v_fmac_f32 v%d, v%d, v%d" % (t + 1, st + 2 * w, st + 2 * w + 1))
        A("v_mul_f32 v%d, s%d, v%d" % (t, S_C, t))
        A("s_waitcnt lgkmcnt(0)")
        A("v_mul_f32 v%d, v%d, v%d" % (t + 2, st, t + 4))
        for w in range(1, 4):
            A("v_fmac_f32 v%d, v%d, v%d" % (t + 2, st + 2 * w, t + 4 + w))
        A("v_cndmask_b32_e64 v%d, v%d, v%d, s[%d:%d]" % (t, t, t + 1, S_MODD, S_MODD + 1))
        A("s_cmp_lt_u32 s%d, 2" % S_W)
        A("s_cselect_b64 vcc, -1, 0")
        A("v_cndmask_b32 v%d, v%d, v%d, vcc" % (t + 2, t, t + 2))
        A("v_mov_b32 v%d, s%d" % (t + 3, S_TAG))
        A("s_add_u32 s%d, s%d, 0x%x" % (S_T0, S_P, inst * 32 * 8 * 2048))
        S.vm_issue("buffer_store_dwordx2 %s, v%d, s[%d:%d], s%d offen sc1" % (vr(t + 2, 2), V_PUB, S_WS, S_WS + 3, S_T0))
        A("s_barrier")
        S.lg_done = S.lg_n
    return f
S_MODD = 62

S_STAMP = 64
def stamp(k):
    def f(S):
        if not S.cfg.get("stamps"): return
        A = S.A
        A("s_memrealtime s[%d:%d]" % (S_EX, S_EX + 1))
        A("s_waitcnt lgkmcnt(0)")
        A("s_mov_b32 s%d, s%d" % (S_STAMP + k, S_EX))
        S.lg_done = S.lg_n
    return f

OFF_STAMP = 0x700000
def dump_stamps(A, n):
    A("s_lshl_b32 s%d, s2, 2" % S_T0)
    A("s_add_u32 s%d, s%d, s%d" % (S_T0, S_T0, S_W))
    A("s_lshl_b32 s%d, s%d, 7" % (S_T0, S_T0))
    A("s_add_u32 s%d, s%d, 0x%x" % (S_T0, S_T0, OFF_STAMP))
    A("v_mov_b32 v1, 0")
    for k in range(n):
        A("v_mov_b32 v2, s%d" % (S_STAMP + k))
        A("buffer_store_dword v2, v1, s[%d:%d], s%d offen offset:%d" % (S_WS, S_WS + 3, S_T0, 4 * k))
        A("s_nop 1")

def gen_attn(A, cfg):
    gen_setup1(A, cfg)
    S = Sched(A, cfg)
    it = S.items
    def first(S):
        if cfg.get("tlbwarm", 1):
            A("v_mov_b32 v%d, 0" % LT[2])
            for (srd_, b_) in ((S_V, 1), (S_K, 0), (S_V, 0)):
                S.vm_issue("buffer_load_dword v%d, v%d, s[%d:%d], s%d offen nt" % (LT[2] + 1, LT[2], srd_, srd_ + 3, S_BASE[b_]))
            if cfg.get("tlbwarm", 1) >= 2:
                for off in (0x1000, 0x280000):
                    A("s_mov_b32 s%d, 0x%x" % (S_T0, off))
                    S.vm_issue("buffer_load_dword v%d, v%d, s[%d:%d], s%d offen sc1" % (LT[2] + 1, LT[2], S_WS, S_WS + 3, S_T0))
        if cfg.get("pf_attn"):
            S.fifo_n += cfg["code_prefetch"](A, "L_attn", "L_chain", cfg["pf_attn"], LT[0], LT[1])
        gen_setup2(A, cfg)
    it.append(("code", first))
    wrap = lambda lst: None
    sched = cfg["sched"]
    sched(S, it)
    for i, x in enumerate(it):
        if x[0] == "use":
            fn = x[3]
            it[i] = ("use", x[1], x[2], (lambda areg, fn=fn: A(fn(areg))))
    S.run()
    if cfg.get("stamps"):
        dump_stamps(A, cfg["stamps"])
    A("s_waitcnt vmcnt(0)")
    A.branch("s_branch L_end")
    return S

def sched_simple(S, it):
    drop = lambda p: False
    for (L, b) in ((0, 1), (0, 0), (1, 1), (1, 0)):
        it.append(("code", poll_issue(L, b)))
        it.append(("code", poll_check(L, b), "fence"))
        k_phase(it, L, b, drop)
        it.append(("code", softmax(b)))
        v_phase(it, L, b, drop)
        it.append(("code", combine(L, b), "fence"))

def sched_pipe(S, it):
    cfg = S.cfg
    C = cfg["nlds"] + cfg["nreg"]; R = cfg.get("ring", 12)
    order = [(1, "K", j, m) for j in range(18) for m in range(4)] + [(1, "V", pi, mu, cb) for pi in range(9) for mu in range(4) for cb in range(2)]
    keep1 = set(order[:C - R])
    S.keep1 = keep1
    drop = lambda p: False
    F = "fence"
    it.append(("code", stamp(0), F))
    cap = cfg["cap0"]
    step = cfg.get("dstep", 4)
    for _ in range(max(0, (cfg.get("npre", 76) - cap) // step)):
        it.append(("drain", cap - step))
    it.append(("code", poll_issue(0, 1)))
    it.append(("code", poll_check(0, 1), F))
    it.append(("code", stamp(1), F))
    k_phase(it, 0, 1, lambda p: p in keep1)
    it.append(("code", softmax(1, True)))
    it.append(("code", stamp(2), F))
    it.append(("code", poll_issue(0, 0)))
    v_phase(it, 0, 1, lambda p: p in keep1, lsum=True)
    it.append(("code", combine(0, 1), F))
    it.append(("code", stamp(3), F))
    it.append(("code", poll_check(0, 0), F))
    k_phase(it, 0, 0, drop)
    it.append(("code", softmax(0)))
    it.append(("code", stamp(4), F))
    it.append(("loadall",))
    it.append(("code", poll_issue(1, 1)))
    it.append(("code", poll_check(1, 1), F))
    it.append(("code", stamp(5), F))
    it.append(("cap", cfg.get("cap4", cfg.get("cap1", 60))))
    k_phase(it, 1, 1, drop, bg=cfg.get("bgk", 0))
    it.append(("code", softmax(1, True)))
    v_phase(it, 1, 1, drop, bg=cfg.get("bgv", 0), lsum=True)
    it.append(("code", combine(1, 1), F))
    it.append(("cap", cfg.get("cap1", 60)))
    it.append(("code", stamp(6), F))
    v_phase(it, 0, 0, lambda p: p[2] < 9)
    it.append(("code", combine(0, 0), F))
    it.append(("code", stamp(7), F))
    it.append(("cap", cfg.get("cap7", cfg.get("cap1", 60))))
    if cfg.get("gwait"):
        it.append(("hold",))
        it.append(("code_nl", group_wait(0)))
        it.append(("release",))
    it.append(("loadall",))
    it.append(("code", poll_issue(1, 0)))
    it.append(("code", poll_check(1, 0), F))
    it.append(("code", stamp(8), F))
    k_phase(it, 1, 0, drop)
    it.append(("code", softmax(0, True)))
    it.append(("code", stamp(9), F))
    v_phase(it, 1, 0, drop, lsum=True)
    it.append(("code", combine(1, 0), F))
    it.append(("code", stamp(10), F))
```

```python
from emit import *
from layout import *
import math
from attn import qp, build_b, g_reduce, newlab

V_LANE, V_HALF, V_ROW8, V_N8, V_PX, V_X, V_XO, V_B1M, V_B2, V_B1E = 0, 1, 2, 3, 4, 5, 6, 7, 8, 9
B0 = 10
BX = 26
YK = [42, 43, 44, 45, 46]
WREG0 = 48
def wq_reg(beta, cb):  return WREG0 + 4 * ((beta - 14) * 2 + cb)
def wo_reg(mu, cb):    return WREG0 + 4 * (8 + mu * 9 + cb)
def w1_reg(beta, cb):  return WREG0 + 4 * (8 + 36 + beta * 2 + cb)
def w2_reg(mu, cb):    return WREG0 + 4 * (8 + 72 + mu * 9 + cb)
SCR = 0
L_WQ = 10240
L_W1L = L_WQ + 4 * 28672
L_W2X = L_W1L + 4 * 5120
assert L_W2X + 18 * 1024 == 163840
S_WS = 4; S_SRD = 8; S_OUT = 12
S_TAG, S_W, S_C, S_STEP = 16, 17, 18, 19
S_PART, S_YP1, S_YP2, S_X1, S_X2, S_QO, S_B, S_L, S_FAST, S_SPIN = 20, 21, 22, 23, 24, 25, 26, 27, 28, 29
S_MG1, S_MODD, S_ML36, S_MMU2, S_MGP = 30, 32, 34, 36, 38
S_T = list(range(40, 56))
S_EX = 56
S_P = 60
S_M7 = 76
S_XCC = 79
S_CST = 80
S_DBG = 80
S_EPOCH = 99
S_ML32 = 100
S_TL = 97
OOB = 0x7f000000

class Cap:
    def __init__(self): self.l = []
    def __call__(self, t): self.l.append(t)

def weave(A, main, fill, per=1):
    fill = list(fill)
    for m in main:
        A(m)
        for _ in range(per):
            if fill: A(fill.pop(0))
    for f in fill: A(f)

class LG:
    def __init__(self, A): self.A = A; self.n = 0; self.done = 0
    def issue(self, t): self.A(t); self.n += 1; return self.n - 1
    def count(self): self.n += 1; return self.n - 1
    def wait_text(self, idx):
        if idx < self.done: return None
        k = self.n - 1 - idx; self.done = idx + 1
        return "s_waitcnt lgkmcnt(%d)" % k
    def wait(self, idx):
        t = self.wait_text(idx)
        if t: self.A(t)

def srd(A, base, ptr, size):
    A("s_mov_b32 s%d, s%d" % (base, ptr))
    A("s_and_b32 s%d, s%d, 0xffff" % (base + 1, ptr + 1))
    A("s_mov_b32 s%d, 0x%x" % (base + 2, size))
    A("s_mov_b32 s%d, 0x00020000" % (base + 3))

def bf16r(A, d, s):
    A("v_cvt_pk_bf16_f32 v%d, v%d, v%d" % (d, s, s))
    A("v_and_b32 v%d, 0xffff0000, v%d" % (d, d))

def poll(A, issue, check, between=None, sleep=0):
    ok = newlab("ok"); retry = newlab("rt")
    issue()
    if between: between()
    A("s_waitcnt vmcnt(0)")
    check()
    A.branch("s_cbranch_vccz %s" % ok)
    A("s_mov_b32 s%d, 0x2000" % S_SPIN)
    A.label(retry)
    if sleep: A("s_sleep %d" % sleep)
    issue()
    A("s_waitcnt vmcnt(0)")
    check()
    A("s_sub_u32 s%d, s%d, 1" % (S_SPIN, S_SPIN))
    A.branch("s_cbranch_scc1 %s" % ok)
    A.branch("s_cbranch_vccnz %s" % retry)
    A.label(ok)

def tagcheck(A, regs, t0, t1, stag=None):
    stag = S_TL if stag is None else stag
    regs = list(regs)
    def fold(op3, op2, dst):
        r = regs[:]
        A("%s v%d, v%d, v%d, v%d" % (op3, dst, r[0], r[1], r[2])); r = r[3:]
        while len(r) >= 2:
            A("%s v%d, v%d, v%d, v%d" % (op3, dst, dst, r[0], r[1])); r = r[2:]
        if r: A("%s v%d, v%d, v%d" % (op2, dst, dst, r[0]))
    c1, c2 = Cap(), Cap()
    A0 = A
    A = c1; fold("v_min3_u32", "v_min_u32", t0)
    A = c2; fold("v_max3_u32", "v_max_u32", t1)
    A = A0
    weave(A, c1.l, c2.l)
    A("v_cmp_ne_u32 vcc, s%d, v%d" % (stag, t0))
    A("v_cmp_ne_u32 s[%d:%d], s%d, v%d" % (S_EX, S_EX + 1, stag, t1))
    A("s_or_b64 vcc, vcc, s[%d:%d]" % (S_EX, S_EX + 1))

def store_mode(A, texts):
    slow = newlab("slow"); done = newlab("sdone")
    A("s_cmp_eq_u32 s%d, 1" % S_FAST)
    A("s_cbranch_scc0 %s" % slow)
    for t in texts: A(t)
    A("s_branch %s" % done)
    A.lines.append(slow + ":")
    for t in texts: A(t + " sc1")
    A.lines.append(done + ":")

def xrow_allreduce(A, z, t):
    A("v_mov_b32 v%d, v%d" % (t, z))
    A("v_permlane16_swap_b32 v%d, v%d" % (z, t))
    A("v_add_f32 v%d, v%d, v%d" % (z, z, t))
    A("v_mov_b32 v%d, v%d" % (t, z))
    A("v_permlane32_swap_b32 v%d, v%d" % (z, t))
    A("v_add_f32 v%d, v%d, v%d" % (z, z, t))

def parity_allreduce(A, z, t):
    for sh in (2, 4, 8):
        A("v_add_f32_dpp v%d, v%d, v%d row_ror:%d row_mask:0xf bank_mask:0xf" % (z, z, z, sh))
    xrow_allreduce(A, z, t)

def mfma_t(D, a, b, first):
    return "v_mfma_f32_16x16x32_bf16 %s, %s, %s, %s" % (vr(D, 4), vr(a, 4), vr(b, 4), "0" if first else vr(D, 4))

def zero_b(A, lo, hi):
    for r in range(lo, hi): A("v_mov_b32 v%d, 0" % r)

def cap_build(B, Y, mu):
    c = Cap(); build_b(c, B, Y, mu); return c.l

def ln_tail(A, z, xs, yk, mean, ex2, fill=()):
    A("v_mov_b32_dpp v%d, v%d %s" % (mean, z, qp([0, 0, 2, 2])))
    A("v_mov_b32_dpp v%d, v%d %s" % (ex2, z, qp([1, 1, 3, 3])))
    A("v_mul_f32 v%d, 0x%x, v%d" % (mean, f2u(1.0 / 576), mean))
    A("v_mul_f32 v%d, 0x%x, v%d" % (ex2, f2u(1.0 / 576), ex2))
    A("v_fma_f32 v%d, -v%d, v%d, v%d" % (ex2, mean, mean, ex2))
    c1, c2 = Cap(), Cap()
    c1("v_max_f32 v%d, 0, v%d" % (ex2, ex2))
    bf16r(c1, ex2, ex2)
    c1("v_add_f32 v%d, 0x%x, v%d" % (ex2, f2u(1e-5), ex2))
    bf16r(c1, ex2, ex2)
    c1("v_sqrt_f32 v%d, v%d" % (ex2, ex2))
    bf16r(c1, ex2, ex2)
    c1("v_rcp_f32 v%d, v%d" % (ex2, ex2))
    bf16r(c2, mean, mean)
    for x in xs: c2("v_sub_f32 v%d, v%d, v%d" % (x, x, mean))
    for x in xs: c2("v_cvt_pk_bf16_f32 v%d, v%d, v%d" % (x, x, x))
    for x in xs: c2("v_and_b32 v%d, 0xffff0000, v%d" % (x, x))
    weave(A, c1.l, c2.l, per=2)
    for x in xs: A("v_mul_f32 v%d, v%d, v%d" % (x, x, ex2))
    for x in xs: A("v_cvt_pk_bf16_f32 v%d, v%d, v%d" % (x, x, x))
    for x, y in zip(xs, yk): A("v_and_b32 v%d, v%d, v%d" % (y, x, V_HALF))

def pubx(A, s_xoff):
    z, t, d = 30, 31, 32
    A("v_mul_f32 v%d, v%d, v%d" % (t, V_X, V_X))
    A("v_cndmask_b32_e64 v%d, v%d, v%d, s[%d:%d]" % (z, V_X, t, S_MODD, S_MODD + 1))
    A("v_cndmask_b32_e64 v%d, 0, v%d, s[%d:%d]" % (z, z, S_ML36, S_ML36 + 1))
    A("v_mov_b32 v%d, s%d" % (d + 1, S_TL))
    parity_allreduce(A, z, t)
    A("v_cndmask_b32_e64 v%d, v%d, v%d, s[%d:%d]" % (d, z, V_X, S_ML36, S_ML36 + 1))
    store_mode(A, ["buffer_store_dwordx2 %s, v%d, s[%d:%d], s%d offen" % (vr(d, 2), V_PX, S_WS, S_WS + 3, s_xoff)])

def gath_ln(A, s_xoff):
    G = 30; ST = 40
    sa, sb = S_T[0], S_T[1]
    A("s_mul_i32 s%d, s%d, 1152" % (sa, S_W))
    A("s_add_u32 s%d, s%d, s%d" % (sa, sa, s_xoff))
    A("s_add_u32 s%d, s%d, 4608" % (sb, s_xoff))
    A("v_lshlrev_b32 v%d, 3, v%d" % (46, V_LANE))
    def issue():
        A("buffer_load_dwordx2 %s, v%d, s[%d:%d], s%d offen sc1" % (vr(ST, 2), 46, S_WS, S_WS + 3, sb))
        for k in range(5):
            A("buffer_load_dwordx2 %s, v%d, s[%d:%d], s%d offen offset:%d sc1" % (vr(G + 2 * k, 2), V_ROW8, S_WS, S_WS + 3, sa, 256 * k))
    def check():
        A("v_mov_b32 v%d, s%d" % (47, S_TL))
        A("v_cndmask_b32_e64 v%d, v%d, v%d, s[%d:%d]" % (43, 47, G + 9, S_MMU2, S_MMU2 + 1))
        tagcheck(A, [G + 1, G + 3, G + 5, G + 7, 43, ST + 1], 47, 42)
    poll(A, issue, check)
    if FINE.get("g", 0) == 0: fst(A, 5)
    FINE["g"] = FINE.get("g", 0) + 1
    parity_allreduce(A, ST, 47)
    ln_tail(A, ST, [G + 2 * k for k in range(5)], YK, 47, 41)

def qproj(A, s_qoff, YKs=YK, pre_barrier=True):
    D = [30, 34]; t1, t2, R0, R1 = 38, 39, 40, 41
    LT = [18, 22, 26]; va = 47
    if pre_barrier: A("s_barrier")
    A("s_mul_i32 s%d, s%d, 28672" % (S_T[0], S_W))
    A("s_add_u32 s%d, s%d, %d" % (S_T[0], S_T[0], L_WQ))
    A("v_lshlrev_b32 v%d, 4, v%d" % (va, V_LANE))
    A("v_add_u32 v%d, s%d, v%d" % (va, S_T[0], va))
    lg = LG(A); rd = {}
    nxt = [0]
    def rd_text():
        i = nxt[0]
        if i >= 28: return None
        nxt[0] += 1
        rd[i] = lg.count()
        return "ds_read_b128 %s, v%d offset:%d" % (vr(LT[i % 3], 4), va, i * 1024)
    for _ in range(3): A(rd_text())
    for t in cap_build(B0, YKs[0], 0): A(t)
    for beta in range(18):
        B = B0 + 4 * (beta & 1)
        nb = cap_build(B0 + 4 * ((beta + 1) & 1), YKs[(beta + 1) >> 2], (beta + 1) & 3) if beta < 17 else []
        for cb in range(2):
            if beta < 14:
                i = 2 * beta + cb
                lg.wait(rd[i]); a = LT[i % 3]
            else:
                a = wq_reg(beta, cb)
            A(mfma_t(D[cb], a, B, beta == 0))
            if beta < 14:
                t = rd_text()
                if t: A(t)
            for t in nb[2 * cb:2 * cb + 2]: A(t)
    c1, c2 = Cap(), Cap()
    g_reduce(c1, D[0], D[0], D[0] + 3, D[0], S_MG1)
    g_reduce(c2, D[1], D[1], D[1] + 3, D[1], S_MG1)
    A("v_lshrrev_b32 v%d, 1, v%d" % (va, V_N8))
    A("s_lshl_b32 s%d, s%d, 9" % (S_T[0], S_W))
    A("v_add_u32 v%d, s%d, v%d" % (va, S_T[0], va))
    weave(A, c1.l, c2.l)
    A("ds_write_b32 v%d, v%d offset:%d" % (va, D[0], SCR))
    A("ds_write_b32 v%d, v%d offset:%d" % (va, D[1], SCR + 256))
    A("v_lshlrev_b32 v%d, 3, v%d" % (va, V_LANE))
    A("v_mov_b32 v%d, s%d" % (39, S_TAG))
    A("s_waitcnt lgkmcnt(0)")
    A("s_barrier")
    skip = newlab("q_skip")
    A("s_cmp_lg_u32 s%d, 0" % S_W)
    A("s_cbranch_scc1 %s" % skip)
    for w in range(4):
        A("ds_read_b64 %s, v%d offset:%d" % (vr(30 + 2 * w, 2), va, SCR + w * 512))
    A("s_waitcnt lgkmcnt(2)")
    A("v_add_f32 v30, v30, v32")
    A("v_add_f32 v31, v31, v33")
    A("s_waitcnt lgkmcnt(0)")
    A("v_add_f32 v34, v34, v36")
    A("v_add_f32 v35, v35, v37")
    A("v_add_f32 v30, v30, v34")
    A("v_add_f32 v31, v31, v35")
    A("v_cvt_pk_bf16_f32 v38, v30, v31")
    A("buffer_store_dwordx2 v[38:39], v%d, s[%d:%d], s%d offen sc1" % (va, S_WS, S_WS + 3, s_qoff))
    A.label(skip)

def proj576(A, wreg, s_yp, ext=False):
    D = [30, 34, 38]
    LTX = 44; VAX = 42
    lg = LG(A)
    A("s_lshl_b32 s%d, s%d, 8" % (S_T[0], S_W))
    A("s_add_u32 m0, s%d, %d" % (S_T[0], SCR))
    rdx = {}
    def V(cb):
        c = Cap()
        d = D[cb % 3]
        g_reduce(c, d, d, d + 3, d, S_MG1)
        return c.l
    def wr(cb):
        lg.issue("ds_write_addtid_b32 v%d offset:%d" % (D[cb % 3], cb * 1024))
    for cb in range(9):
        d = D[cb % 3]
        fill = V(cb - 2) if cb >= 2 else []
        if ext:
            if cb == 0: A("s_waitcnt lgkmcnt(0)")
            else: lg.wait(rdx[cb])
            A(mfma_t(d, LTX, BX, True))
            if cb < 8:
                rdx[cb + 1] = lg.issue("ds_read_b128 %s, v%d offset:%d" % (vr(LTX, 4), VAX, (cb + 1) * 1024))
        for mu in range(4):
            A(mfma_t(d, wreg(mu, cb), B0 + 4 * mu, (mu == 0 and not ext)))
            for _ in range(2 if mu < 3 else 9):
                if fill: A(fill.pop(0))
        if cb >= 2: wr(cb - 2)
    for cb in (7, 8):
        for t in V(cb): A(t)
        wr(cb)
    if ext: fst(A, 3, 2)
    else:
        fst(A, 3, 3); cyc_stamp(A, 5)
    A("s_mul_i32 s%d, s%d, 4608" % (S_T[1], S_C))
    A("s_add_u32 s%d, s%d, s%d" % (S_T[1], S_T[1], s_yp))
    A("s_lshl_b32 s%d, s%d, 9" % (S_T[2], S_W))
    A("s_add_u32 s%d, s%d, s%d" % (S_T[1], S_T[1], S_T[2]))
    A("s_add_u32 s%d, s%d, 4096" % (S_T[2], S_T[1]))
    A("s_cmp_eq_u32 s%d, 0" % S_W)
    A("s_cselect_b32 s%d, s%d, 0x%x" % (S_T[2], S_T[2], OOB))
    A("s_lshl_b32 s%d, s%d, 10" % (S_T[0], S_W))
    A("s_waitcnt lgkmcnt(0)")
    A("s_barrier")
    A("s_add_u32 m0, s%d, %d" % (S_T[0], SCR))
    for blk in range(3):
        for w in range(4):
            A("ds_read_addtid_b32 v%d offset:%d" % (30 + 4 * blk + w, blk * 4096 + w * 256))
    for blk in range(3):
        A("s_waitcnt lgkmcnt(%d)" % (8 - 4 * blk))
        r = 30 + 4 * blk
        A("v_add_f32 v%d, v%d, v%d" % (r, r, r + 1))
        A("v_add_f32 v%d, v%d, v%d" % (r + 2, r + 2, r + 3))
        A("v_mov_b32 v%d, s%d" % (r + 1, S_TL))
        A("v_add_f32 v%d, v%d, v%d" % (r, r, r + 2))
    st = []
    for blk in range(3):
        r = 30 + 4 * blk
        so = S_T[2] if blk == 2 else S_T[1]
        st.append("buffer_store_dwordx2 %s, v%d, s[%d:%d], s%d offen%s" % (vr(r, 2), V_N8, S_WS, S_WS + 3, so, " offset:2048" if blk == 1 else ""))
    store_mode(A, st)

def oproj(A):
    T = 30; ST = 44; t = [26, 27, 28, 29]
    sa = S_T[0:4]
    zero_b(A, 18, 26)
    A("s_lshl_b32 s%d, s%d, 8" % (sa[0], S_W))
    A("s_add_u32 s%d, s%d, s%d" % (sa[0], sa[0], S_PART))
    for i in range(1, 4):
        A("s_add_u32 s%d, s%d, %d" % (sa[i], sa[0], 4096 * i))
    A("v_and_b32 v%d, 7, v%d" % (t[3], V_LANE))
    A("v_min_u32 v%d, 6, v%d" % (t[3], t[3]))
    A("v_lshlrev_b32 v%d, 11, v%d" % (t[3], t[3]))
    def issue():
        A("buffer_load_dwordx4 %s, v%d, s[%d:%d], s%d offen offset:1024 sc1" % (vr(ST, 4), t[3], S_WS, S_WS + 3, S_PART))
        for s in range(7):
            A("buffer_load_dwordx2 %s, v%d, s[%d:%d], s%d offen%s sc1" % (vr(T + 2 * s, 2), V_ROW8, S_WS, S_WS + 3, sa[s >> 1], " offset:2048" if (s & 1) else ""))
    def check():
        tagcheck(A, [T + 2 * s + 1 for s in range(7)] + [ST + 1, ST + 3], t[0], t[1], S_TAG)
    poll(A, issue, check)
    fst(A, 1, 3)
    m, Lr = ST, ST + 2
    A("v_mov_b32 v%d, 0xff800000" % t[0])
    A("v_cndmask_b32_e64 v%d, v%d, v%d, s[%d:%d]" % (m, m, t[0], S_M7, S_M7 + 1))
    A("v_max_f32_dpp v%d, v%d, v%d row_ror:1 row_mask:0xf bank_mask:0xf" % (t[1], m, m))
    for sh in (2, 4):
        A("v_max_f32_dpp v%d, v%d, v%d row_ror:%d row_mask:0xf bank_mask:0xf" % (t[1], t[1], t[1], sh))
    A("v_sub_f32 v%d, v%d, v%d" % (m, m, t[1]))
    A("v_exp_f32 v%d, v%d" % (m, m))
    A("v_mul_f32 v%d, v%d, v%d" % (Lr, m, Lr))
    o, o2 = t[2], t[0]
    c1, c2 = Cap(), Cap()
    for sh in (1, 2, 4):
        c1("v_add_f32_dpp v%d, v%d, v%d row_ror:%d row_mask:0xf bank_mask:0xf" % (Lr, Lr, Lr, sh))
    c1("v_rcp_f32 v%d, v%d" % (Lr, Lr))
    c2("v_mul_f32_dpp v%d, v%d, v%d row_newbcast:0 row_mask:0xf bank_mask:0xf" % (o, m, T))
    c2("v_mul_f32_dpp v%d, v%d, v%d row_newbcast:1 row_mask:0xf bank_mask:0xf" % (o2, m, T + 2))
    for s in range(2, 7):
        c2("v_fmac_f32_dpp v%d, v%d, v%d row_newbcast:%d row_mask:0xf bank_mask:0xf" % (o if s % 2 == 0 else o2, m, T + 2 * s, s))
    c2("v_add_f32 v%d, v%d, v%d" % (o, o, o2))
    weave(A, c1.l, c2.l, per=2)
    A("v_mul_f32 v%d, v%d, v%d" % (o, o, Lr))
    A("v_cvt_pk_bf16_f32 v%d, v%d, v%d" % (o, o, o))
    A("v_and_b32 v%d, v%d, v%d" % (o, o, V_HALF))
    for mu in range(4):
        build_b(A, B0 + 4 * mu, o, mu)
    fst(A, 2, 3)
    A("s_barrier")
    cyc_stamp(A, 4)
    proj576(A, wo_reg, S_YP1, ext=False)
    fst(A, 4, 3)

FINE = {"cfg": None}
def fst(A, k, lvl=1):
    cfg = FINE["cfg"]
    if cfg and cfg.get("fine") == lvl: chain_stamp(A, cfg, k)

def red(A, s_yp, bias, tail):
    L1 = 30; L2 = 34; a1, a2, w1a, w2a, t0, t1 = 36, 37, 38, 39, 40, 41
    so = S_T[0]
    A("s_mul_i32 s%d, s%d, %d" % (so, S_W, 8 * 4608))
    A("s_add_u32 s%d, s%d, s%d" % (so, so, s_yp))
    A("s_mul_i32 s%d, s%d, 144" % (S_T[1], S_C))
    A("s_add_u32 s%d, s%d, s%d" % (so, so, S_T[1]))
    A("v_lshrrev_b32 v%d, 3, v%d" % (t0, V_LANE))
    A("v_mul_u32_u24 v%d, 4608, v%d" % (a2, t0))
    A("v_and_b32 v%d, 7, v%d" % (t1, V_LANE))
    A("v_lshl_add_u32 v%d, v%d, 4, v%d" % (a1, t1, a2))
    A("v_and_b32 v%d, 1, v%d" % (47, V_LANE))
    A("v_lshl_add_u32 v%d, v%d, 3, v%d" % (a2, 47, a2))
    def issue():
        A("buffer_load_dwordx4 %s, v%d, s[%d:%d], s%d offen sc1" % (vr(L1, 4), a1, S_WS, S_WS + 3, so))
        A("buffer_load_dwordx2 %s, v%d, s[%d:%d], s%d offen offset:128 sc1" % (vr(L2, 2), a2, S_WS, S_WS + 3, so))
    def between():
        A("s_lshl_b32 s%d, s%d, 5" % (S_T[1], S_W))
        A("v_lshlrev_b32 v%d, 2, v%d" % (t0, t0))
        A("v_add_u32 v%d, s%d, v%d" % (t0, S_T[1], t0))
        A("v_mul_u32_u24 v%d, 288, v%d" % (w1a, t1))
        A("v_add_u32 v%d, v%d, v%d" % (w1a, w1a, t0))
        A("v_mul_u32_u24 v%d, 144, v%d" % (w2a, 47))
        A("v_add_u32 v%d, v%d, v%d" % (w2a, w2a, t0))
        A("v_lshrrev_b32 v%d, 1, v%d" % (46, V_LANE))
        A("v_mul_u32_u24 v%d, 144, v%d" % (46, 46))
        A("v_lshl_add_u32 v%d, v%d, 6, v%d" % (46, 47, 46))
        A("s_barrier")
    def check():
        tagcheck(A, [L1 + 1, L1 + 3, L2 + 1], 42, 43)
    poll(A, issue, check, between)
    if not bias: fst(A, 2)
    else: fst(A, 5, 2)
    A("ds_write_b32 v%d, v%d offset:%d" % (w1a, L1, SCR))
    A("ds_write_b32 v%d, v%d offset:%d" % (w1a, L1 + 2, SCR + 144))
    A("ds_write_b32 v%d, v%d offset:%d" % (w2a, L2, SCR + 16 * 144))
    A("s_waitcnt lgkmcnt(0)")
    A("s_barrier")
    if not bias: fst(A, 3)
    skip = newlab("red_skip")
    A("s_cmp_lg_u32 s%d, 0" % S_W)
    A("s_cbranch_scc1 %s" % skip)
    Q = 30
    for k in range(4):
        A("ds_read_b128 %s, v%d offset:%d" % (vr(Q + 4 * k, 4), 46, SCR + 16 * k))
    for k in range(4):
        A("s_waitcnt lgkmcnt(%d)" % (3 - k))
        r = Q + 4 * k
        A("v_add_f32 v%d, v%d, v%d" % (r, r, r + 1))
        A("v_add_f32 v%d, v%d, v%d" % (r + 2, r + 2, r + 3))
        A("v_add_f32 v%d, v%d, v%d" % (r, r, r + 2))
    A("v_add_f32 v%d, v%d, v%d" % (Q, Q, Q + 4))
    A("v_add_f32 v%d, v%d, v%d" % (Q + 8, Q + 8, Q + 12))
    A("v_add_f32 v%d, v%d, v%d" % (Q, Q, Q + 8))
    A("v_add_f32_dpp v%d, v%d, v%d %s" % (Q + 1, Q, Q, qp([1, 0, 3, 2])))
    bf16r(A, Q + 1, Q + 1)
    if bias:
        A("v_add_f32 v%d, v%d, v%d" % (Q + 1, Q + 1, V_B2))
        bf16r(A, Q + 1, Q + 1)
    A("v_add_f32 v%d, v%d, v%d" % (V_X, V_X, Q + 1))
    bf16r(A, V_X, V_X)
    tail(A)
    A.label(skip)
    if not bias: fst(A, 4)
    else: fst(A, 6, 2)

def mlp(A):
    D = [30, 34]; DL = 38; RL = 26
    LT = [18, 22]; va = 47
    A("s_barrier")
    A("s_mul_i32 s%d, s%d, 5120" % (S_T[0], S_W))
    A("s_add_u32 s%d, s%d, %d" % (S_T[0], S_T[0], L_W1L))
    A("v_lshlrev_b32 v%d, 4, v%d" % (va, V_LANE))
    A("v_add_u32 v%d, s%d, v%d" % (va, S_T[0], va))
    order = [b for q in range(4) for b in range(18) if (b & 3) == q]
    lg = LG(A); rd = {}; nxt = [0]
    def rd_issue():
        i = nxt[0]
        if i >= 18: return
        nxt[0] += 1
        rd[i] = lg.issue("ds_read_b128 %s, v%d offset:%d" % (vr(LT[i % 2], 4), va, (order[i] >> 2) * 1024))
    rd_issue(); rd_issue()
    def extract_left(q):
        return ["v_add_f32_dpp v%d, v%d, v%d %s" % (27, DL + 2, DL, qp([2, 3, 2, 3])),
                "v_add_f32_dpp v%d, v%d, v%d %s" % (28, DL + 1, DL + 3, qp([0, 1, 0, 1])),
                "v_cndmask_b32_e64 v%d, v%d, v%d, s[%d:%d]" % (27, 27, 28, S_MG1, S_MG1 + 1),
                "v_mov_b32_dpp v%d, v%d quad_perm:[0,1,2,3] row_mask:0x%x bank_mask:0xf" % (RL, 27, 1 << q)]
    for t in cap_build(B0, YK[order[0] >> 2], order[0] & 3): A(t)
    for n, beta in enumerate(order):
        B = B0 + 4 * (n & 1)
        q = beta & 3
        newq = (n == 0 or (order[n - 1] & 3) != q)
        nb = cap_build(B0 + 4 * ((n + 1) & 1), YK[order[n + 1] >> 2], order[n + 1] & 3) if n < 17 else []
        A(mfma_t(D[0], w1_reg(beta, 0), B, n == 0))
        for t in nb[0:2]: A(t)
        A(mfma_t(D[1], w1_reg(beta, 1), B, n == 0))
        for t in nb[2:4]: A(t)
        if newq and n > 0:
            for t in extract_left(order[n - 1] & 3): A(t)
        lg.wait(rd[n])
        A(mfma_t(DL, LT[n % 2], B, newq))
        rd_issue()
    fst(A, 1, 2)
    c1, c2 = Cap(), Cap()
    g_reduce(c1, D[0], D[0], D[0] + 3, D[0], S_MG1)
    g_reduce(c2, D[1], D[1], D[1] + 3, D[1], S_MG1)
    ua, ul = 47, 46
    A("v_lshrrev_b32 v%d, 1, v%d" % (ua, V_N8))
    A("s_mul_i32 s%d, s%d, 576" % (S_T[0], S_W))
    A("v_add_u32 v%d, s%d, v%d" % (ua, S_T[0], ua))
    weave(A, c1.l, c2.l)
    A("ds_write_b32 v%d, v%d offset:%d" % (ua, D[0], SCR))
    A("ds_write_b32 v%d, v%d offset:%d" % (ua, D[1], SCR + 256))
    A("v_bfe_u32 v%d, v%d, 1, 1" % (ul, V_LANE))
    A("v_lshlrev_b32 v%d, 5, v%d" % (ul, ul))
    A("v_bfe_u32 v%d, v%d, 2, 2" % (45, V_LANE))
    A("v_lshl_add_u32 v%d, v%d, 3, v%d" % (ul, 45, ul))
    A("v_and_b32 v%d, 1, v%d" % (45, V_LANE))
    A("v_lshl_add_u32 v%d, v%d, 2, v%d" % (ul, 45, ul))
    A("v_add_u32 v%d, s%d, v%d" % (ul, S_T[0], ul))
    for t in extract_left(3): A(t)
    xrow_allreduce(A, RL, 27)
    A("ds_write_b32 v%d, v%d offset:%d" % (ul, RL, SCR + 512))
    A("v_lshrrev_b32 v%d, 1, v%d" % (45, V_ROW8))
    A("s_lshl_b32 s%d, s%d, 7" % (S_T[0], S_W))
    A("v_add_u32 v%d, s%d, v%d" % (ua, S_T[0], 45))
    A("s_lshr_b32 s%d, s%d, 1" % (S_T[0], S_W))
    A("s_lshl_b32 s%d, s%d, 5" % (S_T[0], S_T[0]))
    A("v_add_u32 v%d, s%d, v%d" % (ul, S_T[0], 45))
    A("s_waitcnt lgkmcnt(0)")
    A("s_barrier")
    for w in range(4):
        A("ds_read_b32 v%d, v%d offset:%d" % (30 + w, ua, SCR + w * 576))
    for w in range(4):
        A("ds_read_b32 v%d, v%d offset:%d" % (34 + w, ul, SCR + 512 + w * 576))
    A("s_lshr_b32 s%d, s%d, 1" % (S_T[1], S_W))
    A("s_mul_i32 s%d, s%d, 9216" % (S_T[1], S_T[1]))
    A("s_add_u32 s%d, s%d, %d" % (S_T[1], S_T[1], L_W2X))
    A("v_lshlrev_b32 v42, 4, v%d" % V_LANE)
    A("v_add_u32 v42, s%d, v42" % S_T[1])
    A("ds_read_b128 v[44:47], v42")
    zero_b(A, 18, 30)
    k = math.sqrt(2.0 / math.pi); ca = -2.0 * k * math.log2(math.e); cb_ = ca * 0.044715
    chains = []
    for (r, bias, tt) in ((30, V_B1M, 38), (34, V_B1E, 40)):
        c = Cap()
        c("v_add_f32 v%d, v%d, v%d" % (r, r, r + 1))
        c("v_add_f32 v%d, v%d, v%d" % (r + 2, r + 2, r + 3))
        c("v_add_f32 v%d, v%d, v%d" % (r, r, r + 2))
        bf16r(c, r, r)
        c("v_add_f32 v%d, v%d, v%d" % (r, r, bias))
        bf16r(c, r, r)
        c("v_mul_f32 v%d, v%d, v%d" % (tt, r, r))
        c("v_mov_b32 v%d, 0x%x" % (tt + 1, f2u(ca)))
        c("v_fmac_f32 v%d, 0x%x, v%d" % (tt + 1, f2u(cb_), tt))
        c("v_mul_f32 v%d, v%d, v%d" % (tt + 1, tt + 1, r))
        c("v_exp_f32 v%d, v%d" % (tt + 1, tt + 1))
        c("v_add_f32 v%d, 1.0, v%d" % (tt + 1, tt + 1))
        c("v_rcp_f32 v%d, v%d" % (tt + 1, tt + 1))
        c("v_mul_f32 v%d, v%d, v%d" % (r, r, tt + 1))
        c("v_cvt_pk_bf16_f32 v%d, v%d, v%d" % (r, r, r))
        c("v_and_b32 v%d, v%d, v%d" % (r, r, V_HALF))
        chains.append(c.l)
    chains[1].append("v_cndmask_b32_e64 v34, 0, v34, s[%d:%d]" % (S_MGP, S_MGP + 1))
    A("s_waitcnt lgkmcnt(1)")
    A("s_barrier")
    weave(A, chains[0], chains[1])
    for mu in range(4):
        build_b(A, B0 + 4 * mu, 30, mu)
    build_b(A, BX, 34, 0)
    fst(A, 2, 2)
    proj576(A, w2_reg, S_YP2, ext=True)

class WLoader:
    VOFF = 26; TT = (27, 28)
    def __init__(self, A):
        self.A = A; self.list = []; self.pos = 0; self.cur_srd = None
    def add(self, mat, kind, sbase, off, dest):
        self.list.append((mat, kind, sbase, off, dest))
    def voff(self, kind):
        A = self.A; v = self.VOFF; t0, t1 = self.TT
        if kind == "L":
            A("v_bfe_u32 v%d, v0, 2, 2" % t0)
            A("v_lshlrev_b32 v%d, 3, v%d" % (t0, t0))
            A("v_lshrrev_b32 v%d, 4, v0" % t1)
            A("v_lshl_add_u32 v%d, v%d, 1, v%d" % (t0, t1, t0))
            A("v_bfe_u32 v%d, v0, 1, 1" % t1)
            A("v_add_u32 v%d, v%d, v%d" % (t0, t0, t1))
            A("v_mul_u32_u24 v%d, 9216, v%d" % (v, t0))
            A("v_and_b32 v%d, 1, v0" % t1)
            A("v_lshl_add_u32 v%d, v%d, 4, v%d" % (v, t1, v))
        else:
            A("v_lshrrev_b32 v%d, 4, v0" % t0)
            A("v_bfe_u32 v%d, v0, 3, 1" % t1)
            A("v_lshl_add_u32 v%d, v%d, 1, v%d" % (t0, t0, t1))
            A("v_mul_u32_u24 v%d, %d, v%d" % (v, kind, t0))
            A("v_and_b32 v%d, 7, v0" % t1)
            A("v_lshl_add_u32 v%d, v%d, 4, v%d" % (v, t1, v))
    def issue(self, n):
        A = self.A
        sizes = {"wq": (S_P + 2, 4718592), "wo": (S_P + 4, 4718592), "w1": (S_P + 6, 5308416), "w2": (S_P + 10, 5308416)}
        curk = None
        for _ in range(n):
            if self.pos >= len(self.list): return
            mat, kind, sbase, off, dest = self.list[self.pos]; self.pos += 1
            if mat != self.cur_srd:
                srd(A, S_SRD, *sizes[mat]); self.cur_srd = mat
            if kind != curk:
                self.voff(kind); curk = kind
            if dest[0] == "r":
                A("s_add_u32 s%d, s%d, 0x%x" % (S_T[8], sbase, off))
                A("buffer_load_dwordx4 %s, v%d, s[%d:%d], s%d offen nt" % (vr(dest[1], 4), self.VOFF, S_SRD, S_SRD + 3, S_T[8]))
            else:
                A("s_add_u32 m0, s%d, 0x%x" % (dest[1], dest[2]))
                A("s_add_u32 s%d, s%d, 0x%x" % (S_T[8], sbase, off))
                A("buffer_load_dwordx4 v%d, s[%d:%d], s%d offen%s lds" % (self.VOFF, S_SRD, S_SRD + 3, S_T[8], "" if kind == "L" else " nt"))
    def left(self): return len(self.list) - self.pos


def chain_stamp(A, cfg, k):
    if not cfg.get("stamps"): return
    A("s_memrealtime s[%d:%d]" % (S_EX, S_EX + 1))
    A("s_waitcnt lgkmcnt(0)")
    A("s_mov_b32 s%d, s%d" % (S_CST + k, S_EX))

def cyc_stamp(A, k):
    cfg = FINE["cfg"]
    if cfg and cfg.get("fine") == 4:
        A("s_memtime s[%d:%d]" % (S_EX, S_EX + 1))
        A("s_waitcnt lgkmcnt(0)")
        A("s_mov_b32 s%d, s%d" % (S_CST + k, S_EX))

def stamp_store(A, base, shift, nst, first, extra_off=None):
    A("s_lshl_b32 s%d, s2, 2" % S_T[0])
    A("s_add_u32 s%d, s%d, s%d" % (S_T[0], S_T[0], S_W))
    A("s_lshl_b32 s%d, s%d, %d" % (S_T[0], S_T[0], shift))
    if extra_off: extra_off()
    A("s_add_u32 s%d, s%d, 0x%x" % (S_T[0], S_T[0], base))
    A("v_mov_b32 v30, 0")
    for k in range(nst):
        A("v_mov_b32 v31, s%d" % (first + k))
        A("buffer_store_dword v31, v30, s[%d:%d], s%d offen offset:%d" % (S_WS, S_WS + 3, S_T[0], 4 * k))
        A("s_nop 1")

def gen_chain(A, cfg):
    A.comment("chain setup")
    A("s_lshr_b32 s%d, s2, 3" % S_C)
    for i, off in enumerate((0, 24, 32, 48, 56, 64, 72, 80)):
        A("s_load_dwordx2 s[%d:%d], s[0:1], %d" % (S_P + 2 * i, S_P + 2 * i + 1, off))
    def m64(s, v):
        A("s_mov_b32 s%d, 0x%x" % (s, v & 0xffffffff)); A("s_mov_b32 s%d, 0x%x" % (s + 1, (v >> 32) & 0xffffffff))
    t0, t1, t2, t3 = 30, 31, 32, 33
    A("v_bfe_u32 v%d, v0, 2, 2" % t0)
    A("v_lshlrev_b32 v%d, 3, v%d" % (V_ROW8, t0))
    A("v_lshrrev_b32 v%d, 4, v0" % t0)
    A("v_lshl_add_u32 v%d, v%d, 1, v%d" % (V_ROW8, t0, V_ROW8))
    A("v_bfe_u32 v%d, v0, 1, 1" % t0)
    A("v_add_u32 v%d, v%d, v%d" % (V_ROW8, V_ROW8, t0))
    A("v_lshlrev_b32 v%d, 3, v%d" % (V_ROW8, V_ROW8))
    SQ, SO, S1, S2, S2X, LQ, L1L = S_T[9:16]
    L2X = 78; S1L = 96
    A("s_mul_i32 s%d, s%d, %d" % (SQ, S_W, 144 * 8192))
    A("s_lshl_b32 s%d, s%d, 8" % (S_T[0], S_C))
    A("s_add_u32 s%d, s%d, s%d" % (SQ, SQ, S_T[0]))
    A("s_mul_i32 s%d, s%d, 28672" % (LQ, S_W))
    A("s_add_u32 s%d, s%d, %d" % (LQ, LQ, L_WQ))
    A("s_waitcnt lgkmcnt(0)")
    srd(A, S_OUT, S_P, 2304)
    FL = {1: 30, 0: 35}; YL = {1: 10, 0: 15}
    A("v_lshlrev_b32 v20, 2, v0")
    A("v_lshrrev_b32 v21, 2, v%d" % V_ROW8)
    A("s_mul_i32 s%d, s%d, 288" % (S_T[1], S_W))
    for b in (1, 0):
        for k in range(5):
            A("buffer_load_dword v%d, v20, s[%d:%d], 0 offen offset:%d" % (FL[b] + k, S_OUT, S_OUT + 3, b * 1152 + 256 * k))
        for k in range(5):
            A("buffer_load_ushort v%d, v21, s[%d:%d], s%d offen offset:%d" % (YL[b] + k, S_OUT, S_OUT + 3, S_T[1], b * 1152 + 64 * k))
    WL = WLoader(A)
    for beta in range(18):
        for cb in range(2):
            WL.add("wq", 8192, SQ, beta * 65536 + cb * 128, ("l", LQ, (2 * beta + cb) * 1024) if beta < 14 else ("r", wq_reg(beta, cb)))
    for mu in range(4):
        for cb in range(9):
            WL.add("wo", 1152, SO, mu * 8 * 1152 + cb * 128, ("r", wo_reg(mu, cb)))
    for beta in range(18):
        for cb in range(2):
            WL.add("w1", 9216, S1, beta * 8 * 9216 + cb * 128, ("r", w1_reg(beta, cb)))
    for i in range(5):
        WL.add("w1", "L", S1L, i * 32 * 9216, ("l", L1L, i * 1024))
    for mu in range(4):
        for cb in range(9):
            WL.add("w2", 1152, S2, mu * 8 * 1152 + cb * 128, ("r", w2_reg(mu, cb)))
    for j in range(4):
        WL.add("w2", 1152, S2X, j * 128, ("l", L2X, j * 1024))
    ist = lambda k: chain_stamp(A, cfg, 8 + k)
    ist(0)
    WL.issue(36)
    npf = 0
    if cfg.get("pf_chain"):
        npf = cfg["code_prefetch"](A, "L_chain", "L_end", cfg["pf_chain"], 508, 20)
    m64(S_MG1, 0xcccccccccccccccc); m64(S_MODD, 0xaaaaaaaaaaaaaaaa); m64(S_ML36, (1 << 36) - 1)
    m64(S_MMU2, 0x00ff00ff00ff00ff); m64(S_M7, 0x8080808080808080); m64(S_ML32, 0xffffffff)
    A("s_and_b32 s%d, s%d, 1" % (S_T[0], S_W))
    A("s_cmp_eq_u32 s%d, 1" % S_T[0])
    A("s_mov_b32 s%d, 0x33333333" % S_MGP)
    A("s_cselect_b32 s%d, 0xcccccccc, s%d" % (S_MGP, S_MGP))
    A("s_mov_b32 s%d, s%d" % (S_MGP + 1, S_MGP))
    A("s_mov_b32 s%d, 0" % S_FAST)
    A("s_mul_i32 s%d, s%d, %d" % (SO, S_C, 128 * 1152))
    A("s_mul_i32 s%d, s%d, %d" % (S_T[0], S_W, 32 * 1152))
    A("s_add_u32 s%d, s%d, s%d" % (SO, SO, S_T[0]))
    A("s_mul_i32 s%d, s%d, %d" % (S1, S_W, 144 * 9216))
    A("s_lshl_b32 s%d, s%d, 5" % (S_T[1], S_C))
    A("s_add_u32 s%d, s%d, s%d" % (S1L, S1, S_T[1]))
    A("s_add_u32 s%d, s%d, 8192" % (S1L, S1L))
    A("s_lshl_b32 s%d, s%d, 8" % (S_T[1], S_C))
    A("s_add_u32 s%d, s%d, s%d" % (S1, S1, S_T[1]))
    A("s_mul_i32 s%d, s%d, %d" % (S2, S_C, 128 * 1152))
    A("s_lshr_b32 s%d, s%d, 1" % (S_T[1], S_W))
    A("s_mul_i32 s%d, s%d, %d" % (S2X, S_T[1], 8 * 1152))
    A("s_mul_i32 s%d, s%d, %d" % (S_T[2], S_C, 16 * 1152))
    A("s_add_u32 s%d, s%d, s%d" % (S2X, S2X, S_T[2]))
    A("s_add_u32 s%d, s%d, %d" % (S2X, S2X, 4096 * 1152))
    A("s_add_u32 s%d, s%d, s%d" % (S2, S2, S_T[0]))
    A("s_mul_i32 s%d, s%d, 5120" % (L1L, S_W))
    A("s_add_u32 s%d, s%d, %d" % (L1L, L1L, L_W1L))
    A("s_mul_i32 s%d, s%d, 9216" % (L2X, S_T[1]))
    A("s_add_u32 s%d, s%d, %d" % (L2X, L2X, L_W2X))
    A("s_and_b32 s%d, s%d, 1" % (S_T[1], S_W))
    A("s_mul_i32 s%d, s%d, %d" % (S_T[2], S_T[1], 5 * 1024))
    A("s_add_u32 s%d, s%d, s%d" % (L2X, L2X, S_T[2]))
    A("s_mul_i32 s%d, s%d, %d" % (S_T[2], S_T[1], 5 * 128))
    A("s_add_u32 s%d, s%d, s%d" % (S2X, S2X, S_T[2]))
    A("v_and_b32 v22, 1, v0")
    A("v_lshlrev_b32 v22, 4, v22")
    A("v_mov_b32 v23, 0xffff")
    A("v_lshlrev_b32 v%d, v22, v23" % V_HALF)
    A("v_bfe_u32 v22, v0, 4, 1")
    A("v_lshlrev_b32 v%d, 5, v22" % V_N8)
    A("v_bfe_u32 v22, v0, 1, 1")
    A("v_lshl_add_u32 v%d, v22, 4, v%d" % (V_N8, V_N8))
    A("v_lshrrev_b32 v22, 5, v0")
    A("v_lshl_add_u32 v%d, v22, 3, v%d" % (V_N8, V_N8))
    A("v_bfe_u32 v22, v0, 2, 2")
    A("v_lshl_add_u32 v%d, v22, 1, v%d" % (V_N8, V_N8))
    A("v_and_b32 v22, 1, v0")
    A("v_add_u32 v%d, v%d, v22" % (V_N8, V_N8))
    A("v_lshlrev_b32 v%d, 3, v%d" % (V_N8, V_N8))
    A("s_mov_b32 s%d, s%d" % (S_EPOCH, S_TAG))
    A("s_mul_i32 s%d, s%d, 0x%x" % (S_TAG, S_TAG, HASH_MUL))
    A("s_add_u32 s%d, s%d, 0x%x" % (S_TAG, S_TAG, HASH_ADD))
    A("s_getreg_b32 s%d, hwreg(HW_REG_XCC_ID)" % S_T[0])
    A("s_and_b32 s%d, s%d, 15" % (S_T[0], S_T[0]))
    A("s_mov_b32 s%d, s%d" % (S_XCC, S_T[0]))
    A("v_mov_b32 v22, s%d" % S_T[0])
    A("v_mov_b32 v23, s%d" % S_TAG)
    A("s_lshl_b32 s%d, s%d, 3" % (S_T[0], S_C))
    A("s_add_u32 s%d, s%d, 0x%x" % (S_T[0], S_T[0], OFF_XC))
    A("v_mov_b32 v24, 0")
    A("buffer_store_dwordx2 v[22:23], v24, s[%d:%d], s%d offen sc1" % (S_WS, S_WS + 3, S_T[0]))
    A("s_waitcnt vmcnt(%d)" % (36 + npf + 1))
    ist(1)
    YKB = {1: YK, 0: [5, 6, 7, 8, 9]}
    for b in (1, 0):
        f = FL[b]; sx, sq, t = 40, 41, 47
        A("v_cndmask_b32_e64 v%d, 0, v%d, s[%d:%d]" % (f + 4, f + 4, S_ML32, S_ML32 + 1))
        for k in range(5):
            A("v_lshlrev_b32 v%d, 16, v%d" % (t, f + k))
            A("v_and_b32 v%d, 0xffff0000, v%d" % (f + k, f + k))
            if k == 0:
                A("v_add_f32 v%d, v%d, v%d" % (sx, t, f + k))
                A("v_mul_f32 v%d, v%d, v%d" % (sq, t, t))
            else:
                A("v_add_f32 v%d, v%d, v%d" % (sx, sx, t))
                A("v_fmac_f32 v%d, v%d, v%d" % (sq, t, t))
                A("v_add_f32 v%d, v%d, v%d" % (sx, sx, f + k))
            A("v_fmac_f32 v%d, v%d, v%d" % (sq, f + k, f + k))
        A("v_add_f32_dpp v%d, v%d, v%d %s" % (sx, sx, sx, qp([1, 0, 3, 2])))
        A("v_add_f32_dpp v%d, v%d, v%d %s" % (sq, sq, sq, qp([1, 0, 3, 2])))
        A("v_cndmask_b32_e64 v%d, v%d, v%d, s[%d:%d]" % (sx, sx, sq, S_MODD, S_MODD + 1))
        parity_allreduce(A, sx, t)
        for k in range(5):
            A("v_lshlrev_b32 v%d, 16, v%d" % (YL[b] + k, YL[b] + k))
        ln_tail(A, sx, [YL[b] + k for k in range(5)], YKB[b], 41, 47)
    WL.issue(20)
    zero_b(A, B0, B0 + 8)
    A("s_waitcnt vmcnt(%d)" % (20 + npf + 1))
    ist(2)
    for b in (1, 0):
        A("s_lshl_b32 s%d, s%d, 9" % (S_QO, S_C))
        A("s_add_u32 s%d, s%d, 0x%x" % (S_QO, S_QO, OFF_Q + b * 16384))
        qproj(A, S_QO, YKB[b], pre_barrier=(b == 0))
        ist(3 if b == 1 else 4)
        if b == 1:
            A("s_waitcnt vmcnt(20)")
            WL.issue(30)
    srd(A, S_OUT, S_P, 2304)
    A("v_lshrrev_b32 v%d, 1, v0" % t0)
    A("s_mul_i32 s%d, s%d, 18" % (S_T[1], S_C))
    A("v_add_u32 v%d, s%d, v%d" % (t0, S_T[1], t0))
    A("v_lshlrev_b32 v%d, 1, v%d" % (t0, t0))
    A("buffer_load_ushort v%d, v%d, s[%d:%d], 0 offen offset:1152" % (V_X, t0, S_OUT, S_OUT + 3))
    A("buffer_load_ushort v%d, v%d, s[%d:%d], 0 offen" % (V_XO, t0, S_OUT, S_OUT + 3))
    srd(A, S_SRD, S_P + 12, 1152)
    A("buffer_load_ushort v%d, v%d, s[%d:%d], 0 offen" % (V_B2, t0, S_SRD, S_SRD + 3))
    A("v_lshrrev_b32 v%d, 2, v%d" % (t1, V_ROW8))
    A("s_lshl_b32 s%d, s%d, 8" % (S_T[1], S_C))
    A("s_lshl_b32 s%d, s%d, 6" % (S_T[2], S_W))
    A("s_add_u32 s%d, s%d, s%d" % (S_T[1], S_T[1], S_T[2]))
    A("s_lshl_b32 s%d, s%d, 5" % (S_T[2], S_C))
    A("s_lshr_b32 s%d, s%d, 1" % (S_T[3], S_W))
    A("s_lshl_b32 s%d, s%d, 4" % (S_T[3], S_T[3]))
    A("s_add_u32 s%d, s%d, s%d" % (S_T[2], S_T[2], S_T[3]))
    A("s_add_u32 s%d, s%d, 8192" % (S_T[2], S_T[2]))
    srd(A, S_SRD, S_P + 8, 9216)
    A("buffer_load_ushort v%d, v%d, s[%d:%d], s%d offen" % (V_B1M, t1, S_SRD, S_SRD + 3, S_T[1]))
    A("buffer_load_ushort v%d, v%d, s[%d:%d], s%d offen" % (V_B1E, t1, S_SRD, S_SRD + 3, S_T[2]))
    A("v_lshlrev_b32 v%d, 2, v%d" % (V_PX, t0))
    A("v_mov_b32 v%d, 0x%x" % (t2, OOB))
    A("v_cndmask_b32_e64 v%d, v%d, v%d, s[%d:%d]" % (V_PX, V_PX, t2, S_MODD, S_MODD + 1))
    A("v_cndmask_b32_e64 v%d, v%d, v%d, s[%d:%d]" % (V_PX, t2, V_PX, S_ML36, S_ML36 + 1))
    A("v_and_b32 v%d, 1, v0" % t3)
    A("s_lshl_b32 s%d, s%d, 1" % (S_T[1], S_C))
    A("v_add_u32 v%d, s%d, v%d" % (t3, S_T[1], t3))
    A("v_lshlrev_b32 v%d, 3, v%d" % (t3, t3))
    A("v_add_u32 v%d, 4608, v%d" % (t3, t3))
    A("v_and_b32 v%d, 62, v0" % t2)
    A("v_cmp_eq_u32 vcc, 40, v%d" % t2)
    A("v_cndmask_b32 v%d, v%d, v%d, vcc" % (V_PX, V_PX, t3))
    def xc_issue():
        A("v_and_b32 v34, 31, v0")
        A("v_lshlrev_b32 v34, 3, v34")
        A("s_mov_b32 s%d, 0x%x" % (S_T[0], OFF_XC))
        A("buffer_load_dwordx2 v[36:37], v34, s[%d:%d], s%d offen sc1" % (S_WS, S_WS + 3, S_T[0]))
    xc_issue()
    if cfg.get("pretouch", 1):
        A("s_lshl_b32 s%d, s%d, 2" % (S_T[0], S_C))
        A("s_add_u32 s%d, s%d, s%d" % (S_T[0], S_T[0], S_W))
        A("s_mul_i32 s%d, s%d, 2560" % (S_T[1], S_T[0]))
        A("s_add_u32 s%d, s%d, 0x%x" % (S_T[1], S_T[1], OFF_YP))
        A("v_lshlrev_b32 v35, 4, v0")
        for i in range(3):
            A("buffer_load_dwordx4 v[38:41], v35, s[%d:%d], s%d offen offset:%d" % (S_WS, S_WS + 3, S_T[1], min(1024 * i, 1536)))
        A("s_and_b32 s%d, s%d, 15" % (S_T[0], S_T[0]))
        A("s_lshl_b32 s%d, s%d, 10" % (S_T[0], S_T[0]))
        A("s_add_u32 s%d, s%d, 0x%x" % (S_T[0], S_T[0], OFF_X))
        A("buffer_load_dwordx4 v[38:41], v35, s[%d:%d], s%d offen" % (S_WS, S_WS + 3, S_T[0]))
    WL.cur_srd = None
    ist(5)
    win = cfg.get("w_win", 60)
    stepn = 30 if win >= 60 else 8
    while WL.left() > 0:
        A("s_waitcnt vmcnt(%d)" % (win - stepn))
        WL.issue(min(stepn, WL.left()))
    assert WL.cur_srd == "w2"
    sk = newlab("w2x")
    A("s_waitcnt vmcnt(40)")
    WL.voff(1152)
    A("s_and_b32 s%d, s%d, 1" % (S_T[0], S_W))
    A("s_cmp_eq_u32 s%d, 1" % S_T[0])
    A("s_cbranch_scc1 %s" % sk)
    A("s_add_u32 m0, s%d, 0x%x" % (L2X, 4 * 1024))
    A("s_add_u32 s%d, s%d, 0x%x" % (S_T[8], S2X, 4 * 128))
    A("buffer_load_dwordx4 v%d, s[%d:%d], s%d offen nt lds" % (WL.VOFF, S_SRD, S_SRD + 3, S_T[8]))
    A.label(sk)
    ist(6)
    A("s_waitcnt vmcnt(0)")
    for r in (V_X, V_XO, V_B1M, V_B2, V_B1E):
        A("v_lshlrev_b32 v%d, 16, v%d" % (r, r))
    srd(A, S_OUT, S_P + 14, 2304)
    if cfg.get("tlbwarm", 1) >= 2:
        A("v_mov_b32 v38, 0")
        A("buffer_load_dword v39, v38, s[%d:%d], 0 offen" % (S_OUT, S_OUT + 3))
        A("s_mov_b32 s%d, 0x280000" % S_T[0])
        A("buffer_load_dword v39, v38, s[%d:%d], s%d offen sc1" % (S_WS, S_WS + 3, S_T[0]))
    okx = newlab("xok"); rtx = newlab("xrt")
    A("v_cmp_ne_u32 vcc, s%d, v37" % S_TAG)
    A.branch("s_cbranch_vccz %s" % okx)
    A("s_mov_b32 s%d, 0x2000" % S_SPIN)
    A.label(rtx)
    A("s_sleep 2")
    xc_issue()
    A("s_waitcnt vmcnt(0)")
    A("v_cmp_ne_u32 vcc, s%d, v37" % S_TAG)
    A("s_sub_u32 s%d, s%d, 1" % (S_SPIN, S_SPIN))
    A.branch("s_cbranch_scc1 %s" % okx)
    A.branch("s_cbranch_vccnz %s" % rtx)
    A.label(okx)
    A("v_cmp_ne_u32 vcc, s%d, v36" % S_XCC)
    A("s_cmp_eq_u64 vcc, 0")
    A("s_cselect_b32 s%d, %d, 0" % (S_FAST, 0 if cfg.get("force_slow") else 1))
    ist(7)
    if cfg.get("stamps"):
        A("s_lshl_b32 s%d, s%d, 8" % (S_CST + 8, S_XCC))
        A("s_or_b32 s%d, s%d, s%d" % (S_CST + 8, S_CST + 8, S_FAST))
        stamp_store(A, 0x780000, 5, 8, S_CST + 8)
    if cfg.get("dbgtime"):
        A("s_memrealtime s[%d:%d]" % (S_EX, S_EX + 1))
        A("s_waitcnt lgkmcnt(0)")
        A("s_mov_b32 s%d, s%d" % (S_DBG, S_EX))
    A("s_mov_b32 s%d, 0x%x" % (S_YP1, OFF_YP))
    A("s_mov_b32 s%d, 0x%x" % (S_YP2, OFF_YP + YP_STRIDE))
    A("s_mov_b32 s%d, 0x%x" % (S_X1, OFF_X))
    A("s_mov_b32 s%d, 0x%x" % (S_X2, OFF_X + X_STRIDE))
    A("s_mov_b32 s%d, 2" % S_STEP)
    A.label("L_ch_loop")
    A("s_lshr_b32 s%d, 0xd, s%d" % (S_B, S_STEP))
    A("s_and_b32 s%d, s%d, 1" % (S_B, S_B))
    A("s_lshr_b32 s%d, 0x28, s%d" % (S_L, S_STEP))
    A("s_and_b32 s%d, s%d, 1" % (S_L, S_L))
    A("s_lshl_b32 s%d, s%d, 1" % (S_T[0], S_L))
    A("s_add_u32 s%d, s%d, s%d" % (S_T[0], S_T[0], S_B))
    A("s_lshl_b32 s%d, s%d, 5" % (S_PART, S_T[0]))
    A("s_add_u32 s%d, s%d, s%d" % (S_PART, S_PART, S_C))
    A("s_lshl_b32 s%d, s%d, 14" % (S_PART, S_PART))
    A("s_add_u32 s%d, s%d, 0x%x" % (S_PART, S_PART, OFF_PART))
    A("s_add_u32 s%d, s%d, s%d" % (S_TL, S_TAG, S_STEP))
    A("s_lshl_b32 s%d, s%d, 14" % (S_QO, S_B))
    A("s_lshl_b32 s%d, s%d, 9" % (S_T[1], S_C))
    A("s_add_u32 s%d, s%d, s%d" % (S_QO, S_QO, S_T[1]))
    A("s_add_u32 s%d, s%d, 0x%x" % (S_QO, S_QO, OFF_Q + 2 * 16384))
    FINE["cfg"] = cfg
    st = (lambda k: None) if cfg.get("fine") else (lambda k: chain_stamp(A, cfg, k))
    if cfg.get("fine") == 4:
        pass
    st(0); fst(A, 0); fst(A, 0, 3)
    oproj(A)
    st(1); fst(A, 1)
    red(A, S_YP1, False, lambda A: pubx(A, S_X1))
    st(2)
    gath_ln(A, S_X1)
    st(3); fst(A, 6); fst(A, 0, 2); fst(A, 0, 4); cyc_stamp(A, 1)
    mlp(A)
    st(4); fst(A, 7); fst(A, 4, 2); fst(A, 2, 4); cyc_stamp(A, 3)
    def tail2(A):
        o = newlab("t2out"); d = newlab("t2done")
        A("s_cmp_eq_u32 s%d, 1" % S_L)
        A.branch("s_cbranch_scc1 %s" % o)
        pubx(A, S_X2)
        A.branch("s_branch %s" % d)
        A.label(o)
        if cfg.get("perturb"):
            A("s_cmp_eq_u32 s%d, 0" % S_C)
            A("s_cselect_b32 s%d, 0x%x, 0" % (S_T[0], f2u(float(cfg["perturb"]) / 1000.0)))
            A("v_add_f32 v30, s%d, v%d" % (S_T[0], V_X))
            A("v_lshrrev_b32 v30, 16, v30")
        else:
            A("v_lshrrev_b32 v30, 16, v%d" % V_X)
        A("v_lshrrev_b32 v31, 2, v%d" % V_PX)
        A("s_mul_i32 s%d, s%d, 1152" % (S_T[0], S_B))
        A("s_mov_b32 s%d, 0x55555555" % S_EX)
        A("s_mov_b32 s%d, 0x5" % (S_EX + 1))
        A("s_mov_b64 exec, s[%d:%d]" % (S_EX, S_EX + 1))
        A("buffer_store_short v30, v31, s[%d:%d], s%d offen" % (S_OUT, S_OUT + 3, S_T[0]))
        A("s_mov_b64 exec, -1")
        A.label(d)
    red(A, S_YP2, True, tail2)
    st(5)
    A("s_cmp_eq_u32 s%d, 1" % S_L)
    A.branch("s_cbranch_scc1 L_ch_next")
    gath_ln(A, S_X2)
    st(6)
    qproj(A, S_QO)
    st(7); fst(A, 7, 2)
    A.label("L_ch_next")
    A("s_cmp_eq_u32 s%d, 3" % S_STEP)
    A("s_cbranch_scc0 L_ch_noswap")
    A("v_swap_b32 v%d, v%d" % (V_X, V_XO))
    A.label("L_ch_noswap")
    if cfg.get("stamps"):
        def eo():
            A("s_sub_u32 s%d, s%d, 2" % (S_T[1], S_STEP))
            A("s_lshl_b32 s%d, s%d, 5" % (S_T[1], S_T[1]))
            A("s_add_u32 s%d, s%d, s%d" % (S_T[0], S_T[0], S_T[1]))
        stamp_store(A, 0x700000, 7, 8, S_CST, eo)
    if cfg.get("dbgtime"):
        A("s_memrealtime s[%d:%d]" % (S_EX, S_EX + 1))
        A("s_waitcnt lgkmcnt(0)")
        for k in range(2, 6):
            A("s_cmp_eq_u32 s%d, %d" % (S_STEP, k))
            A("s_cselect_b32 s%d, s%d, s%d" % (S_DBG + k - 1, S_EX, S_DBG + k - 1))
    A("s_add_u32 s%d, s%d, 1" % (S_STEP, S_STEP))
    A("s_cmp_lt_u32 s%d, 6" % S_STEP)
    A.branch("s_cbranch_scc1 L_ch_loop")
    A("s_or_b32 s%d, s%d, s%d" % (S_T[0], S_C, S_W))
    A("s_cmp_lg_u32 s%d, 0" % S_T[0])
    A.branch("s_cbranch_scc1 L_end")
    if cfg.get("dbgtime"):
        A("s_memrealtime s[%d:%d]" % (S_EX, S_EX + 1))
        A("s_load_dwordx2 s[%d:%d], s[0:1], 88" % (S_T[2], S_T[3]))
        A("s_waitcnt lgkmcnt(0)")
        srd(A, S_SRD, S_T[2], 256)
        A("s_sub_u32 s%d, s%d, s98" % (S_T[4], S_EX))
        A("v_mov_b32 v30, s%d" % S_T[4])
        A("v_mov_b32 v31, 0")
        A("buffer_store_dword v30, v31, s[%d:%d], 0 offen" % (S_SRD, S_SRD + 3))
        for k in range(6):
            A("s_sub_u32 s%d, s%d, s98" % (S_T[4], S_DBG + k))
            A("v_mov_b32 v30, s%d" % S_T[4])
            A("buffer_store_dword v30, v31, s[%d:%d], 0 offen offset:%d" % (S_SRD, S_SRD + 3, 4 * (k + 1)))
            A("s_nop 1")
    A("s_add_u32 s%d, s%d, 1" % (S_T[0], S_EPOCH))
    A("v_mov_b32 v30, s%d" % S_T[0])
    A("v_mov_b32 v31, 0")
    A("s_mov_b64 exec, 1")
    A("buffer_store_dword v30, v31, s[%d:%d], 0 offen" % (S_WS, S_WS + 3))
    A("s_waitcnt vmcnt(0)")
```

```python
from emit import *
from layout import *
import math
from attn import qp, build_b, g_reduce, newlab

V_LANE, V_HALF, V_ROW8, V_N8, V_PX, V_X, V_XO, V_B1M, V_B2, V_B1E = 0, 1, 2, 3, 4, 5, 6, 7, 8, 9
B0 = 10
BX = 26
YK = [42, 43, 44, 45, 46]
WREG0 = 48
def wq_reg(beta, cb):  return WREG0 + 4 * ((beta - 14) * 2 + cb)
def wo_reg(mu, cb):    return WREG0 + 4 * (8 + mu * 9 + cb)
def w1_reg(beta, cb):  return WREG0 + 4 * (8 + 36 + beta * 2 + cb)
def w2_reg(mu, cb):    return WREG0 + 4 * (8 + 72 + mu * 9 + cb)
SCR = 0
L_WQ = 10240
L_W1L = L_WQ + 4 * 28672
L_W2X = L_W1L + 4 * 5120
assert L_W2X + 18 * 1024 == 163840
S_WS = 4; S_SRD = 8; S_OUT = 12
S_TAG, S_W, S_C, S_STEP = 16, 17, 18, 19
S_PART, S_YP1, S_YP2, S_X1, S_X2, S_QO, S_B, S_L, S_FAST, S_SPIN = 20, 21, 22, 23, 24, 25, 26, 27, 28, 29
S_MG1, S_MODD, S_ML36, S_MMU2, S_MGP = 30, 32, 34, 36, 38
S_T = list(range(40, 56))
S_EX = 56
S_P = 60
S_M7 = 76
S_XCC = 79
S_CST = 80
S_DBG = 80
S_EPOCH = 99
S_ML32 = 100
S_W0 = 58
S_TL = 97
OOB = 0x7f000000

class Cap:
    def __init__(self): self.l = []
    def __call__(self, t): self.l.append(t)

def weave(A, main, fill, per=1):
    fill = list(fill)
    for m in main:
        A(m)
        for _ in range(per):
            if fill: A(fill.pop(0))
    for f in fill: A(f)

class LG:
    def __init__(self, A): self.A = A; self.n = 0; self.done = 0
    def issue(self, t): self.A(t); self.n += 1; return self.n - 1
    def count(self): self.n += 1; return self.n - 1
    def wait_text(self, idx):
        if idx < self.done: return None
        k = self.n - 1 - idx; self.done = idx + 1
        return "s_waitcnt lgkmcnt(%d)" % k
    def wait(self, idx):
        t = self.wait_text(idx)
        if t: self.A(t)

def srd(A, base, ptr, size):
    A("s_mov_b32 s%d, s%d" % (base, ptr))
    A("s_and_b32 s%d, s%d, 0xffff" % (base + 1, ptr + 1))
    A("s_mov_b32 s%d, 0x%x" % (base + 2, size))
    A("s_mov_b32 s%d, 0x00020000" % (base + 3))

def bf16r(A, d, s):
    A("v_cvt_pk_bf16_f32 v%d, v%d, v%d" % (d, s, s))
    A("v_and_b32 v%d, 0xffff0000, v%d" % (d, d))

DRY = {"on": False}
def poll(A, issue, check, between=None, sleep=0):
    ok = newlab("ok"); retry = newlab("rt")
    if DRY["on"]:
        if between:
            go = newlab("go")
            A("s_cmp_eq_u32 s%d, 1" % S_STEP)
            A("s_cbranch_scc1 %s" % go)
            issue()
            A.lines.append(go + ":")
            between()
            A("s_cmp_eq_u32 s%d, 1" % S_STEP)
            A("s_cbranch_scc1 %s" % ok)
        else:
            A("s_cmp_eq_u32 s%d, 1" % S_STEP)
            A("s_cbranch_scc1 %s" % ok)
            issue()
    else:
        issue()
        if between: between()
    A("s_waitcnt vmcnt(0)")
    check()
    A.branch("s_cbranch_vccz %s" % ok)
    A("s_mov_b32 s%d, 0x2000" % S_SPIN)
    A.label(retry)
    if sleep: A("s_sleep %d" % sleep)
    issue()
    A("s_waitcnt vmcnt(0)")
    check()
    A("s_sub_u32 s%d, s%d, 1" % (S_SPIN, S_SPIN))
    A.branch("s_cbranch_scc1 %s" % ok)
    A.branch("s_cbranch_vccnz %s" % retry)
    A.label(ok)

def tagcheck(A, regs, t0, t1, stag=None):
    stag = S_TL if stag is None else stag
    regs = list(regs)
    def fold(op3, op2, dst):
        r = regs[:]
        A("%s v%d, v%d, v%d, v%d" % (op3, dst, r[0], r[1], r[2])); r = r[3:]
        while len(r) >= 2:
            A("%s v%d, v%d, v%d, v%d" % (op3, dst, dst, r[0], r[1])); r = r[2:]
        if r: A("%s v%d, v%d, v%d" % (op2, dst, dst, r[0]))
    c1, c2 = Cap(), Cap()
    A0 = A
    A = c1; fold("v_min3_u32", "v_min_u32", t0)
    A = c2; fold("v_max3_u32", "v_max_u32", t1)
    A = A0
    weave(A, c1.l, c2.l)
    A("v_cmp_ne_u32 vcc, s%d, v%d" % (stag, t0))
    A("v_cmp_ne_u32 s[%d:%d], s%d, v%d" % (S_EX, S_EX + 1, stag, t1))
    A("s_or_b64 vcc, vcc, s[%d:%d]" % (S_EX, S_EX + 1))

def store_mode(A, texts):
    slow = newlab("slow"); done = newlab("sdone")
    A("s_cmp_eq_u32 s%d, 1" % S_FAST)
    A("s_cbranch_scc0 %s" % slow)
    for t in texts: A(t)
    A("s_branch %s" % done)
    A.lines.append(slow + ":")
    if DRY["on"]:
        A("s_cmp_eq_u32 s%d, 2" % S_FAST)
        A("s_cbranch_scc1 %s" % done)
    for t in texts: A(t + " sc1")
    A.lines.append(done + ":")

def xrow_allreduce(A, z, t):
    A("v_mov_b32 v%d, v%d" % (t, z))
    A("v_permlane16_swap_b32 v%d, v%d" % (z, t))
    A("v_add_f32 v%d, v%d, v%d" % (z, z, t))
    A("v_mov_b32 v%d, v%d" % (t, z))
    A("v_permlane32_swap_b32 v%d, v%d" % (z, t))
    A("v_add_f32 v%d, v%d, v%d" % (z, z, t))

def parity_allreduce(A, z, t):
    for sh in (2, 4, 8):
        A("v_add_f32_dpp v%d, v%d, v%d row_ror:%d row_mask:0xf bank_mask:0xf" % (z, z, z, sh))
    xrow_allreduce(A, z, t)

def mfma_t(D, a, b, first):
    return "v_mfma_f32_16x16x32_bf16 %s, %s, %s, %s" % (vr(D, 4), vr(a, 4), vr(b, 4), "0" if first else vr(D, 4))

def zero_b(A, lo, hi):
    for r in range(lo, hi): A("v_mov_b32 v%d, 0" % r)

def cap_build(B, Y, mu):
    c = Cap(); build_b(c, B, Y, mu); return c.l

def ln_tail(A, z, xs, yk, mean, ex2, fill=()):
    A("v_mov_b32_dpp v%d, v%d %s" % (mean, z, qp([0, 0, 2, 2])))
    A("v_mov_b32_dpp v%d, v%d %s" % (ex2, z, qp([1, 1, 3, 3])))
    A("v_mul_f32 v%d, 0x%x, v%d" % (mean, f2u(1.0 / 576), mean))
    A("v_mul_f32 v%d, 0x%x, v%d" % (ex2, f2u(1.0 / 576), ex2))
    A("v_fma_f32 v%d, -v%d, v%d, v%d" % (ex2, mean, mean, ex2))
    c1, c2 = Cap(), Cap()
    c1("v_max_f32 v%d, 0, v%d" % (ex2, ex2))
    bf16r(c1, ex2, ex2)
    c1("v_add_f32 v%d, 0x%x, v%d" % (ex2, f2u(1e-5), ex2))
    bf16r(c1, ex2, ex2)
    c1("v_sqrt_f32 v%d, v%d" % (ex2, ex2))
    bf16r(c1, ex2, ex2)
    c1("v_rcp_f32 v%d, v%d" % (ex2, ex2))
    bf16r(c2, mean, mean)
    for x in xs: c2("v_sub_f32 v%d, v%d, v%d" % (x, x, mean))
    for x in xs: c2("v_cvt_pk_bf16_f32 v%d, v%d, v%d" % (x, x, x))
    for x in xs: c2("v_and_b32 v%d, 0xffff0000, v%d" % (x, x))
    weave(A, c1.l, c2.l, per=2)
    for x in xs: A("v_mul_f32 v%d, v%d, v%d" % (x, x, ex2))
    for x in xs: A("v_cvt_pk_bf16_f32 v%d, v%d, v%d" % (x, x, x))
    for x, y in zip(xs, yk): A("v_and_b32 v%d, v%d, v%d" % (y, x, V_HALF))

def pubx(A, s_xoff):
    z, t, d = 30, 31, 32
    A("v_mul_f32 v%d, v%d, v%d" % (t, V_X, V_X))
    A("v_cndmask_b32_e64 v%d, v%d, v%d, s[%d:%d]" % (z, V_X, t, S_MODD, S_MODD + 1))
    A("v_cndmask_b32_e64 v%d, 0, v%d, s[%d:%d]" % (z, z, S_ML36, S_ML36 + 1))
    A("v_mov_b32 v%d, s%d" % (d + 1, S_TL))
    parity_allreduce(A, z, t)
    A("v_cndmask_b32_e64 v%d, v%d, v%d, s[%d:%d]" % (d, z, V_X, S_ML36, S_ML36 + 1))
    store_mode(A, ["buffer_store_dwordx2 %s, v%d, s[%d:%d], s%d offen" % (vr(d, 2), V_PX, S_WS, S_WS + 3, s_xoff)])

def gath_ln(A, s_xoff):
    G = 30; ST = 40
    sa, sb = S_T[0], S_T[1]
    A("s_mul_i32 s%d, s%d, 1152" % (sa, S_W))
    A("s_add_u32 s%d, s%d, s%d" % (sa, sa, s_xoff))
    A("s_add_u32 s%d, s%d, 4608" % (sb, s_xoff))
    A("v_lshlrev_b32 v%d, 3, v%d" % (46, V_LANE))
    def issue():
        A("buffer_load_dwordx2 %s, v%d, s[%d:%d], s%d offen sc1" % (vr(ST, 2), 46, S_WS, S_WS + 3, sb))
        for k in range(5):
            A("buffer_load_dwordx2 %s, v%d, s[%d:%d], s%d offen offset:%d sc1" % (vr(G + 2 * k, 2), V_ROW8, S_WS, S_WS + 3, sa, 256 * k))
    def check():
        A("v_mov_b32 v%d, s%d" % (47, S_TL))
        A("v_cndmask_b32_e64 v%d, v%d, v%d, s[%d:%d]" % (43, 47, G + 9, S_MMU2, S_MMU2 + 1))
        tagcheck(A, [G + 1, G + 3, G + 5, G + 7, 43, ST + 1], 47, 42)
    poll(A, issue, check)
    if FINE.get("g", 0) == 0: fst(A, 5)
    FINE["g"] = FINE.get("g", 0) + 1
    parity_allreduce(A, ST, 47)
    ln_tail(A, ST, [G + 2 * k for k in range(5)], YK, 47, 41)

def qproj(A, s_qoff, YKs=YK, pre_barrier=True):
    D = [30, 34]; t1, t2, R0, R1 = 38, 39, 40, 41
    LT = [18, 22, 26]; va = 47
    if pre_barrier: A("s_barrier")
    A("s_mul_i32 s%d, s%d, 28672" % (S_T[0], S_W))
    A("s_add_u32 s%d, s%d, %d" % (S_T[0], S_T[0], L_WQ))
    A("v_lshlrev_b32 v%d, 4, v%d" % (va, V_LANE))
    A("v_add_u32 v%d, s%d, v%d" % (va, S_T[0], va))
    lg = LG(A); rd = {}
    nxt = [0]
    def rd_text():
        i = nxt[0]
        if i >= 28: return None
        nxt[0] += 1
        rd[i] = lg.count()
        return "ds_read_b128 %s, v%d offset:%d" % (vr(LT[i % 3], 4), va, i * 1024)
    for _ in range(3): A(rd_text())
    for t in cap_build(B0, YKs[0], 0): A(t)
    for beta in range(18):
        B = B0 + 4 * (beta & 1)
        nb = cap_build(B0 + 4 * ((beta + 1) & 1), YKs[(beta + 1) >> 2], (beta + 1) & 3) if beta < 17 else []
        for cb in range(2):
            if beta < 14:
                i = 2 * beta + cb
                lg.wait(rd[i]); a = LT[i % 3]
            else:
                a = wq_reg(beta, cb)
            A(mfma_t(D[cb], a, B, beta == 0))
            if beta < 14:
                t = rd_text()
                if t: A(t)
            for t in nb[2 * cb:2 * cb + 2]: A(t)
    c1, c2 = Cap(), Cap()
    g_reduce(c1, D[0], D[0], D[0] + 3, D[0], S_MG1)
    g_reduce(c2, D[1], D[1], D[1] + 3, D[1], S_MG1)
    A("v_lshrrev_b32 v%d, 1, v%d" % (va, V_N8))
    A("s_lshl_b32 s%d, s%d, 9" % (S_T[0], S_W))
    A("v_add_u32 v%d, s%d, v%d" % (va, S_T[0], va))
    weave(A, c1.l, c2.l)
    A("ds_write_b32 v%d, v%d offset:%d" % (va, D[0], SCR))
    A("ds_write_b32 v%d, v%d offset:%d" % (va, D[1], SCR + 256))
    A("v_lshlrev_b32 v%d, 3, v%d" % (va, V_LANE))
    A("v_mov_b32 v%d, s%d" % (39, S_TAG))
    A("s_waitcnt lgkmcnt(0)")
    A("s_barrier")
    skip = newlab("q_skip")
    A("s_cmp_lg_u32 s%d, 0" % S_W0)
    A("s_cbranch_scc1 %s" % skip)
    for w in range(4):
        A("ds_read_b64 %s, v%d offset:%d" % (vr(30 + 2 * w, 2), va, SCR + w * 512))
    A("s_waitcnt lgkmcnt(2)")
    A("v_add_f32 v30, v30, v32")
    A("v_add_f32 v31, v31, v33")
    A("s_waitcnt lgkmcnt(0)")
    A("v_add_f32 v34, v34, v36")
    A("v_add_f32 v35, v35, v37")
    A("v_add_f32 v30, v30, v34")
    A("v_add_f32 v31, v31, v35")
    A("v_cvt_pk_bf16_f32 v38, v30, v31")
    A("buffer_store_dwordx2 v[38:39], v%d, s[%d:%d], s%d offen sc1" % (va, S_WS, S_WS + 3, s_qoff))
    A.label(skip)

def proj576(A, wreg, s_yp, ext=False):
    D = [30, 34, 38]
    LTX = 44; VAX = 42
    lg = LG(A)
    A("s_lshl_b32 s%d, s%d, 8" % (S_T[0], S_W))
    A("s_add_u32 m0, s%d, %d" % (S_T[0], SCR))
    rdx = {}
    def V(cb):
        c = Cap()
        d = D[cb % 3]
        g_reduce(c, d, d, d + 3, d, S_MG1)
        return c.l
    def wr(cb):
        lg.issue("ds_write_addtid_b32 v%d offset:%d" % (D[cb % 3], cb * 1024))
    for cb in range(9):
        d = D[cb % 3]
        fill = V(cb - 2) if cb >= 2 else []
        if ext:
            if cb == 0: A("s_waitcnt lgkmcnt(0)")
            else: lg.wait(rdx[cb])
            A(mfma_t(d, LTX, BX, True))
            if cb < 8:
                rdx[cb + 1] = lg.issue("ds_read_b128 %s, v%d offset:%d" % (vr(LTX, 4), VAX, (cb + 1) * 1024))
        for mu in range(4):
            A(mfma_t(d, wreg(mu, cb), B0 + 4 * mu, (mu == 0 and not ext)))
            for _ in range(2 if mu < 3 else 9):
                if fill: A(fill.pop(0))
        if cb >= 2: wr(cb - 2)
    for cb in (7, 8):
        for t in V(cb): A(t)
        wr(cb)
    if ext: fst(A, 3, 2)
    else:
        fst(A, 3, 3); cyc_stamp(A, 5)
    A("s_mul_i32 s%d, s%d, 4608" % (S_T[1], S_C))
    A("s_add_u32 s%d, s%d, s%d" % (S_T[1], S_T[1], s_yp))
    A("s_lshl_b32 s%d, s%d, 9" % (S_T[2], S_W))
    A("s_add_u32 s%d, s%d, s%d" % (S_T[1], S_T[1], S_T[2]))
    A("s_add_u32 s%d, s%d, 4096" % (S_T[2], S_T[1]))
    A("s_cmp_eq_u32 s%d, 0" % S_W)
    A("s_cselect_b32 s%d, s%d, 0x%x" % (S_T[2], S_T[2], OOB))
    A("s_lshl_b32 s%d, s%d, 10" % (S_T[0], S_W))
    A("s_waitcnt lgkmcnt(0)")
    A("s_barrier")
    A("s_add_u32 m0, s%d, %d" % (S_T[0], SCR))
    for blk in range(3):
        for w in range(4):
            A("ds_read_addtid_b32 v%d offset:%d" % (30 + 4 * blk + w, blk * 4096 + w * 256))
    for blk in range(3):
        A("s_waitcnt lgkmcnt(%d)" % (8 - 4 * blk))
        r = 30 + 4 * blk
        A("v_add_f32 v%d, v%d, v%d" % (r, r, r + 1))
        A("v_add_f32 v%d, v%d, v%d" % (r + 2, r + 2, r + 3))
        A("v_mov_b32 v%d, s%d" % (r + 1, S_TL))
        A("v_add_f32 v%d, v%d, v%d" % (r, r, r + 2))
    st = []
    for blk in range(3):
        r = 30 + 4 * blk
        so = S_T[2] if blk == 2 else S_T[1]
        st.append("buffer_store_dwordx2 %s, v%d, s[%d:%d], s%d offen%s" % (vr(r, 2), V_N8, S_WS, S_WS + 3, so, " offset:2048" if blk == 1 else ""))
    store_mode(A, st)

def oproj(A):
    T = 30; ST = 44; t = [26, 27, 28, 29]
    sa = S_T[0:4]
    zero_b(A, 18, 26)
    A("s_lshl_b32 s%d, s%d, 8" % (sa[0], S_W))
    A("s_add_u32 s%d, s%d, s%d" % (sa[0], sa[0], S_PART))
    for i in range(1, 4):
        A("s_add_u32 s%d, s%d, %d" % (sa[i], sa[0], 4096 * i))
    A("v_and_b32 v%d, 7, v%d" % (t[3], V_LANE))
    A("v_min_u32 v%d, 6, v%d" % (t[3], t[3]))
    A("v_lshlrev_b32 v%d, 11, v%d" % (t[3], t[3]))
    def issue():
        A("buffer_load_dwordx4 %s, v%d, s[%d:%d], s%d offen offset:1024 sc1" % (vr(ST, 4), t[3], S_WS, S_WS + 3, S_PART))
        for s in range(7):
            A("buffer_load_dwordx2 %s, v%d, s[%d:%d], s%d offen%s sc1" % (vr(T + 2 * s, 2), V_ROW8, S_WS, S_WS + 3, sa[s >> 1], " offset:2048" if (s & 1) else ""))
    def check():
        tagcheck(A, [T + 2 * s + 1 for s in range(7)] + [ST + 1, ST + 3], t[0], t[1], S_TAG)
    poll(A, issue, check)
    fst(A, 1, 3)
    m, Lr = ST, ST + 2
    A("v_mov_b32 v%d, 0xff800000" % t[0])
    A("v_cndmask_b32_e64 v%d, v%d, v%d, s[%d:%d]" % (m, m, t[0], S_M7, S_M7 + 1))
    A("v_max_f32_dpp v%d, v%d, v%d row_ror:1 row_mask:0xf bank_mask:0xf" % (t[1], m, m))
    for sh in (2, 4):
        A("v_max_f32_dpp v%d, v%d, v%d row_ror:%d row_mask:0xf bank_mask:0xf" % (t[1], t[1], t[1], sh))
    A("v_sub_f32 v%d, v%d, v%d" % (m, m, t[1]))
    A("v_exp_f32 v%d, v%d" % (m, m))
    A("v_mul_f32 v%d, v%d, v%d" % (Lr, m, Lr))
    o, o2 = t[2], t[0]
    c1, c2 = Cap(), Cap()
    for sh in (1, 2, 4):
        c1("v_add_f32_dpp v%d, v%d, v%d row_ror:%d row_mask:0xf bank_mask:0xf" % (Lr, Lr, Lr, sh))
    c1("v_rcp_f32 v%d, v%d" % (Lr, Lr))
    c2("v_mul_f32_dpp v%d, v%d, v%d row_newbcast:0 row_mask:0xf bank_mask:0xf" % (o, m, T))
    c2("v_mul_f32_dpp v%d, v%d, v%d row_newbcast:1 row_mask:0xf bank_mask:0xf" % (o2, m, T + 2))
    for s in range(2, 7):
        c2("v_fmac_f32_dpp v%d, v%d, v%d row_newbcast:%d row_mask:0xf bank_mask:0xf" % (o if s % 2 == 0 else o2, m, T + 2 * s, s))
    c2("v_add_f32 v%d, v%d, v%d" % (o, o, o2))
    weave(A, c1.l, c2.l, per=2)
    A("v_mul_f32 v%d, v%d, v%d" % (o, o, Lr))
    A("v_cvt_pk_bf16_f32 v%d, v%d, v%d" % (o, o, o))
    A("v_and_b32 v%d, v%d, v%d" % (o, o, V_HALF))
    for mu in range(4):
        build_b(A, B0 + 4 * mu, o, mu)
    fst(A, 2, 3)
    A("s_barrier")
    cyc_stamp(A, 4)
    proj576(A, wo_reg, S_YP1, ext=False)
    fst(A, 4, 3)

FINE = {"cfg": None}
def fst(A, k, lvl=1):
    cfg = FINE["cfg"]
    if cfg and cfg.get("fine") == lvl: chain_stamp(A, cfg, k)

def red(A, s_yp, bias, tail):
    L1 = 30; L2 = 34; a1, a2, w1a, w2a, t0, t1 = 36, 37, 38, 39, 40, 41
    so = S_T[0]
    A("s_mul_i32 s%d, s%d, %d" % (so, S_W, 8 * 4608))
    A("s_add_u32 s%d, s%d, s%d" % (so, so, s_yp))
    A("s_mul_i32 s%d, s%d, 144" % (S_T[1], S_C))
    A("s_add_u32 s%d, s%d, s%d" % (so, so, S_T[1]))
    A("v_lshrrev_b32 v%d, 3, v%d" % (t0, V_LANE))
    A("v_mul_u32_u24 v%d, 4608, v%d" % (a2, t0))
    A("v_and_b32 v%d, 7, v%d" % (t1, V_LANE))
    A("v_lshl_add_u32 v%d, v%d, 4, v%d" % (a1, t1, a2))
    A("v_and_b32 v%d, 1, v%d" % (47, V_LANE))
    A("v_lshl_add_u32 v%d, v%d, 3, v%d" % (a2, 47, a2))
    def issue():
        A("buffer_load_dwordx4 %s, v%d, s[%d:%d], s%d offen sc1" % (vr(L1, 4), a1, S_WS, S_WS + 3, so))
        A("buffer_load_dwordx2 %s, v%d, s[%d:%d], s%d offen offset:128 sc1" % (vr(L2, 2), a2, S_WS, S_WS + 3, so))
    def between():
        A("s_lshl_b32 s%d, s%d, 5" % (S_T[1], S_W))
        A("v_lshlrev_b32 v%d, 2, v%d" % (t0, t0))
        A("v_add_u32 v%d, s%d, v%d" % (t0, S_T[1], t0))
        A("v_mul_u32_u24 v%d, 288, v%d" % (w1a, t1))
        A("v_add_u32 v%d, v%d, v%d" % (w1a, w1a, t0))
        A("v_mul_u32_u24 v%d, 144, v%d" % (w2a, 47))
        A("v_add_u32 v%d, v%d, v%d" % (w2a, w2a, t0))
        A("v_lshrrev_b32 v%d, 1, v%d" % (46, V_LANE))
        A("v_mul_u32_u24 v%d, 144, v%d" % (46, 46))
        A("v_lshl_add_u32 v%d, v%d, 6, v%d" % (46, 47, 46))
        A("s_barrier")
    def check():
        tagcheck(A, [L1 + 1, L1 + 3, L2 + 1], 42, 43)
    poll(A, issue, check, between)
    if not bias: fst(A, 2)
    else: fst(A, 5, 2)
    A("ds_write_b32 v%d, v%d offset:%d" % (w1a, L1, SCR))
    A("ds_write_b32 v%d, v%d offset:%d" % (w1a, L1 + 2, SCR + 144))
    A("ds_write_b32 v%d, v%d offset:%d" % (w2a, L2, SCR + 16 * 144))
    A("s_waitcnt lgkmcnt(0)")
    A("s_barrier")
    if not bias: fst(A, 3)
    skip = newlab("red_skip")
    A("s_cmp_lg_u32 s%d, 0" % S_W0)
    A("s_cbranch_scc1 %s" % skip)
    Q = 30
    for k in range(4):
        A("ds_read_b128 %s, v%d offset:%d" % (vr(Q + 4 * k, 4), 46, SCR + 16 * k))
    for k in range(4):
        A("s_waitcnt lgkmcnt(%d)" % (3 - k))
        r = Q + 4 * k
        A("v_add_f32 v%d, v%d, v%d" % (r, r, r + 1))
        A("v_add_f32 v%d, v%d, v%d" % (r + 2, r + 2, r + 3))
        A("v_add_f32 v%d, v%d, v%d" % (r, r, r + 2))
    A("v_add_f32 v%d, v%d, v%d" % (Q, Q, Q + 4))
    A("v_add_f32 v%d, v%d, v%d" % (Q + 8, Q + 8, Q + 12))
    A("v_add_f32 v%d, v%d, v%d" % (Q, Q, Q + 8))
    A("v_add_f32_dpp v%d, v%d, v%d %s" % (Q + 1, Q, Q, qp([1, 0, 3, 2])))
    bf16r(A, Q + 1, Q + 1)
    if bias:
        A("v_add_f32 v%d, v%d, v%d" % (Q + 1, Q + 1, V_B2))
        bf16r(A, Q + 1, Q + 1)
    A("v_add_f32 v%d, v%d, v%d" % (V_X, V_X, Q + 1))
    bf16r(A, V_X, V_X)
    tail(A)
    A.label(skip)
    if not bias: fst(A, 4)
    else: fst(A, 6, 2)

def mlp(A):
    D = [30, 34]; DL = 38; RL = 26
    LT = [18, 22]; va = 47
    A("s_barrier")
    A("s_mul_i32 s%d, s%d, 5120" % (S_T[0], S_W))
    A("s_add_u32 s%d, s%d, %d" % (S_T[0], S_T[0], L_W1L))
    A("v_lshlrev_b32 v%d, 4, v%d" % (va, V_LANE))
    A("v_add_u32 v%d, s%d, v%d" % (va, S_T[0], va))
    order = [b for q in range(4) for b in range(18) if (b & 3) == q]
    lg = LG(A); rd = {}; nxt = [0]
    def rd_issue():
        i = nxt[0]
        if i >= 18: return
        nxt[0] += 1
        rd[i] = lg.issue("ds_read_b128 %s, v%d offset:%d" % (vr(LT[i % 2], 4), va, (order[i] >> 2) * 1024))
    rd_issue(); rd_issue()
    def extract_left(q):
        return ["v_add_f32_dpp v%d, v%d, v%d %s" % (27, DL + 2, DL, qp([2, 3, 2, 3])),
                "v_add_f32_dpp v%d, v%d, v%d %s" % (28, DL + 1, DL + 3, qp([0, 1, 0, 1])),
                "v_cndmask_b32_e64 v%d, v%d, v%d, s[%d:%d]" % (27, 27, 28, S_MG1, S_MG1 + 1),
                "v_mov_b32_dpp v%d, v%d quad_perm:[0,1,2,3] row_mask:0x%x bank_mask:0xf" % (RL, 27, 1 << q)]
    for t in cap_build(B0, YK[order[0] >> 2], order[0] & 3): A(t)
    for n, beta in enumerate(order):
        B = B0 + 4 * (n & 1)
        q = beta & 3
        newq = (n == 0 or (order[n - 1] & 3) != q)
        nb = cap_build(B0 + 4 * ((n + 1) & 1), YK[order[n + 1] >> 2], order[n + 1] & 3) if n < 17 else []
        A(mfma_t(D[0], w1_reg(beta, 0), B, n == 0))
        for t in nb[0:2]: A(t)
        A(mfma_t(D[1], w1_reg(beta, 1), B, n == 0))
        for t in nb[2:4]: A(t)
        if newq and n > 0:
            for t in extract_left(order[n - 1] & 3): A(t)
        lg.wait(rd[n])
        A(mfma_t(DL, LT[n % 2], B, newq))
        rd_issue()
    fst(A, 1, 2)
    c1, c2 = Cap(), Cap()
    g_reduce(c1, D[0], D[0], D[0] + 3, D[0], S_MG1)
    g_reduce(c2, D[1], D[1], D[1] + 3, D[1], S_MG1)
    ua, ul = 47, 46
    A("v_lshrrev_b32 v%d, 1, v%d" % (ua, V_N8))
    A("s_mul_i32 s%d, s%d, 576" % (S_T[0], S_W))
    A("v_add_u32 v%d, s%d, v%d" % (ua, S_T[0], ua))
    weave(A, c1.l, c2.l)
    A("ds_write_b32 v%d, v%d offset:%d" % (ua, D[0], SCR))
    A("ds_write_b32 v%d, v%d offset:%d" % (ua, D[1], SCR + 256))
    A("v_bfe_u32 v%d, v%d, 1, 1" % (ul, V_LANE))
    A("v_lshlrev_b32 v%d, 5, v%d" % (ul, ul))
    A("v_bfe_u32 v%d, v%d, 2, 2" % (45, V_LANE))
    A("v_lshl_add_u32 v%d, v%d, 3, v%d" % (ul, 45, ul))
    A("v_and_b32 v%d, 1, v%d" % (45, V_LANE))
    A("v_lshl_add_u32 v%d, v%d, 2, v%d" % (ul, 45, ul))
    A("v_add_u32 v%d, s%d, v%d" % (ul, S_T[0], ul))
    for t in extract_left(3): A(t)
    xrow_allreduce(A, RL, 27)
    A("ds_write_b32 v%d, v%d offset:%d" % (ul, RL, SCR + 512))
    A("v_lshrrev_b32 v%d, 1, v%d" % (45, V_ROW8))
    A("s_lshl_b32 s%d, s%d, 7" % (S_T[0], S_W))
    A("v_add_u32 v%d, s%d, v%d" % (ua, S_T[0], 45))
    A("s_lshr_b32 s%d, s%d, 1" % (S_T[0], S_W))
    A("s_lshl_b32 s%d, s%d, 5" % (S_T[0], S_T[0]))
    A("v_add_u32 v%d, s%d, v%d" % (ul, S_T[0], 45))
    A("s_waitcnt lgkmcnt(0)")
    A("s_barrier")
    for w in range(4):
        A("ds_read_b32 v%d, v%d offset:%d" % (30 + w, ua, SCR + w * 576))
    for w in range(4):
        A("ds_read_b32 v%d, v%d offset:%d" % (34 + w, ul, SCR + 512 + w * 576))
    A("s_lshr_b32 s%d, s%d, 1" % (S_T[1], S_W))
    A("s_mul_i32 s%d, s%d, 9216" % (S_T[1], S_T[1]))
    A("s_add_u32 s%d, s%d, %d" % (S_T[1], S_T[1], L_W2X))
    A("v_lshlrev_b32 v42, 4, v%d" % V_LANE)
    A("v_add_u32 v42, s%d, v42" % S_T[1])
    A("ds_read_b128 v[44:47], v42")
    zero_b(A, 18, 30)
    k = math.sqrt(2.0 / math.pi); ca = -2.0 * k * math.log2(math.e); cb_ = ca * 0.044715
    chains = []
    for (r, bias, tt) in ((30, V_B1M, 38), (34, V_B1E, 40)):
        c = Cap()
        c("v_add_f32 v%d, v%d, v%d" % (r, r, r + 1))
        c("v_add_f32 v%d, v%d, v%d" % (r + 2, r + 2, r + 3))
        c("v_add_f32 v%d, v%d, v%d" % (r, r, r + 2))
        bf16r(c, r, r)
        c("v_add_f32 v%d, v%d, v%d" % (r, r, bias))
        bf16r(c, r, r)
        c("v_mul_f32 v%d, v%d, v%d" % (tt, r, r))
        c("v_mov_b32 v%d, 0x%x" % (tt + 1, f2u(ca)))
        c("v_fmac_f32 v%d, 0x%x, v%d" % (tt + 1, f2u(cb_), tt))
        c("v_mul_f32 v%d, v%d, v%d" % (tt + 1, tt + 1, r))
        c("v_exp_f32 v%d, v%d" % (tt + 1, tt + 1))
        c("v_add_f32 v%d, 1.0, v%d" % (tt + 1, tt + 1))
        c("v_rcp_f32 v%d, v%d" % (tt + 1, tt + 1))
        c("v_mul_f32 v%d, v%d, v%d" % (r, r, tt + 1))
        c("v_cvt_pk_bf16_f32 v%d, v%d, v%d" % (r, r, r))
        c("v_and_b32 v%d, v%d, v%d" % (r, r, V_HALF))
        chains.append(c.l)
    chains[1].append("v_cndmask_b32_e64 v34, 0, v34, s[%d:%d]" % (S_MGP, S_MGP + 1))
    A("s_waitcnt lgkmcnt(1)")
    A("s_barrier")
    weave(A, chains[0], chains[1])
    for mu in range(4):
        build_b(A, B0 + 4 * mu, 30, mu)
    build_b(A, BX, 34, 0)
    fst(A, 2, 2)
    proj576(A, w2_reg, S_YP2, ext=True)

class WLoader:
    VOFF = 26; TT = (27, 28)
    def __init__(self, A):
        self.A = A; self.list = []; self.pos = 0; self.cur_srd = None
    def add(self, mat, kind, sbase, off, dest):
        self.list.append((mat, kind, sbase, off, dest))
    def voff(self, kind):
        A = self.A; v = self.VOFF; t0, t1 = self.TT
        if kind == "L":
            A("v_bfe_u32 v%d, v0, 2, 2" % t0)
            A("v_lshlrev_b32 v%d, 3, v%d" % (t0, t0))
            A("v_lshrrev_b32 v%d, 4, v0" % t1)
            A("v_lshl_add_u32 v%d, v%d, 1, v%d" % (t0, t1, t0))
            A("v_bfe_u32 v%d, v0, 1, 1" % t1)
            A("v_add_u32 v%d, v%d, v%d" % (t0, t0, t1))
            A("v_mul_u32_u24 v%d, 9216, v%d" % (v, t0))
            A("v_and_b32 v%d, 1, v0" % t1)
            A("v_lshl_add_u32 v%d, v%d, 4, v%d" % (v, t1, v))
        else:
            A("v_lshrrev_b32 v%d, 4, v0" % t0)
            A("v_bfe_u32 v%d, v0, 3, 1" % t1)
            A("v_lshl_add_u32 v%d, v%d, 1, v%d" % (t0, t0, t1))
            A("v_mul_u32_u24 v%d, %d, v%d" % (v, kind, t0))
            A("v_and_b32 v%d, 7, v0" % t1)
            A("v_lshl_add_u32 v%d, v%d, 4, v%d" % (v, t1, v))
    def issue(self, n):
        A = self.A
        sizes = {"wq": (S_P + 2, 4718592), "wo": (S_P + 4, 4718592), "w1": (S_P + 6, 5308416), "w2": (S_P + 10, 5308416)}
        curk = None
        for _ in range(n):
            if self.pos >= len(self.list): return
            mat, kind, sbase, off, dest = self.list[self.pos]; self.pos += 1
            if mat != self.cur_srd:
                srd(A, S_SRD, *sizes[mat]); self.cur_srd = mat
            if kind != curk:
                self.voff(kind); curk = kind
            if dest[0] == "r":
                A("s_add_u32 s%d, s%d, 0x%x" % (S_T[8], sbase, off))
                A("buffer_load_dwordx4 %s, v%d, s[%d:%d], s%d offen nt" % (vr(dest[1], 4), self.VOFF, S_SRD, S_SRD + 3, S_T[8]))
            else:
                A("s_add_u32 m0, s%d, 0x%x" % (dest[1], dest[2]))
                A("s_add_u32 s%d, s%d, 0x%x" % (S_T[8], sbase, off))
                A("buffer_load_dwordx4 v%d, s[%d:%d], s%d offen%s lds" % (self.VOFF, S_SRD, S_SRD + 3, S_T[8], "" if kind == "L" else " nt"))
    def left(self): return len(self.list) - self.pos


def chain_stamp(A, cfg, k):
    if not cfg.get("stamps"): return
    A("s_memrealtime s[%d:%d]" % (S_EX, S_EX + 1))
    A("s_waitcnt lgkmcnt(0)")
    A("s_mov_b32 s%d, s%d" % (S_CST + k, S_EX))

def cyc_stamp(A, k):
    cfg = FINE["cfg"]
    if cfg and cfg.get("fine") == 4:
        A("s_memtime s[%d:%d]" % (S_EX, S_EX + 1))
        A("s_waitcnt lgkmcnt(0)")
        A("s_mov_b32 s%d, s%d" % (S_CST + k, S_EX))

def stamp_store(A, base, shift, nst, first, extra_off=None):
    A("s_lshl_b32 s%d, s2, 2" % S_T[0])
    A("s_add_u32 s%d, s%d, s%d" % (S_T[0], S_T[0], S_W))
    A("s_lshl_b32 s%d, s%d, %d" % (S_T[0], S_T[0], shift))
    if extra_off: extra_off()
    A("s_add_u32 s%d, s%d, 0x%x" % (S_T[0], S_T[0], base))
    A("v_mov_b32 v30, 0")
    for k in range(nst):
        A("v_mov_b32 v31, s%d" % (first + k))
        A("buffer_store_dword v31, v30, s[%d:%d], s%d offen offset:%d" % (S_WS, S_WS + 3, S_T[0], 4 * k))
        A("s_nop 1")

def gen_chain(A, cfg):
    A.comment("chain setup")
    A("s_lshr_b32 s%d, s2, 3" % S_C)
    for i, off in enumerate((0, 24, 32, 48, 56, 64, 72, 80)):
        A("s_load_dwordx2 s[%d:%d], s[0:1], %d" % (S_P + 2 * i, S_P + 2 * i + 1, off))
    def m64(s, v):
        A("s_mov_b32 s%d, 0x%x" % (s, v & 0xffffffff)); A("s_mov_b32 s%d, 0x%x" % (s + 1, (v >> 32) & 0xffffffff))
    t0, t1, t2, t3 = 30, 31, 32, 33
    A("v_bfe_u32 v%d, v0, 2, 2" % t0)
    A("v_lshlrev_b32 v%d, 3, v%d" % (V_ROW8, t0))
    A("v_lshrrev_b32 v%d, 4, v0" % t0)
    A("v_lshl_add_u32 v%d, v%d, 1, v%d" % (V_ROW8, t0, V_ROW8))
    A("v_bfe_u32 v%d, v0, 1, 1" % t0)
    A("v_add_u32 v%d, v%d, v%d" % (V_ROW8, V_ROW8, t0))
    A("v_lshlrev_b32 v%d, 3, v%d" % (V_ROW8, V_ROW8))
    SQ, SO, S1, S2, S2X, LQ, L1L = S_T[9:16]
    L2X = 78; S1L = 96
    A("s_mul_i32 s%d, s%d, %d" % (SQ, S_W, 144 * 8192))
    A("s_lshl_b32 s%d, s%d, 8" % (S_T[0], S_C))
    A("s_add_u32 s%d, s%d, s%d" % (SQ, SQ, S_T[0]))
    A("s_mul_i32 s%d, s%d, 28672" % (LQ, S_W))
    A("s_add_u32 s%d, s%d, %d" % (LQ, LQ, L_WQ))
    A("s_waitcnt lgkmcnt(0)")
    srd(A, S_OUT, S_P, 2304)
    FL = {1: 30, 0: 35}; YL = {1: 10, 0: 15}
    A("v_lshlrev_b32 v20, 2, v0")
    A("v_lshrrev_b32 v21, 2, v%d" % V_ROW8)
    A("s_mul_i32 s%d, s%d, 288" % (S_T[1], S_W))
    for b in (1, 0):
        for k in range(5):
            A("buffer_load_dword v%d, v20, s[%d:%d], 0 offen offset:%d" % (FL[b] + k, S_OUT, S_OUT + 3, (b ^ cfg.get("bswap", 0)) * 1152 + 256 * k))
        for k in range(5):
            A("buffer_load_ushort v%d, v21, s[%d:%d], s%d offen offset:%d" % (YL[b] + k, S_OUT, S_OUT + 3, S_T[1], (b ^ cfg.get("bswap", 0)) * 1152 + 64 * k))
    WL = WLoader(A)
    for beta in range(18):
        for cb in range(2):
            WL.add("wq", 8192, SQ, beta * 65536 + cb * 128, ("l", LQ, (2 * beta + cb) * 1024) if beta < 14 else ("r", wq_reg(beta, cb)))
    for mu in range(4):
        for cb in range(9):
            WL.add("wo", 1152, SO, mu * 8 * 1152 + cb * 128, ("r", wo_reg(mu, cb)))
    for beta in range(18):
        for cb in range(2):
            WL.add("w1", 9216, S1, beta * 8 * 9216 + cb * 128, ("r", w1_reg(beta, cb)))
    for i in range(5):
        WL.add("w1", "L", S1L, i * 32 * 9216, ("l", L1L, i * 1024))
    for mu in range(4):
        for cb in range(9):
            WL.add("w2", 1152, S2, mu * 8 * 1152 + cb * 128, ("r", w2_reg(mu, cb)))
    for j in range(4):
        WL.add("w2", 1152, S2X, j * 128, ("l", L2X, j * 1024))
    ist = lambda k: chain_stamp(A, cfg, 8 + k)
    ist(0)
    WL.issue(36)
    npf = 0
    if cfg.get("pf_chain"):
        npf = cfg["code_prefetch"](A, "L_chain", "L_end", cfg["pf_chain"], 508, 20)
    m64(S_MG1, 0xcccccccccccccccc); m64(S_MODD, 0xaaaaaaaaaaaaaaaa); m64(S_ML36, (1 << 36) - 1)
    m64(S_MMU2, 0x00ff00ff00ff00ff); m64(S_M7, 0x8080808080808080); m64(S_ML32, 0xffffffff)
    A("s_and_b32 s%d, s%d, 1" % (S_T[0], S_W))
    A("s_cmp_eq_u32 s%d, 1" % S_T[0])
    A("s_mov_b32 s%d, 0x33333333" % S_MGP)
    A("s_cselect_b32 s%d, 0xcccccccc, s%d" % (S_MGP, S_MGP))
    A("s_mov_b32 s%d, s%d" % (S_MGP + 1, S_MGP))
    A("s_mov_b32 s%d, 0" % S_FAST)
    A("s_mov_b32 s%d, s%d" % (S_W0, S_W))
    A("s_mul_i32 s%d, s%d, %d" % (SO, S_C, 128 * 1152))
    A("s_mul_i32 s%d, s%d, %d" % (S_T[0], S_W, 32 * 1152))
    A("s_add_u32 s%d, s%d, s%d" % (SO, SO, S_T[0]))
    A("s_mul_i32 s%d, s%d, %d" % (S1, S_W, 144 * 9216))
    A("s_lshl_b32 s%d, s%d, 5" % (S_T[1], S_C))
    A("s_add_u32 s%d, s%d, s%d" % (S1L, S1, S_T[1]))
    A("s_add_u32 s%d, s%d, 8192" % (S1L, S1L))
    A("s_lshl_b32 s%d, s%d, 8" % (S_T[1], S_C))
    A("s_add_u32 s%d, s%d, s%d" % (S1, S1, S_T[1]))
    A("s_mul_i32 s%d, s%d, %d" % (S2, S_C, 128 * 1152))
    A("s_lshr_b32 s%d, s%d, 1" % (S_T[1], S_W))
    A("s_mul_i32 s%d, s%d, %d" % (S2X, S_T[1], 8 * 1152))
    A("s_mul_i32 s%d, s%d, %d" % (S_T[2], S_C, 16 * 1152))
    A("s_add_u32 s%d, s%d, s%d" % (S2X, S2X, S_T[2]))
    A("s_add_u32 s%d, s%d, %d" % (S2X, S2X, 4096 * 1152))
    A("s_add_u32 s%d, s%d, s%d" % (S2, S2, S_T[0]))
    A("s_mul_i32 s%d, s%d, 5120" % (L1L, S_W))
    A("s_add_u32 s%d, s%d, %d" % (L1L, L1L, L_W1L))
    A("s_mul_i32 s%d, s%d, 9216" % (L2X, S_T[1]))
    A("s_add_u32 s%d, s%d, %d" % (L2X, L2X, L_W2X))
    A("s_and_b32 s%d, s%d, 1" % (S_T[1], S_W))
    A("s_mul_i32 s%d, s%d, %d" % (S_T[2], S_T[1], 5 * 1024))
    A("s_add_u32 s%d, s%d, s%d" % (L2X, L2X, S_T[2]))
    A("s_mul_i32 s%d, s%d, %d" % (S_T[2], S_T[1], 5 * 128))
    A("s_add_u32 s%d, s%d, s%d" % (S2X, S2X, S_T[2]))
    A("v_and_b32 v22, 1, v0")
    A("v_lshlrev_b32 v22, 4, v22")
    A("v_mov_b32 v23, 0xffff")
    A("v_lshlrev_b32 v%d, v22, v23" % V_HALF)
    A("v_bfe_u32 v22, v0, 4, 1")
    A("v_lshlrev_b32 v%d, 5, v22" % V_N8)
    A("v_bfe_u32 v22, v0, 1, 1")
    A("v_lshl_add_u32 v%d, v22, 4, v%d" % (V_N8, V_N8))
    A("v_lshrrev_b32 v22, 5, v0")
    A("v_lshl_add_u32 v%d, v22, 3, v%d" % (V_N8, V_N8))
    A("v_bfe_u32 v22, v0, 2, 2")
    A("v_lshl_add_u32 v%d, v22, 1, v%d" % (V_N8, V_N8))
    A("v_and_b32 v22, 1, v0")
    A("v_add_u32 v%d, v%d, v22" % (V_N8, V_N8))
    A("v_lshlrev_b32 v%d, 3, v%d" % (V_N8, V_N8))
    A("s_mov_b32 s%d, s%d" % (S_EPOCH, S_TAG))
    A("s_mul_i32 s%d, s%d, 0x%x" % (S_TAG, S_TAG, HASH_MUL))
    A("s_add_u32 s%d, s%d, 0x%x" % (S_TAG, S_TAG, HASH_ADD))
    A("s_getreg_b32 s%d, hwreg(HW_REG_XCC_ID)" % S_T[0])
    A("s_and_b32 s%d, s%d, 15" % (S_T[0], S_T[0]))
    A("s_mov_b32 s%d, s%d" % (S_XCC, S_T[0]))
    A("v_mov_b32 v22, s%d" % S_T[0])
    A("v_mov_b32 v23, s%d" % S_TAG)
    A("s_lshl_b32 s%d, s%d, 3" % (S_T[0], S_C))
    A("s_add_u32 s%d, s%d, 0x%x" % (S_T[0], S_T[0], OFF_XC))
    A("v_mov_b32 v24, 0")
    A("buffer_store_dwordx2 v[22:23], v24, s[%d:%d], s%d offen sc1" % (S_WS, S_WS + 3, S_T[0]))
    A("s_waitcnt vmcnt(%d)" % (36 + npf + 1))
    ist(1)
    YKB = {1: YK, 0: [5, 6, 7, 8, 9]}
    for b in (1, 0):
        f = FL[b]; sx, sq, t = 40, 41, 47
        A("v_cndmask_b32_e64 v%d, 0, v%d, s[%d:%d]" % (f + 4, f + 4, S_ML32, S_ML32 + 1))
        for k in range(5):
            A("v_lshlrev_b32 v%d, 16, v%d" % (t, f + k))
            A("v_and_b32 v%d, 0xffff0000, v%d" % (f + k, f + k))
            if k == 0:
                A("v_add_f32 v%d, v%d, v%d" % (sx, t, f + k))
                A("v_mul_f32 v%d, v%d, v%d" % (sq, t, t))
            else:
                A("v_add_f32 v%d, v%d, v%d" % (sx, sx, t))
                A("v_fmac_f32 v%d, v%d, v%d" % (sq, t, t))
                A("v_add_f32 v%d, v%d, v%d" % (sx, sx, f + k))
            A("v_fmac_f32 v%d, v%d, v%d" % (sq, f + k, f + k))
        A("v_add_f32_dpp v%d, v%d, v%d %s" % (sx, sx, sx, qp([1, 0, 3, 2])))
        A("v_add_f32_dpp v%d, v%d, v%d %s" % (sq, sq, sq, qp([1, 0, 3, 2])))
        A("v_cndmask_b32_e64 v%d, v%d, v%d, s[%d:%d]" % (sx, sx, sq, S_MODD, S_MODD + 1))
        parity_allreduce(A, sx, t)
        for k in range(5):
            A("v_lshlrev_b32 v%d, 16, v%d" % (YL[b] + k, YL[b] + k))
        ln_tail(A, sx, [YL[b] + k for k in range(5)], YKB[b], 41, 47)
    WL.issue(20)
    zero_b(A, B0, B0 + 8)
    A("s_waitcnt vmcnt(%d)" % (20 + npf + 1))
    ist(2)
    for b in (1, 0):
        A("s_lshl_b32 s%d, s%d, 9" % (S_QO, S_C))
        A("s_add_u32 s%d, s%d, 0x%x" % (S_QO, S_QO, OFF_Q + b * 16384))
        qproj(A, S_QO, YKB[b], pre_barrier=(b == 0))
        ist(3 if b == 1 else 4)
        if b == 1:
            A("s_waitcnt vmcnt(20)")
            WL.issue(30)
    srd(A, S_OUT, S_P, 2304)
    A("v_lshrrev_b32 v%d, 1, v0" % t0)
    A("s_mul_i32 s%d, s%d, 18" % (S_T[1], S_C))
    A("v_add_u32 v%d, s%d, v%d" % (t0, S_T[1], t0))
    A("v_lshlrev_b32 v%d, 1, v%d" % (t0, t0))
    sw = cfg.get("bswap", 0)
    A("buffer_load_ushort v%d, v%d, s[%d:%d], 0 offen offset:1152" % (V_XO if sw else V_X, t0, S_OUT, S_OUT + 3))
    A("buffer_load_ushort v%d, v%d, s[%d:%d], 0 offen" % (V_X if sw else V_XO, t0, S_OUT, S_OUT + 3))
    srd(A, S_SRD, S_P + 12, 1152)
    A("buffer_load_ushort v%d, v%d, s[%d:%d], 0 offen" % (V_B2, t0, S_SRD, S_SRD + 3))
    A("v_lshrrev_b32 v%d, 2, v%d" % (t1, V_ROW8))
    A("s_lshl_b32 s%d, s%d, 8" % (S_T[1], S_C))
    A("s_lshl_b32 s%d, s%d, 6" % (S_T[2], S_W))
    A("s_add_u32 s%d, s%d, s%d" % (S_T[1], S_T[1], S_T[2]))
    A("s_lshl_b32 s%d, s%d, 5" % (S_T[2], S_C))
    A("s_lshr_b32 s%d, s%d, 1" % (S_T[3], S_W))
    A("s_lshl_b32 s%d, s%d, 4" % (S_T[3], S_T[3]))
    A("s_add_u32 s%d, s%d, s%d" % (S_T[2], S_T[2], S_T[3]))
    A("s_add_u32 s%d, s%d, 8192" % (S_T[2], S_T[2]))
    srd(A, S_SRD, S_P + 8, 9216)
    A("buffer_load_ushort v%d, v%d, s[%d:%d], s%d offen" % (V_B1M, t1, S_SRD, S_SRD + 3, S_T[1]))
    A("buffer_load_ushort v%d, v%d, s[%d:%d], s%d offen" % (V_B1E, t1, S_SRD, S_SRD + 3, S_T[2]))
    A("v_lshlrev_b32 v%d, 2, v%d" % (V_PX, t0))
    A("v_mov_b32 v%d, 0x%x" % (t2, OOB))
    A("v_cndmask_b32_e64 v%d, v%d, v%d, s[%d:%d]" % (V_PX, V_PX, t2, S_MODD, S_MODD + 1))
    A("v_cndmask_b32_e64 v%d, v%d, v%d, s[%d:%d]" % (V_PX, t2, V_PX, S_ML36, S_ML36 + 1))
    A("v_and_b32 v%d, 1, v0" % t3)
    A("s_lshl_b32 s%d, s%d, 1" % (S_T[1], S_C))
    A("v_add_u32 v%d, s%d, v%d" % (t3, S_T[1], t3))
    A("v_lshlrev_b32 v%d, 3, v%d" % (t3, t3))
    A("v_add_u32 v%d, 4608, v%d" % (t3, t3))
    A("v_and_b32 v%d, 62, v0" % t2)
    A("v_cmp_eq_u32 vcc, 40, v%d" % t2)
    A("v_cndmask_b32 v%d, v%d, v%d, vcc" % (V_PX, V_PX, t3))
    def xc_issue():
        A("v_and_b32 v34, 31, v0")
        A("v_lshlrev_b32 v34, 3, v34")
        A("s_mov_b32 s%d, 0x%x" % (S_T[0], OFF_XC))
        A("buffer_load_dwordx2 v[36:37], v34, s[%d:%d], s%d offen sc1" % (S_WS, S_WS + 3, S_T[0]))
    if not cfg.get("dry", 0): xc_issue()
    if cfg.get("pretouch", 1):
        A("s_lshl_b32 s%d, s%d, 2" % (S_T[0], S_C))
        A("s_add_u32 s%d, s%d, s%d" % (S_T[0], S_T[0], S_W))
        A("s_mul_i32 s%d, s%d, 2560" % (S_T[1], S_T[0]))
        A("s_add_u32 s%d, s%d, 0x%x" % (S_T[1], S_T[1], OFF_YP))
        A("v_lshlrev_b32 v35, 4, v0")
        for i in range(3):
            A("buffer_load_dwordx4 v[38:41], v35, s[%d:%d], s%d offen offset:%d" % (S_WS, S_WS + 3, S_T[1], min(1024 * i, 1536)))
        A("s_and_b32 s%d, s%d, 15" % (S_T[0], S_T[0]))
        A("s_lshl_b32 s%d, s%d, 10" % (S_T[0], S_T[0]))
        A("s_add_u32 s%d, s%d, 0x%x" % (S_T[0], S_T[0], OFF_X))
        A("buffer_load_dwordx4 v[38:41], v35, s[%d:%d], s%d offen" % (S_WS, S_WS + 3, S_T[0]))
    WL.cur_srd = None
    ist(5)
    win = cfg.get("w_win", 60)
    stepn = 30 if win >= 60 else 8
    while WL.left() > 0:
        A("s_waitcnt vmcnt(%d)" % (win - stepn))
        WL.issue(min(stepn, WL.left()))
    assert WL.cur_srd == "w2"
    sk = newlab("w2x")
    A("s_waitcnt vmcnt(40)")
    WL.voff(1152)
    A("s_and_b32 s%d, s%d, 1" % (S_T[0], S_W))
    A("s_cmp_eq_u32 s%d, 1" % S_T[0])
    A("s_cbranch_scc1 %s" % sk)
    A("s_add_u32 m0, s%d, 0x%x" % (L2X, 4 * 1024))
    A("s_add_u32 s%d, s%d, 0x%x" % (S_T[8], S2X, 4 * 128))
    A("buffer_load_dwordx4 v%d, s[%d:%d], s%d offen nt lds" % (WL.VOFF, S_SRD, S_SRD + 3, S_T[8]))
    A.label(sk)
    dry = cfg.get("dry", 0)
    def post():
        ist(6)
        if dry: xc_issue()
        A("s_waitcnt vmcnt(0)")
        for r in (V_X, V_XO, V_B1M, V_B2, V_B1E):
            A("v_lshlrev_b32 v%d, 16, v%d" % (r, r))
        srd(A, S_OUT, S_P + 14, 2304)
        if cfg.get("tlbwarm", 1) >= 2:
            A("v_mov_b32 v38, 0")
            A("buffer_load_dword v39, v38, s[%d:%d], 0 offen" % (S_OUT, S_OUT + 3))
            A("s_mov_b32 s%d, 0x280000" % S_T[0])
            A("buffer_load_dword v39, v38, s[%d:%d], s%d offen sc1" % (S_WS, S_WS + 3, S_T[0]))
        okx = newlab("xok"); rtx = newlab("xrt")
        A("v_cmp_ne_u32 vcc, s%d, v37" % S_TAG)
        A.branch("s_cbranch_vccz %s" % okx)
        A("s_mov_b32 s%d, 0x2000" % S_SPIN)
        A.label(rtx)
        A("s_sleep 2")
        xc_issue()
        A("s_waitcnt vmcnt(0)")
        A("v_cmp_ne_u32 vcc, s%d, v37" % S_TAG)
        A("s_sub_u32 s%d, s%d, 1" % (S_SPIN, S_SPIN))
        A.branch("s_cbranch_scc1 %s" % okx)
        A.branch("s_cbranch_vccnz %s" % rtx)
        A.label(okx)
        A("v_cmp_ne_u32 vcc, s%d, v36" % S_XCC)
        A("s_cmp_eq_u64 vcc, 0")
        A("s_cselect_b32 s%d, %d, 0" % (S_FAST, 0 if cfg.get("force_slow") else 1))
        ist(7)
        if cfg.get("stamps"):
            A("s_lshl_b32 s%d, s%d, 8" % (S_CST + 8, S_XCC))
            A("s_or_b32 s%d, s%d, s%d" % (S_CST + 8, S_CST + 8, S_FAST))
            stamp_store(A, 0x780000, 5, 8, S_CST + 8)
        if cfg.get("dbgtime"):
            A("s_memrealtime s[%d:%d]" % (S_EX, S_EX + 1))
            A("s_waitcnt lgkmcnt(0)")
            A("s_mov_b32 s%d, s%d" % (S_DBG, S_EX))
    if not dry: post()
    A("s_mov_b32 s%d, 0x%x" % (S_YP1, OFF_YP))
    A("s_mov_b32 s%d, 0x%x" % (S_YP2, OFF_YP + YP_STRIDE))
    A("s_mov_b32 s%d, 0x%x" % (S_X1, OFF_X))
    A("s_mov_b32 s%d, 0x%x" % (S_X2, OFF_X + X_STRIDE))
    if dry:
        A("s_mov_b32 s%d, 1" % S_STEP)
        A("s_mov_b32 s%d, 2" % S_FAST)
        A("s_mov_b32 s%d, 1" % S_W0)
        DRY["on"] = True
    else:
        A("s_mov_b32 s%d, 2" % S_STEP)
    A.label("L_ch_loop")
    A("s_lshr_b32 s%d, 0xd, s%d" % (S_B, S_STEP))
    A("s_and_b32 s%d, s%d, 1" % (S_B, S_B))
    A("s_lshr_b32 s%d, 0x28, s%d" % (S_L, S_STEP))
    A("s_and_b32 s%d, s%d, 1" % (S_L, S_L))
    A("s_lshl_b32 s%d, s%d, 1" % (S_T[0], S_L))
    A("s_add_u32 s%d, s%d, s%d" % (S_T[0], S_T[0], S_B))
    A("s_lshl_b32 s%d, s%d, 5" % (S_PART, S_T[0]))
    A("s_add_u32 s%d, s%d, s%d" % (S_PART, S_PART, S_C))
    A("s_lshl_b32 s%d, s%d, 14" % (S_PART, S_PART))
    A("s_add_u32 s%d, s%d, 0x%x" % (S_PART, S_PART, OFF_PART))
    A("s_add_u32 s%d, s%d, s%d" % (S_TL, S_TAG, S_STEP))
    A("s_lshl_b32 s%d, s%d, 14" % (S_QO, S_B))
    A("s_lshl_b32 s%d, s%d, 9" % (S_T[1], S_C))
    A("s_add_u32 s%d, s%d, s%d" % (S_QO, S_QO, S_T[1]))
    A("s_add_u32 s%d, s%d, 0x%x" % (S_QO, S_QO, OFF_Q + 2 * 16384))
    FINE["cfg"] = cfg
    st = (lambda k: None) if cfg.get("fine") else (lambda k: chain_stamp(A, cfg, k))
    if cfg.get("fine") == 4:
        pass
    st(0); fst(A, 0); fst(A, 0, 3)
    oproj(A)
    st(1); fst(A, 1)
    red(A, S_YP1, False, lambda A: pubx(A, S_X1))
    st(2)
    gath_ln(A, S_X1)
    st(3); fst(A, 6); fst(A, 0, 2); fst(A, 0, 4); cyc_stamp(A, 1)
    mlp(A)
    st(4); fst(A, 7); fst(A, 4, 2); fst(A, 2, 4); cyc_stamp(A, 3)
    def tail2(A):
        o = newlab("t2out"); d = newlab("t2done")
        A("s_cmp_eq_u32 s%d, 1" % S_L)
        A.branch("s_cbranch_scc1 %s" % o)
        pubx(A, S_X2)
        A.branch("s_branch %s" % d)
        A.label(o)
        if cfg.get("perturb"):
            A("s_cmp_eq_u32 s%d, 0" % S_C)
            A("s_cselect_b32 s%d, 0x%x, 0" % (S_T[0], f2u(float(cfg["perturb"]) / 1000.0)))
            A("v_add_f32 v30, s%d, v%d" % (S_T[0], V_X))
            A("v_lshrrev_b32 v30, 16, v30")
        else:
            A("v_lshrrev_b32 v30, 16, v%d" % V_X)
        A("v_lshrrev_b32 v31, 2, v%d" % V_PX)
        if cfg.get("bswap", 0):
            A("s_xor_b32 s%d, s%d, 1" % (S_T[0], S_B))
            A("s_mul_i32 s%d, s%d, 1152" % (S_T[0], S_T[0]))
        else:
            A("s_mul_i32 s%d, s%d, 1152" % (S_T[0], S_B))
        A("s_mov_b32 s%d, 0x55555555" % S_EX)
        A("s_mov_b32 s%d, 0x5" % (S_EX + 1))
        A("s_mov_b64 exec, s[%d:%d]" % (S_EX, S_EX + 1))
        A("buffer_store_short v30, v31, s[%d:%d], s%d offen" % (S_OUT, S_OUT + 3, S_T[0]))
        A("s_mov_b64 exec, -1")
        A.label(d)
    red(A, S_YP2, True, tail2)
    st(5)
    A("s_cmp_eq_u32 s%d, 1" % S_L)
    A.branch("s_cbranch_scc1 L_ch_next")
    gath_ln(A, S_X2)
    st(6)
    qproj(A, S_QO)
    st(7); fst(A, 7, 2)
    A.label("L_ch_next")
    A("s_cmp_eq_u32 s%d, 3" % S_STEP)
    A("s_cbranch_scc0 L_ch_noswap")
    A("v_swap_b32 v%d, v%d" % (V_X, V_XO))
    A.label("L_ch_noswap")
    if dry:
        DRY["on"] = False
        A("s_cmp_eq_u32 s%d, 1" % S_STEP)
        A.branch("s_cbranch_scc0 L_ch_notdry")
        post()
        A("s_mov_b32 s%d, s%d" % (S_W0, S_W))
        A("s_mov_b32 s%d, 2" % S_STEP)
        A.branch("s_branch L_ch_loop")
        A.label("L_ch_notdry")
    if cfg.get("stamps"):
        def eo():
            A("s_sub_u32 s%d, s%d, 2" % (S_T[1], S_STEP))
            A("s_lshl_b32 s%d, s%d, 5" % (S_T[1], S_T[1]))
            A("s_add_u32 s%d, s%d, s%d" % (S_T[0], S_T[0], S_T[1]))
        stamp_store(A, 0x700000, 7, 8, S_CST, eo)
    if cfg.get("dbgtime"):
        A("s_memrealtime s[%d:%d]" % (S_EX, S_EX + 1))
        A("s_waitcnt lgkmcnt(0)")
        for k in range(2, 6):
            A("s_cmp_eq_u32 s%d, %d" % (S_STEP, k))
            A("s_cselect_b32 s%d, s%d, s%d" % (S_DBG + k - 1, S_EX, S_DBG + k - 1))
    A("s_add_u32 s%d, s%d, 1" % (S_STEP, S_STEP))
    A("s_cmp_lt_u32 s%d, 6" % S_STEP)
    A.branch("s_cbranch_scc1 L_ch_loop")
    A("s_or_b32 s%d, s%d, s%d" % (S_T[0], S_C, S_W))
    A("s_cmp_lg_u32 s%d, 0" % S_T[0])
    A.branch("s_cbranch_scc1 L_end")
    if cfg.get("dbgtime"):
        A("s_memrealtime s[%d:%d]" % (S_EX, S_EX + 1))
        A("s_load_dwordx2 s[%d:%d], s[0:1], 88" % (S_T[2], S_T[3]))
        A("s_waitcnt lgkmcnt(0)")
        srd(A, S_SRD, S_T[2], 256)
        A("s_sub_u32 s%d, s%d, s98" % (S_T[4], S_EX))
        A("v_mov_b32 v30, s%d" % S_T[4])
        A("v_mov_b32 v31, 0")
        A("buffer_store_dword v30, v31, s[%d:%d], 0 offen" % (S_SRD, S_SRD + 3))
        for k in range(6):
            A("s_sub_u32 s%d, s%d, s98" % (S_T[4], S_DBG + k))
            A("v_mov_b32 v30, s%d" % S_T[4])
            A("buffer_store_dword v30, v31, s[%d:%d], 0 offen offset:%d" % (S_SRD, S_SRD + 3, 4 * (k + 1)))
            A("s_nop 1")
    A("s_add_u32 s%d, s%d, 1" % (S_T[0], S_EPOCH))
    A("v_mov_b32 v30, s%d" % S_T[0])
    A("v_mov_b32 v31, 0")
    A("s_mov_b64 exec, 1")
    A("buffer_store_dword v30, v31, s[%d:%d], 0 offen" % (S_WS, S_WS + 3))
    A("s_waitcnt vmcnt(0)")
```

```python
from emit import *
from layout import *
import math
from attn import qp, build_b, g_reduce, newlab

V_LANE, V_HALF, V_ROW8, V_N8, V_PX, V_X, V_XO, V_B1M, V_B2, V_B1E = 0, 1, 2, 3, 4, 5, 6, 7, 8, 9
B0 = 10
BX = 26
YK = [42, 43, 44, 45, 46]
WREG0 = 48
def wq_reg(beta, cb):  return WREG0 + 4 * ((beta - 14) * 2 + cb)
def wo_reg(mu, cb):    return WREG0 + 4 * (8 + mu * 9 + cb)
def w1_reg(beta, cb):  return WREG0 + 4 * (8 + 36 + beta * 2 + cb)
def w2_reg(mu, cb):    return WREG0 + 4 * (8 + 72 + mu * 9 + cb)
SCR = 0
L_WQ = 10240
L_W1L = L_WQ + 4 * 28672
L_W2X = L_W1L + 4 * 5120
assert L_W2X + 18 * 1024 == 163840
S_WS = 4; S_SRD = 8; S_OUT = 12
S_TAG, S_W, S_C, S_STEP = 16, 17, 18, 19
S_PART, S_YP1, S_YP2, S_X1, S_X2, S_QO, S_B, S_L, S_FAST, S_SPIN = 20, 21, 22, 23, 24, 25, 26, 27, 28, 29
S_MG1, S_MODD, S_ML36, S_MMU2, S_MGP = 30, 32, 34, 36, 38
S_T = list(range(40, 56))
S_EX = 56
S_P = 60
S_M7 = 76
S_XCC = 79
S_CST = 80
S_DBG = 80
S_EPOCH = 99
S_ML32 = 100
S_W0 = 58
S_TL = 97
OOB = 0x7f000000

class Cap:
    def __init__(self): self.l = []
    def __call__(self, t): self.l.append(t)

def weave(A, main, fill, per=1):
    fill = list(fill)
    for m in main:
        A(m)
        for _ in range(per):
            if fill: A(fill.pop(0))
    for f in fill: A(f)

class LG:
    def __init__(self, A): self.A = A; self.n = 0; self.done = 0
    def issue(self, t): self.A(t); self.n += 1; return self.n - 1
    def count(self): self.n += 1; return self.n - 1
    def wait_text(self, idx):
        if idx < self.done: return None
        k = self.n - 1 - idx; self.done = idx + 1
        return "s_waitcnt lgkmcnt(%d)" % k
    def wait(self, idx):
        t = self.wait_text(idx)
        if t: self.A(t)

def srd(A, base, ptr, size):
    A("s_mov_b32 s%d, s%d" % (base, ptr))
    A("s_and_b32 s%d, s%d, 0xffff" % (base + 1, ptr + 1))
    A("s_mov_b32 s%d, 0x%x" % (base + 2, size))
    A("s_mov_b32 s%d, 0x00020000" % (base + 3))

def bf16r(A, d, s):
    A("v_cvt_pk_bf16_f32 v%d, v%d, v%d" % (d, s, s))
    A("v_and_b32 v%d, 0xffff0000, v%d" % (d, d))

DRY = {"on": False}
def poll(A, issue, check, between=None, sleep=0):
    ok = newlab("ok"); retry = newlab("rt")
    if DRY["on"]:
        if between:
            go = newlab("go")
            A("s_cmp_eq_u32 s%d, 1" % S_STEP)
            A("s_cbranch_scc1 %s" % go)
            issue()
            A.lines.append(go + ":")
            between()
            A("s_cmp_eq_u32 s%d, 1" % S_STEP)
            A("s_cbranch_scc1 %s" % ok)
        else:
            A("s_cmp_eq_u32 s%d, 1" % S_STEP)
            A("s_cbranch_scc1 %s" % ok)
            issue()
    else:
        issue()
        if between: between()
    A("s_waitcnt vmcnt(0)")
    check()
    A.branch("s_cbranch_vccz %s" % ok)
    A("s_mov_b32 s%d, 0x2000" % S_SPIN)
    A.label(retry)
    if sleep: A("s_sleep %d" % sleep)
    issue()
    A("s_waitcnt vmcnt(0)")
    check()
    A("s_sub_u32 s%d, s%d, 1" % (S_SPIN, S_SPIN))
    A.branch("s_cbranch_scc1 %s" % ok)
    A.branch("s_cbranch_vccnz %s" % retry)
    A.label(ok)

def tagcheck(A, regs, t0, t1, stag=None):
    stag = S_TL if stag is None else stag
    regs = list(regs)
    def fold(op3, op2, dst):
        r = regs[:]
        A("%s v%d, v%d, v%d, v%d" % (op3, dst, r[0], r[1], r[2])); r = r[3:]
        while len(r) >= 2:
            A("%s v%d, v%d, v%d, v%d" % (op3, dst, dst, r[0], r[1])); r = r[2:]
        if r: A("%s v%d, v%d, v%d" % (op2, dst, dst, r[0]))
    c1, c2 = Cap(), Cap()
    A0 = A
    A = c1; fold("v_min3_u32", "v_min_u32", t0)
    A = c2; fold("v_max3_u32", "v_max_u32", t1)
    A = A0
    weave(A, c1.l, c2.l)
    A("v_cmp_ne_u32 vcc, s%d, v%d" % (stag, t0))
    A("v_cmp_ne_u32 s[%d:%d], s%d, v%d" % (S_EX, S_EX + 1, stag, t1))
    A("s_or_b64 vcc, vcc, s[%d:%d]" % (S_EX, S_EX + 1))

def store_mode(A, texts):
    slow = newlab("slow"); done = newlab("sdone")
    A("s_cmp_eq_u32 s%d, 1" % S_FAST)
    A("s_cbranch_scc0 %s" % slow)
    for t in texts: A(t)
    A("s_branch %s" % done)
    A.lines.append(slow + ":")
    if DRY["on"]:
        A("s_cmp_eq_u32 s%d, 2" % S_FAST)
        A("s_cbranch_scc1 %s" % done)
    for t in texts: A(t + " sc1")
    A.lines.append(done + ":")

def xrow_allreduce(A, z, t):
    A("v_mov_b32 v%d, v%d" % (t, z))
    A("v_permlane16_swap_b32 v%d, v%d" % (z, t))
    A("v_add_f32 v%d, v%d, v%d" % (z, z, t))
    A("v_mov_b32 v%d, v%d" % (t, z))
    A("v_permlane32_swap_b32 v%d, v%d" % (z, t))
    A("v_add_f32 v%d, v%d, v%d" % (z, z, t))

def parity_allreduce(A, z, t):
    for sh in (2, 4, 8):
        A("v_add_f32_dpp v%d, v%d, v%d row_ror:%d row_mask:0xf bank_mask:0xf" % (z, z, z, sh))
    xrow_allreduce(A, z, t)

def mfma_t(D, a, b, first):
    return "v_mfma_f32_16x16x32_bf16 %s, %s, %s, %s" % (vr(D, 4), vr(a, 4), vr(b, 4), "0" if first else vr(D, 4))

def zero_b(A, lo, hi):
    for r in range(lo, hi): A("v_mov_b32 v%d, 0" % r)

def cap_build(B, Y, mu):
    c = Cap(); build_b(c, B, Y, mu); return c.l

def ln_tail(A, z, xs, yk, mean, ex2, fill=()):
    A("v_mov_b32_dpp v%d, v%d %s" % (mean, z, qp([0, 0, 2, 2])))
    A("v_mov_b32_dpp v%d, v%d %s" % (ex2, z, qp([1, 1, 3, 3])))
    A("v_mul_f32 v%d, 0x%x, v%d" % (mean, f2u(1.0 / 576), mean))
    A("v_mul_f32 v%d, 0x%x, v%d" % (ex2, f2u(1.0 / 576), ex2))
    A("v_fma_f32 v%d, -v%d, v%d, v%d" % (ex2, mean, mean, ex2))
    c1, c2 = Cap(), Cap()
    c1("v_max_f32 v%d, 0, v%d" % (ex2, ex2))
    bf16r(c1, ex2, ex2)
    c1("v_add_f32 v%d, 0x%x, v%d" % (ex2, f2u(1e-5), ex2))
    bf16r(c1, ex2, ex2)
    c1("v_sqrt_f32 v%d, v%d" % (ex2, ex2))
    bf16r(c1, ex2, ex2)
    c1("v_rcp_f32 v%d, v%d" % (ex2, ex2))
    bf16r(c2, mean, mean)
    for x in xs: c2("v_sub_f32 v%d, v%d, v%d" % (x, x, mean))
    for x in xs: c2("v_cvt_pk_bf16_f32 v%d, v%d, v%d" % (x, x, x))
    for x in xs: c2("v_and_b32 v%d, 0xffff0000, v%d" % (x, x))
    weave(A, c1.l, c2.l, per=2)
    for x in xs: A("v_mul_f32 v%d, v%d, v%d" % (x, x, ex2))
    for x in xs: A("v_cvt_pk_bf16_f32 v%d, v%d, v%d" % (x, x, x))
    for x, y in zip(xs, yk): A("v_and_b32 v%d, v%d, v%d" % (y, x, V_HALF))

def pubx(A, s_xoff):
    z, t, d = 30, 31, 32
    A("v_mul_f32 v%d, v%d, v%d" % (t, V_X, V_X))
    A("v_cndmask_b32_e64 v%d, v%d, v%d, s[%d:%d]" % (z, V_X, t, S_MODD, S_MODD + 1))
    A("v_cndmask_b32_e64 v%d, 0, v%d, s[%d:%d]" % (z, z, S_ML36, S_ML36 + 1))
    A("v_mov_b32 v%d, s%d" % (d + 1, S_TL))
    parity_allreduce(A, z, t)
    A("v_cndmask_b32_e64 v%d, v%d, v%d, s[%d:%d]" % (d, z, V_X, S_ML36, S_ML36 + 1))
    store_mode(A, ["buffer_store_dwordx2 %s, v%d, s[%d:%d], s%d offen" % (vr(d, 2), V_PX, S_WS, S_WS + 3, s_xoff)])

def gath_ln(A, s_xoff):
    G = 30; ST = 40
    A("s_barrier")
    sa, sb = S_T[0], S_T[1]
    A("s_mul_i32 s%d, s%d, 1152" % (sa, S_W))
    A("s_add_u32 s%d, s%d, s%d" % (sa, sa, s_xoff))
    A("s_add_u32 s%d, s%d, 4608" % (sb, s_xoff))
    A("v_lshlrev_b32 v%d, 3, v%d" % (46, V_LANE))
    def issue():
        A("buffer_load_dwordx2 %s, v%d, s[%d:%d], s%d offen sc1" % (vr(ST, 2), 46, S_WS, S_WS + 3, sb))
        for k in range(5):
            A("buffer_load_dwordx2 %s, v%d, s[%d:%d], s%d offen offset:%d sc1" % (vr(G + 2 * k, 2), V_ROW8, S_WS, S_WS + 3, sa, 256 * k))
    def check():
        A("v_mov_b32 v%d, s%d" % (47, S_TL))
        A("v_cndmask_b32_e64 v%d, v%d, v%d, s[%d:%d]" % (43, 47, G + 9, S_MMU2, S_MMU2 + 1))
        tagcheck(A, [G + 1, G + 3, G + 5, G + 7, 43, ST + 1], 47, 42)
    poll(A, issue, check)
    if FINE.get("g", 0) == 0: fst(A, 5)
    FINE["g"] = FINE.get("g", 0) + 1
    parity_allreduce(A, ST, 47)
    ln_tail(A, ST, [G + 2 * k for k in range(5)], YK, 47, 41)

def qproj(A, s_qoff, YKs=YK, pre_barrier=True):
    D = [30, 34]; t1, t2, R0, R1 = 38, 39, 40, 41
    LT = [18, 22, 26]; va = 47
    if pre_barrier: A("s_barrier")
    A("s_mul_i32 s%d, s%d, 28672" % (S_T[0], S_W))
    A("s_add_u32 s%d, s%d, %d" % (S_T[0], S_T[0], L_WQ))
    A("v_lshlrev_b32 v%d, 4, v%d" % (va, V_LANE))
    A("v_add_u32 v%d, s%d, v%d" % (va, S_T[0], va))
    lg = LG(A); rd = {}
    nxt = [0]
    def rd_text():
        i = nxt[0]
        if i >= 28: return None
        nxt[0] += 1
        rd[i] = lg.count()
        return "ds_read_b128 %s, v%d offset:%d" % (vr(LT[i % 3], 4), va, i * 1024)
    for _ in range(3): A(rd_text())
    for t in cap_build(B0, YKs[0], 0): A(t)
    for beta in range(18):
        B = B0 + 4 * (beta & 1)
        nb = cap_build(B0 + 4 * ((beta + 1) & 1), YKs[(beta + 1) >> 2], (beta + 1) & 3) if beta < 17 else []
        for cb in range(2):
            if beta < 14:
                i = 2 * beta + cb
                lg.wait(rd[i]); a = LT[i % 3]
            else:
                a = wq_reg(beta, cb)
            A(mfma_t(D[cb], a, B, beta == 0))
            if beta < 14:
                t = rd_text()
                if t: A(t)
            for t in nb[2 * cb:2 * cb + 2]: A(t)
    c1, c2 = Cap(), Cap()
    g_reduce(c1, D[0], D[0], D[0] + 3, D[0], S_MG1)
    g_reduce(c2, D[1], D[1], D[1] + 3, D[1], S_MG1)
    A("v_lshrrev_b32 v%d, 1, v%d" % (va, V_N8))
    A("s_lshl_b32 s%d, s%d, 9" % (S_T[0], S_W))
    A("v_add_u32 v%d, s%d, v%d" % (va, S_T[0], va))
    weave(A, c1.l, c2.l)
    A("ds_write_b32 v%d, v%d offset:%d" % (va, D[0], SCR))
    A("ds_write_b32 v%d, v%d offset:%d" % (va, D[1], SCR + 256))
    A("v_lshlrev_b32 v%d, 3, v%d" % (va, V_LANE))
    A("v_mov_b32 v%d, s%d" % (39, S_TAG))
    A("s_waitcnt lgkmcnt(0)")
    A("s_barrier")
    skip = newlab("q_skip")
    A("s_cmp_lg_u32 s%d, 0" % S_W0)
    A("s_cbranch_scc1 %s" % skip)
    for w in range(4):
        A("ds_read_b64 %s, v%d offset:%d" % (vr(30 + 2 * w, 2), va, SCR + w * 512))
    A("s_waitcnt lgkmcnt(2)")
    A("v_add_f32 v30, v30, v32")
    A("v_add_f32 v31, v31, v33")
    A("s_waitcnt lgkmcnt(0)")
    A("v_add_f32 v34, v34, v36")
    A("v_add_f32 v35, v35, v37")
    A("v_add_f32 v30, v30, v34")
    A("v_add_f32 v31, v31, v35")
    A("v_cvt_pk_bf16_f32 v38, v30, v31")
    A("buffer_store_dwordx2 v[38:39], v%d, s[%d:%d], s%d offen sc1" % (va, S_WS, S_WS + 3, s_qoff))
    A.label(skip)

def proj576(A, wreg, s_yp, ext=False, bops=None):
    D = [30, 34, 38]
    LTX = 44; VAX = 42
    lg = LG(A)
    A("s_lshl_b32 s%d, s%d, 8" % (S_T[0], S_W))
    A("s_add_u32 m0, s%d, %d" % (S_T[0], SCR))
    rdx = {}
    def V(cb):
        c = Cap()
        d = D[cb % 3]
        g_reduce(c, d, d, d + 3, d, S_MG1)
        return c.l
    def wr(cb):
        lg.issue("ds_write_addtid_b32 v%d offset:%d" % (D[cb % 3], cb * 1024))
    for cb in range(9):
        d = D[cb % 3]
        fill = V(cb - 2) if cb >= 2 else []
        if ext:
            if cb == 0: A("s_waitcnt lgkmcnt(0)")
            else: lg.wait(rdx[cb])
            A(mfma_t(d, LTX, BX, True))
            if cb < 8:
                rdx[cb + 1] = lg.issue("ds_read_b128 %s, v%d offset:%d" % (vr(LTX, 4), VAX, (cb + 1) * 1024))
        for mu in range(4):
            if cb == 0 and bops and mu >= 1:
                pass
            A(mfma_t(d, wreg(mu, cb), B0 + 4 * mu, (mu == 0 and not ext)))
            if cb == 0 and bops and mu < 3:
                for t in bops[mu + 1]: A(t)
            for _ in range(2 if mu < 3 else 9):
                if fill: A(fill.pop(0))
        if cb >= 2: wr(cb - 2)
    v7, v8 = V(7), V(8)
    for t in v7[:2]: A(t)
    for t in v7[2:]: A(t)
    wr(7)
    for t in v8: A(t)
    wr(8)
    if ext: fst(A, 3, 2)
    else:
        fst(A, 3, 3); cyc_stamp(A, 5)
    A("s_mul_i32 s%d, s%d, 4608" % (S_T[1], S_C))
    A("s_add_u32 s%d, s%d, s%d" % (S_T[1], S_T[1], s_yp))
    A("s_lshl_b32 s%d, s%d, 9" % (S_T[2], S_W))
    A("s_add_u32 s%d, s%d, s%d" % (S_T[1], S_T[1], S_T[2]))
    A("s_add_u32 s%d, s%d, 4096" % (S_T[2], S_T[1]))
    A("s_cmp_eq_u32 s%d, 0" % S_W)
    A("s_cselect_b32 s%d, s%d, 0x%x" % (S_T[2], S_T[2], OOB))
    A("s_lshl_b32 s%d, s%d, 10" % (S_T[0], S_W))
    A("s_waitcnt lgkmcnt(0)")
    A("s_barrier")
    A("s_add_u32 m0, s%d, %d" % (S_T[0], SCR))
    for blk in range(3):
        for w in range(4):
            A("ds_read_addtid_b32 v%d offset:%d" % (30 + 4 * blk + w, blk * 4096 + w * 256))
    for blk in range(3):
        A("s_waitcnt lgkmcnt(%d)" % (8 - 4 * blk))
        r = 30 + 4 * blk
        A("v_add_f32 v%d, v%d, v%d" % (r, r, r + 1))
        A("v_add_f32 v%d, v%d, v%d" % (r + 2, r + 2, r + 3))
        A("v_mov_b32 v%d, s%d" % (r + 1, S_TL))
        A("v_add_f32 v%d, v%d, v%d" % (r, r, r + 2))
    st = []
    for blk in range(3):
        r = 30 + 4 * blk
        so = S_T[2] if blk == 2 else S_T[1]
        st.append("buffer_store_dwordx2 %s, v%d, s[%d:%d], s%d offen%s" % (vr(r, 2), V_N8, S_WS, S_WS + 3, so, " offset:2048" if blk == 1 else ""))
    store_mode(A, st)

def oproj(A):
    T = 30; ST = 44; t = [26, 27, 28, 29]
    sa = S_T[0:4]
    A("s_barrier")
    zero_b(A, 18, 26)
    A("s_lshl_b32 s%d, s%d, 8" % (sa[0], S_W))
    A("s_add_u32 s%d, s%d, s%d" % (sa[0], sa[0], S_PART))
    for i in range(1, 4):
        A("s_add_u32 s%d, s%d, %d" % (sa[i], sa[0], 4096 * i))
    A("v_and_b32 v%d, 7, v%d" % (t[3], V_LANE))
    A("v_min_u32 v%d, 6, v%d" % (t[3], t[3]))
    A("v_lshlrev_b32 v%d, 11, v%d" % (t[3], t[3]))
    def issue():
        A("buffer_load_dwordx4 %s, v%d, s[%d:%d], s%d offen offset:1024 sc1" % (vr(ST, 4), t[3], S_WS, S_WS + 3, S_PART))
        for s in range(7):
            A("buffer_load_dwordx2 %s, v%d, s[%d:%d], s%d offen%s sc1" % (vr(T + 2 * s, 2), V_ROW8, S_WS, S_WS + 3, sa[s >> 1], " offset:2048" if (s & 1) else ""))
    def check():
        tagcheck(A, [T + 2 * s + 1 for s in range(7)] + [ST + 1, ST + 3], t[0], t[1], S_TAG)
    poll(A, issue, check, sleep=FINE["cfg"].get("psleep", 0))
    fst(A, 1, 3)
    m, Lr = ST, ST + 2
    A("v_mov_b32 v%d, 0xff800000" % t[0])
    A("v_cndmask_b32_e64 v%d, v%d, v%d, s[%d:%d]" % (m, m, t[0], S_M7, S_M7 + 1))
    A("v_max_f32_dpp v%d, v%d, v%d row_ror:1 row_mask:0xf bank_mask:0xf" % (t[1], m, m))
    for sh in (2, 4):
        A("v_max_f32_dpp v%d, v%d, v%d row_ror:%d row_mask:0xf bank_mask:0xf" % (t[1], t[1], t[1], sh))
    A("v_sub_f32 v%d, v%d, v%d" % (m, m, t[1]))
    A("v_exp_f32 v%d, v%d" % (m, m))
    A("v_mul_f32 v%d, v%d, v%d" % (Lr, m, Lr))
    o, o2 = t[2], t[0]
    c1, c2 = Cap(), Cap()
    for sh in (1, 2, 4):
        c1("v_add_f32_dpp v%d, v%d, v%d row_ror:%d row_mask:0xf bank_mask:0xf" % (Lr, Lr, Lr, sh))
    c1("v_rcp_f32 v%d, v%d" % (Lr, Lr))
    c2("v_mul_f32_dpp v%d, v%d, v%d row_newbcast:0 row_mask:0xf bank_mask:0xf" % (o, m, T))
    c2("v_mul_f32_dpp v%d, v%d, v%d row_newbcast:1 row_mask:0xf bank_mask:0xf" % (o2, m, T + 2))
    for s in range(2, 7):
        c2("v_fmac_f32_dpp v%d, v%d, v%d row_newbcast:%d row_mask:0xf bank_mask:0xf" % (o if s % 2 == 0 else o2, m, T + 2 * s, s))
    c2("v_add_f32 v%d, v%d, v%d" % (o, o, o2))
    weave(A, c1.l, c2.l, per=2)
    A("v_mul_f32 v%d, v%d, v%d" % (o, o, Lr))
    A("v_cvt_pk_bf16_f32 v%d, v%d, v%d" % (o, o, o))
    A("v_and_b32 v%d, v%d, v%d" % (o, o, V_HALF))
    build_b(A, B0, o, 0)
    fst(A, 2, 3)
    cyc_stamp(A, 4)
    proj576(A, wo_reg, S_YP1, ext=False, bops=[None] + [cap_build(B0 + 4 * mu, o, mu) for mu in (1, 2, 3)])
    fst(A, 4, 3)

FINE = {"cfg": None}
def fst(A, k, lvl=1):
    cfg = FINE["cfg"]
    if cfg and cfg.get("fine") == lvl: chain_stamp(A, cfg, k)

def red(A, s_yp, bias, tail):
    L1 = 30; L2 = 34; a1, a2, w1a, w2a, t0, t1 = 36, 37, 38, 39, 40, 41
    so = S_T[0]
    A("s_mul_i32 s%d, s%d, %d" % (so, S_W, 8 * 4608))
    A("s_add_u32 s%d, s%d, s%d" % (so, so, s_yp))
    A("s_mul_i32 s%d, s%d, 144" % (S_T[1], S_C))
    A("s_add_u32 s%d, s%d, s%d" % (so, so, S_T[1]))
    A("v_lshrrev_b32 v%d, 3, v%d" % (t0, V_LANE))
    A("v_mul_u32_u24 v%d, 4608, v%d" % (a2, t0))
    A("v_and_b32 v%d, 7, v%d" % (t1, V_LANE))
    A("v_lshl_add_u32 v%d, v%d, 4, v%d" % (a1, t1, a2))
    A("v_and_b32 v%d, 1, v%d" % (47, V_LANE))
    A("v_lshl_add_u32 v%d, v%d, 3, v%d" % (a2, 47, a2))
    def issue():
        A("buffer_load_dwordx4 %s, v%d, s[%d:%d], s%d offen sc1" % (vr(L1, 4), a1, S_WS, S_WS + 3, so))
        A("buffer_load_dwordx2 %s, v%d, s[%d:%d], s%d offen offset:128 sc1" % (vr(L2, 2), a2, S_WS, S_WS + 3, so))
    def between():
        A("s_lshl_b32 s%d, s%d, 5" % (S_T[1], S_W))
        A("v_lshlrev_b32 v%d, 2, v%d" % (t0, t0))
        A("v_add_u32 v%d, s%d, v%d" % (t0, S_T[1], t0))
        A("v_mul_u32_u24 v%d, 288, v%d" % (w1a, t1))
        A("v_add_u32 v%d, v%d, v%d" % (w1a, w1a, t0))
        A("v_mul_u32_u24 v%d, 144, v%d" % (w2a, 47))
        A("v_add_u32 v%d, v%d, v%d" % (w2a, w2a, t0))
        A("v_lshrrev_b32 v%d, 1, v%d" % (46, V_LANE))
        A("v_mul_u32_u24 v%d, 144, v%d" % (46, 46))
        A("v_lshl_add_u32 v%d, v%d, 6, v%d" % (46, 47, 46))
        A("s_barrier")
    def check():
        tagcheck(A, [L1 + 1, L1 + 3, L2 + 1], 42, 43)
    poll(A, issue, check, between)
    if not bias: fst(A, 2)
    else: fst(A, 5, 2)
    A("ds_write_b32 v%d, v%d offset:%d" % (w1a, L1, SCR))
    A("ds_write_b32 v%d, v%d offset:%d" % (w1a, L1 + 2, SCR + 144))
    A("ds_write_b32 v%d, v%d offset:%d" % (w2a, L2, SCR + 16 * 144))
    A("s_waitcnt lgkmcnt(0)")
    A("s_barrier")
    if not bias: fst(A, 3)
    skip = newlab("red_skip")
    A("s_cmp_lg_u32 s%d, 0" % S_W0)
    A("s_cbranch_scc1 %s" % skip)
    Q = 30
    for k in range(4):
        A("ds_read_b128 %s, v%d offset:%d" % (vr(Q + 4 * k, 4), 46, SCR + 16 * k))
    for k in range(4):
        A("s_waitcnt lgkmcnt(%d)" % (3 - k))
        r = Q + 4 * k
        A("v_add_f32 v%d, v%d, v%d" % (r, r, r + 1))
        A("v_add_f32 v%d, v%d, v%d" % (r + 2, r + 2, r + 3))
        A("v_add_f32 v%d, v%d, v%d" % (r, r, r + 2))
    A("v_add_f32 v%d, v%d, v%d" % (Q, Q, Q + 4))
    A("v_add_f32 v%d, v%d, v%d" % (Q + 8, Q + 8, Q + 12))
    A("v_add_f32 v%d, v%d, v%d" % (Q, Q, Q + 8))
    A("v_add_f32_dpp v%d, v%d, v%d %s" % (Q + 1, Q, Q, qp([1, 0, 3, 2])))
    bf16r(A, Q + 1, Q + 1)
    if bias:
        A("v_add_f32 v%d, v%d, v%d" % (Q + 1, Q + 1, V_B2))
        bf16r(A, Q + 1, Q + 1)
    A("v_add_f32 v%d, v%d, v%d" % (V_X, V_X, Q + 1))
    bf16r(A, V_X, V_X)
    tail(A)
    A.label(skip)
    if not bias: fst(A, 4)
    else: fst(A, 6, 2)

def mlp(A):
    D = [30, 34]; DL = 38; RL = 26
    LT = [18, 22]; va = 47
    A("s_mul_i32 s%d, s%d, 5120" % (S_T[0], S_W))
    A("s_add_u32 s%d, s%d, %d" % (S_T[0], S_T[0], L_W1L))
    A("v_lshlrev_b32 v%d, 4, v%d" % (va, V_LANE))
    A("v_add_u32 v%d, s%d, v%d" % (va, S_T[0], va))
    order = [b for q in range(4) for b in range(18) if (b & 3) == q]
    lg = LG(A); rd = {}; nxt = [0]
    def rd_issue():
        i = nxt[0]
        if i >= 18: return
        nxt[0] += 1
        rd[i] = lg.issue("ds_read_b128 %s, v%d offset:%d" % (vr(LT[i % 2], 4), va, (order[i] >> 2) * 1024))
    rd_issue(); rd_issue()
    def extract_left(q):
        return ["v_add_f32_dpp v%d, v%d, v%d %s" % (27, DL + 2, DL, qp([2, 3, 2, 3])),
                "v_add_f32_dpp v%d, v%d, v%d %s" % (28, DL + 1, DL + 3, qp([0, 1, 0, 1])),
                "v_cndmask_b32_e64 v%d, v%d, v%d, s[%d:%d]" % (27, 27, 28, S_MG1, S_MG1 + 1),
                "v_mov_b32_dpp v%d, v%d quad_perm:[0,1,2,3] row_mask:0x%x bank_mask:0xf" % (RL, 27, 1 << q)]
    for t in cap_build(B0, YK[order[0] >> 2], order[0] & 3): A(t)
    for n, beta in enumerate(order):
        B = B0 + 4 * (n & 1)
        q = beta & 3
        newq = (n == 0 or (order[n - 1] & 3) != q)
        nb = cap_build(B0 + 4 * ((n + 1) & 1), YK[order[n + 1] >> 2], order[n + 1] & 3) if n < 17 else []
        A(mfma_t(D[0], w1_reg(beta, 0), B, n == 0))
        for t in nb[0:2]: A(t)
        A(mfma_t(D[1], w1_reg(beta, 1), B, n == 0))
        for t in nb[2:4]: A(t)
        if newq and n > 0:
            for t in extract_left(order[n - 1] & 3): A(t)
        lg.wait(rd[n])
        A(mfma_t(DL, LT[n % 2], B, newq))
        rd_issue()
    fst(A, 1, 2)
    c1, c2 = Cap(), Cap()
    g_reduce(c1, D[0], D[0], D[0] + 3, D[0], S_MG1)
    g_reduce(c2, D[1], D[1], D[1] + 3, D[1], S_MG1)
    ua, ul = 47, 46
    A("v_lshrrev_b32 v%d, 1, v%d" % (ua, V_N8))
    A("s_mul_i32 s%d, s%d, 576" % (S_T[0], S_W))
    A("v_add_u32 v%d, s%d, v%d" % (ua, S_T[0], ua))
    weave(A, c1.l, c2.l)
    A("ds_write_b32 v%d, v%d offset:%d" % (ua, D[0], SCR))
    A("ds_write_b32 v%d, v%d offset:%d" % (ua, D[1], SCR + 256))
    A("v_bfe_u32 v%d, v%d, 1, 1" % (ul, V_LANE))
    A("v_lshlrev_b32 v%d, 5, v%d" % (ul, ul))
    A("v_bfe_u32 v%d, v%d, 2, 2" % (45, V_LANE))
    A("v_lshl_add_u32 v%d, v%d, 3, v%d" % (ul, 45, ul))
    A("v_and_b32 v%d, 1, v%d" % (45, V_LANE))
    A("v_lshl_add_u32 v%d, v%d, 2, v%d" % (ul, 45, ul))
    A("v_add_u32 v%d, s%d, v%d" % (ul, S_T[0], ul))
    for t in extract_left(3): A(t)
    xrow_allreduce(A, RL, 27)
    A("ds_write_b32 v%d, v%d offset:%d" % (ul, RL, SCR + 512))
    A("v_lshrrev_b32 v%d, 1, v%d" % (45, V_ROW8))
    A("s_lshl_b32 s%d, s%d, 7" % (S_T[0], S_W))
    A("v_add_u32 v%d, s%d, v%d" % (ua, S_T[0], 45))
    A("s_lshr_b32 s%d, s%d, 1" % (S_T[0], S_W))
    A("s_lshl_b32 s%d, s%d, 5" % (S_T[0], S_T[0]))
    A("v_add_u32 v%d, s%d, v%d" % (ul, S_T[0], 45))
    A("s_waitcnt lgkmcnt(0)")
    A("s_barrier")
    for w in range(4):
        A("ds_read_b32 v%d, v%d offset:%d" % (30 + w, ua, SCR + w * 576))
    for w in range(4):
        A("ds_read_b32 v%d, v%d offset:%d" % (34 + w, ul, SCR + 512 + w * 576))
    A("s_lshr_b32 s%d, s%d, 1" % (S_T[1], S_W))
    A("s_mul_i32 s%d, s%d, 9216" % (S_T[1], S_T[1]))
    A("s_add_u32 s%d, s%d, %d" % (S_T[1], S_T[1], L_W2X))
    A("v_lshlrev_b32 v42, 4, v%d" % V_LANE)
    A("v_add_u32 v42, s%d, v42" % S_T[1])
    A("ds_read_b128 v[44:47], v42")
    zero_b(A, 18, 30)
    k = math.sqrt(2.0 / math.pi); ca = -2.0 * k * math.log2(math.e); cb_ = ca * 0.044715
    chains = []
    for (r, bias, tt) in ((30, V_B1M, 38), (34, V_B1E, 40)):
        c = Cap()
        c("v_add_f32 v%d, v%d, v%d" % (r, r, r + 1))
        c("v_add_f32 v%d, v%d, v%d" % (r + 2, r + 2, r + 3))
        c("v_add_f32 v%d, v%d, v%d" % (r, r, r + 2))
        bf16r(c, r, r)
        c("v_add_f32 v%d, v%d, v%d" % (r, r, bias))
        bf16r(c, r, r)
        c("v_mul_f32 v%d, v%d, v%d" % (tt, r, r))
        c("v_mov_b32 v%d, 0x%x" % (tt + 1, f2u(ca)))
        c("v_fmac_f32 v%d, 0x%x, v%d" % (tt + 1, f2u(cb_), tt))
        c("v_mul_f32 v%d, v%d, v%d" % (tt + 1, tt + 1, r))
        c("v_exp_f32 v%d, v%d" % (tt + 1, tt + 1))
        c("v_add_f32 v%d, 1.0, v%d" % (tt + 1, tt + 1))
        c("v_rcp_f32 v%d, v%d" % (tt + 1, tt + 1))
        c("v_mul_f32 v%d, v%d, v%d" % (r, r, tt + 1))
        c("v_cvt_pk_bf16_f32 v%d, v%d, v%d" % (r, r, r))
        c("v_and_b32 v%d, v%d, v%d" % (r, r, V_HALF))
        chains.append(c.l)
    chains[1].append("v_cndmask_b32_e64 v34, 0, v34, s[%d:%d]" % (S_MGP, S_MGP + 1))
    A("s_waitcnt lgkmcnt(1)")
    A("s_barrier")
    weave(A, chains[0], chains[1])
    build_b(A, BX, 34, 0)
    A("v_mov_b32 v43, v30")
    build_b(A, B0, 30, 0)
    fst(A, 2, 2)
    proj576(A, w2_reg, S_YP2, ext=True, bops=[None] + [cap_build(B0 + 4 * mu, 43, mu) for mu in (1, 2, 3)])

class WLoader:
    VOFF = 26; TT = (27, 28)
    def __init__(self, A):
        self.A = A; self.list = []; self.pos = 0; self.cur_srd = None
    def add(self, mat, kind, sbase, off, dest):
        self.list.append((mat, kind, sbase, off, dest))
    def voff(self, kind):
        A = self.A; v = self.VOFF; t0, t1 = self.TT
        if kind == "L":
            A("v_bfe_u32 v%d, v0, 2, 2" % t0)
            A("v_lshlrev_b32 v%d, 3, v%d" % (t0, t0))
            A("v_lshrrev_b32 v%d, 4, v0" % t1)
            A("v_lshl_add_u32 v%d, v%d, 1, v%d" % (t0, t1, t0))
            A("v_bfe_u32 v%d, v0, 1, 1" % t1)
            A("v_add_u32 v%d, v%d, v%d" % (t0, t0, t1))
            A("v_mul_u32_u24 v%d, 9216, v%d" % (v, t0))
            A("v_and_b32 v%d, 1, v0" % t1)
            A("v_lshl_add_u32 v%d, v%d, 4, v%d" % (v, t1, v))
        else:
            A("v_lshrrev_b32 v%d, 4, v0" % t0)
            A("v_bfe_u32 v%d, v0, 3, 1" % t1)
            A("v_lshl_add_u32 v%d, v%d, 1, v%d" % (t0, t0, t1))
            A("v_mul_u32_u24 v%d, %d, v%d" % (v, kind, t0))
            A("v_and_b32 v%d, 7, v0" % t1)
            A("v_lshl_add_u32 v%d, v%d, 4, v%d" % (v, t1, v))
    def issue(self, n):
        A = self.A
        sizes = {"wq": (S_P + 2, 4718592), "wo": (S_P + 4, 4718592), "w1": (S_P + 6, 5308416), "w2": (S_P + 10, 5308416)}
        curk = None
        for _ in range(n):
            if self.pos >= len(self.list): return
            mat, kind, sbase, off, dest = self.list[self.pos]; self.pos += 1
            if mat != self.cur_srd:
                srd(A, S_SRD, *sizes[mat]); self.cur_srd = mat
            if kind != curk:
                self.voff(kind); curk = kind
            if dest[0] == "r":
                A("s_add_u32 s%d, s%d, 0x%x" % (S_T[8], sbase, off))
                A("buffer_load_dwordx4 %s, v%d, s[%d:%d], s%d offen nt" % (vr(dest[1], 4), self.VOFF, S_SRD, S_SRD + 3, S_T[8]))
            else:
                A("s_add_u32 m0, s%d, 0x%x" % (dest[1], dest[2]))
                A("s_add_u32 s%d, s%d, 0x%x" % (S_T[8], sbase, off))
                A("buffer_load_dwordx4 v%d, s[%d:%d], s%d offen%s lds" % (self.VOFF, S_SRD, S_SRD + 3, S_T[8], "" if kind == "L" else " nt"))
    def left(self): return len(self.list) - self.pos


def chain_stamp(A, cfg, k):
    if not cfg.get("stamps"): return
    A("s_memrealtime s[%d:%d]" % (S_EX, S_EX + 1))
    A("s_waitcnt lgkmcnt(0)")
    A("s_mov_b32 s%d, s%d" % (S_CST + k, S_EX))

def cyc_stamp(A, k):
    cfg = FINE["cfg"]
    if cfg and cfg.get("fine") == 4:
        A("s_memtime s[%d:%d]" % (S_EX, S_EX + 1))
        A("s_waitcnt lgkmcnt(0)")
        A("s_mov_b32 s%d, s%d" % (S_CST + k, S_EX))

def stamp_store(A, base, shift, nst, first, extra_off=None):
    A("s_lshl_b32 s%d, s2, 2" % S_T[0])
    A("s_add_u32 s%d, s%d, s%d" % (S_T[0], S_T[0], S_W))
    A("s_lshl_b32 s%d, s%d, %d" % (S_T[0], S_T[0], shift))
    if extra_off: extra_off()
    A("s_add_u32 s%d, s%d, 0x%x" % (S_T[0], S_T[0], base))
    A("v_mov_b32 v30, 0")
    for k in range(nst):
        A("v_mov_b32 v31, s%d" % (first + k))
        A("buffer_store_dword v31, v30, s[%d:%d], s%d offen offset:%d" % (S_WS, S_WS + 3, S_T[0], 4 * k))
        A("s_nop 1")

def gen_chain(A, cfg):
    A.comment("chain setup")
    A("s_lshr_b32 s%d, s2, 3" % S_C)
    for i, off in enumerate((0, 24, 32, 48, 56, 64, 72, 80)):
        A("s_load_dwordx2 s[%d:%d], s[0:1], %d" % (S_P + 2 * i, S_P + 2 * i + 1, off))
    def m64(s, v):
        A("s_mov_b32 s%d, 0x%x" % (s, v & 0xffffffff)); A("s_mov_b32 s%d, 0x%x" % (s + 1, (v >> 32) & 0xffffffff))
    t0, t1, t2, t3 = 30, 31, 32, 33
    A("v_bfe_u32 v%d, v0, 2, 2" % t0)
    A("v_lshlrev_b32 v%d, 3, v%d" % (V_ROW8, t0))
    A("v_lshrrev_b32 v%d, 4, v0" % t0)
    A("v_lshl_add_u32 v%d, v%d, 1, v%d" % (V_ROW8, t0, V_ROW8))
    A("v_bfe_u32 v%d, v0, 1, 1" % t0)
    A("v_add_u32 v%d, v%d, v%d" % (V_ROW8, V_ROW8, t0))
    A("v_lshlrev_b32 v%d, 3, v%d" % (V_ROW8, V_ROW8))
    SQ, SO, S1, S2, S2X, LQ, L1L = S_T[9:16]
    L2X = 78; S1L = 96
    A("s_mul_i32 s%d, s%d, %d" % (SQ, S_W, 144 * 8192))
    A("s_lshl_b32 s%d, s%d, 8" % (S_T[0], S_C))
    A("s_add_u32 s%d, s%d, s%d" % (SQ, SQ, S_T[0]))
    A("s_mul_i32 s%d, s%d, 28672" % (LQ, S_W))
    A("s_add_u32 s%d, s%d, %d" % (LQ, LQ, L_WQ))
    A("s_waitcnt lgkmcnt(0)")
    srd(A, S_OUT, S_P, 2304)
    FL = {1: 30, 0: 35}; YL = {1: 10, 0: 15}
    A("v_lshlrev_b32 v20, 2, v0")
    A("v_lshrrev_b32 v21, 2, v%d" % V_ROW8)
    A("s_mul_i32 s%d, s%d, 288" % (S_T[1], S_W))
    for b in (1, 0):
        for k in range(5):
            A("buffer_load_dword v%d, v20, s[%d:%d], 0 offen offset:%d" % (FL[b] + k, S_OUT, S_OUT + 3, (b ^ cfg.get("bswap", 0)) * 1152 + 256 * k))
        for k in range(5):
            A("buffer_load_ushort v%d, v21, s[%d:%d], s%d offen offset:%d" % (YL[b] + k, S_OUT, S_OUT + 3, S_T[1], (b ^ cfg.get("bswap", 0)) * 1152 + 64 * k))
    WL = WLoader(A)
    for beta in range(18):
        for cb in range(2):
            WL.add("wq", 8192, SQ, beta * 65536 + cb * 128, ("l", LQ, (2 * beta + cb) * 1024) if beta < 14 else ("r", wq_reg(beta, cb)))
    for mu in range(4):
        for cb in range(9):
            WL.add("wo", 1152, SO, mu * 8 * 1152 + cb * 128, ("r", wo_reg(mu, cb)))
    for beta in range(18):
        for cb in range(2):
            WL.add("w1", 9216, S1, beta * 8 * 9216 + cb * 128, ("r", w1_reg(beta, cb)))
    for i in range(5):
        WL.add("w1", "L", S1L, i * 32 * 9216, ("l", L1L, i * 1024))
    for mu in range(4):
        for cb in range(9):
            WL.add("w2", 1152, S2, mu * 8 * 1152 + cb * 128, ("r", w2_reg(mu, cb)))
    for j in range(4):
        WL.add("w2", 1152, S2X, j * 128, ("l", L2X, j * 1024))
    ist = lambda k: chain_stamp(A, cfg, 8 + k)
    ist(0)
    WL.issue(36)
    npf = 0
    if cfg.get("pf_chain"):
        npf = cfg["code_prefetch"](A, "L_chain", "L_end", cfg["pf_chain"], 508, 20)
    m64(S_MG1, 0xcccccccccccccccc); m64(S_MODD, 0xaaaaaaaaaaaaaaaa); m64(S_ML36, (1 << 36) - 1)
    m64(S_MMU2, 0x00ff00ff00ff00ff); m64(S_M7, 0x8080808080808080); m64(S_ML32, 0xffffffff)
    A("s_and_b32 s%d, s%d, 1" % (S_T[0], S_W))
    A("s_cmp_eq_u32 s%d, 1" % S_T[0])
    A("s_mov_b32 s%d, 0x33333333" % S_MGP)
    A("s_cselect_b32 s%d, 0xcccccccc, s%d" % (S_MGP, S_MGP))
    A("s_mov_b32 s%d, s%d" % (S_MGP + 1, S_MGP))
    A("s_mov_b32 s%d, 0" % S_FAST)
    A("s_mov_b32 s%d, s%d" % (S_W0, S_W))
    A("s_mul_i32 s%d, s%d, %d" % (SO, S_C, 128 * 1152))
    A("s_mul_i32 s%d, s%d, %d" % (S_T[0], S_W, 32 * 1152))
    A("s_add_u32 s%d, s%d, s%d" % (SO, SO, S_T[0]))
    A("s_mul_i32 s%d, s%d, %d" % (S1, S_W, 144 * 9216))
    A("s_lshl_b32 s%d, s%d, 5" % (S_T[1], S_C))
    A("s_add_u32 s%d, s%d, s%d" % (S1L, S1, S_T[1]))
    A("s_add_u32 s%d, s%d, 8192" % (S1L, S1L))
    A("s_lshl_b32 s%d, s%d, 8" % (S_T[1], S_C))
    A("s_add_u32 s%d, s%d, s%d" % (S1, S1, S_T[1]))
    A("s_mul_i32 s%d, s%d, %d" % (S2, S_C, 128 * 1152))
    A("s_lshr_b32 s%d, s%d, 1" % (S_T[1], S_W))
    A("s_mul_i32 s%d, s%d, %d" % (S2X, S_T[1], 8 * 1152))
    A("s_mul_i32 s%d, s%d, %d" % (S_T[2], S_C, 16 * 1152))
    A("s_add_u32 s%d, s%d, s%d" % (S2X, S2X, S_T[2]))
    A("s_add_u32 s%d, s%d, %d" % (S2X, S2X, 4096 * 1152))
    A("s_add_u32 s%d, s%d, s%d" % (S2, S2, S_T[0]))
    A("s_mul_i32 s%d, s%d, 5120" % (L1L, S_W))
    A("s_add_u32 s%d, s%d, %d" % (L1L, L1L, L_W1L))
    A("s_mul_i32 s%d, s%d, 9216" % (L2X, S_T[1]))
    A("s_add_u32 s%d, s%d, %d" % (L2X, L2X, L_W2X))
    A("s_and_b32 s%d, s%d, 1" % (S_T[1], S_W))
    A("s_mul_i32 s%d, s%d, %d" % (S_T[2], S_T[1], 5 * 1024))
    A("s_add_u32 s%d, s%d, s%d" % (L2X, L2X, S_T[2]))
    A("s_mul_i32 s%d, s%d, %d" % (S_T[2], S_T[1], 5 * 128))
    A("s_add_u32 s%d, s%d, s%d" % (S2X, S2X, S_T[2]))
    A("v_and_b32 v22, 1, v0")
    A("v_lshlrev_b32 v22, 4, v22")
    A("v_mov_b32 v23, 0xffff")
    A("v_lshlrev_b32 v%d, v22, v23" % V_HALF)
    A("v_bfe_u32 v22, v0, 4, 1")
    A("v_lshlrev_b32 v%d, 5, v22" % V_N8)
    A("v_bfe_u32 v22, v0, 1, 1")
    A("v_lshl_add_u32 v%d, v22, 4, v%d" % (V_N8, V_N8))
    A("v_lshrrev_b32 v22, 5, v0")
    A("v_lshl_add_u32 v%d, v22, 3, v%d" % (V_N8, V_N8))
    A("v_bfe_u32 v22, v0, 2, 2")
    A("v_lshl_add_u32 v%d, v22, 1, v%d" % (V_N8, V_N8))
    A("v_and_b32 v22, 1, v0")
    A("v_add_u32 v%d, v%d, v22" % (V_N8, V_N8))
    A("v_lshlrev_b32 v%d, 3, v%d" % (V_N8, V_N8))
    A("s_mov_b32 s%d, s%d" % (S_EPOCH, S_TAG))
    A("s_mul_i32 s%d, s%d, 0x%x" % (S_TAG, S_TAG, HASH_MUL))
    A("s_add_u32 s%d, s%d, 0x%x" % (S_TAG, S_TAG, HASH_ADD))
    A("s_getreg_b32 s%d, hwreg(HW_REG_XCC_ID)" % S_T[0])
    A("s_and_b32 s%d, s%d, 15" % (S_T[0], S_T[0]))
    A("s_mov_b32 s%d, s%d" % (S_XCC, S_T[0]))
    A("v_mov_b32 v22, s%d" % S_T[0])
    A("v_mov_b32 v23, s%d" % S_TAG)
    A("s_lshl_b32 s%d, s%d, 3" % (S_T[0], S_C))
    A("s_add_u32 s%d, s%d, 0x%x" % (S_T[0], S_T[0], OFF_XC))
    A("v_mov_b32 v24, 0")
    A("buffer_store_dwordx2 v[22:23], v24, s[%d:%d], s%d offen sc1" % (S_WS, S_WS + 3, S_T[0]))
    A("s_waitcnt vmcnt(%d)" % (36 + npf + 1))
    ist(1)
    YKB = {1: YK, 0: [5, 6, 7, 8, 9]}
    for b in (1, 0):
        f = FL[b]; sx, sq, t = 40, 41, 47
        A("v_cndmask_b32_e64 v%d, 0, v%d, s[%d:%d]" % (f + 4, f + 4, S_ML32, S_ML32 + 1))
        for k in range(5):
            A("v_lshlrev_b32 v%d, 16, v%d" % (t, f + k))
            A("v_and_b32 v%d, 0xffff0000, v%d" % (f + k, f + k))
            if k == 0:
                A("v_add_f32 v%d, v%d, v%d" % (sx, t, f + k))
                A("v_mul_f32 v%d, v%d, v%d" % (sq, t, t))
            else:
                A("v_add_f32 v%d, v%d, v%d" % (sx, sx, t))
                A("v_fmac_f32 v%d, v%d, v%d" % (sq, t, t))
                A("v_add_f32 v%d, v%d, v%d" % (sx, sx, f + k))
            A("v_fmac_f32 v%d, v%d, v%d" % (sq, f + k, f + k))
        A("v_add_f32_dpp v%d, v%d, v%d %s" % (sx, sx, sx, qp([1, 0, 3, 2])))
        A("v_add_f32_dpp v%d, v%d, v%d %s" % (sq, sq, sq, qp([1, 0, 3, 2])))
        A("v_cndmask_b32_e64 v%d, v%d, v%d, s[%d:%d]" % (sx, sx, sq, S_MODD, S_MODD + 1))
        parity_allreduce(A, sx, t)
        for k in range(5):
            A("v_lshlrev_b32 v%d, 16, v%d" % (YL[b] + k, YL[b] + k))
        ln_tail(A, sx, [YL[b] + k for k in range(5)], YKB[b], 41, 47)
    WL.issue(20)
    zero_b(A, B0, B0 + 8)
    A("s_waitcnt vmcnt(%d)" % (20 + npf + 1))
    ist(2)
    for b in (1, 0):
        A("s_lshl_b32 s%d, s%d, 9" % (S_QO, S_C))
        A("s_add_u32 s%d, s%d, 0x%x" % (S_QO, S_QO, OFF_Q + b * 16384))
        qproj(A, S_QO, YKB[b], pre_barrier=(b == 0))
        ist(3 if b == 1 else 4)
        if b == 1:
            A("s_waitcnt vmcnt(20)")
            WL.issue(30)
    srd(A, S_OUT, S_P, 2304)
    A("v_lshrrev_b32 v%d, 1, v0" % t0)
    A("s_mul_i32 s%d, s%d, 18" % (S_T[1], S_C))
    A("v_add_u32 v%d, s%d, v%d" % (t0, S_T[1], t0))
    A("v_lshlrev_b32 v%d, 1, v%d" % (t0, t0))
    sw = cfg.get("bswap", 0)
    A("buffer_load_ushort v%d, v%d, s[%d:%d], 0 offen offset:1152" % (V_XO if sw else V_X, t0, S_OUT, S_OUT + 3))
    A("buffer_load_ushort v%d, v%d, s[%d:%d], 0 offen" % (V_X if sw else V_XO, t0, S_OUT, S_OUT + 3))
    srd(A, S_SRD, S_P + 12, 1152)
    A("buffer_load_ushort v%d, v%d, s[%d:%d], 0 offen" % (V_B2, t0, S_SRD, S_SRD + 3))
    A("v_lshrrev_b32 v%d, 2, v%d" % (t1, V_ROW8))
    A("s_lshl_b32 s%d, s%d, 8" % (S_T[1], S_C))
    A("s_lshl_b32 s%d, s%d, 6" % (S_T[2], S_W))
    A("s_add_u32 s%d, s%d, s%d" % (S_T[1], S_T[1], S_T[2]))
    A("s_lshl_b32 s%d, s%d, 5" % (S_T[2], S_C))
    A("s_lshr_b32 s%d, s%d, 1" % (S_T[3], S_W))
    A("s_lshl_b32 s%d, s%d, 4" % (S_T[3], S_T[3]))
    A("s_add_u32 s%d, s%d, s%d" % (S_T[2], S_T[2], S_T[3]))
    A("s_add_u32 s%d, s%d, 8192" % (S_T[2], S_T[2]))
    srd(A, S_SRD, S_P + 8, 9216)
    A("buffer_load_ushort v%d, v%d, s[%d:%d], s%d offen" % (V_B1M, t1, S_SRD, S_SRD + 3, S_T[1]))
    A("buffer_load_ushort v%d, v%d, s[%d:%d], s%d offen" % (V_B1E, t1, S_SRD, S_SRD + 3, S_T[2]))
    A("v_lshlrev_b32 v%d, 2, v%d" % (V_PX, t0))
    A("v_mov_b32 v%d, 0x%x" % (t2, OOB))
    A("v_cndmask_b32_e64 v%d, v%d, v%d, s[%d:%d]" % (V_PX, V_PX, t2, S_MODD, S_MODD + 1))
    A("v_cndmask_b32_e64 v%d, v%d, v%d, s[%d:%d]" % (V_PX, t2, V_PX, S_ML36, S_ML36 + 1))
    A("v_and_b32 v%d, 1, v0" % t3)
    A("s_lshl_b32 s%d, s%d, 1" % (S_T[1], S_C))
    A("v_add_u32 v%d, s%d, v%d" % (t3, S_T[1], t3))
    A("v_lshlrev_b32 v%d, 3, v%d" % (t3, t3))
    A("v_add_u32 v%d, 4608, v%d" % (t3, t3))
    A("v_and_b32 v%d, 62, v0" % t2)
    A("v_cmp_eq_u32 vcc, 40, v%d" % t2)
    A("v_cndmask_b32 v%d, v%d, v%d, vcc" % (V_PX, V_PX, t3))
    def xc_issue():
        A("v_and_b32 v34, 31, v0")
        A("v_lshlrev_b32 v34, 3, v34")
        A("s_mov_b32 s%d, 0x%x" % (S_T[0], OFF_XC))
        A("buffer_load_dwordx2 v[36:37], v34, s[%d:%d], s%d offen sc1" % (S_WS, S_WS + 3, S_T[0]))
    if not cfg.get("dry", 0): xc_issue()
    if cfg.get("pretouch", 1):
        A("s_lshl_b32 s%d, s%d, 2" % (S_T[0], S_C))
        A("s_add_u32 s%d, s%d, s%d" % (S_T[0], S_T[0], S_W))
        A("s_mul_i32 s%d, s%d, 2560" % (S_T[1], S_T[0]))
        A("s_add_u32 s%d, s%d, 0x%x" % (S_T[1], S_T[1], OFF_YP))
        A("v_lshlrev_b32 v35, 4, v0")
        for i in range(3):
            A("buffer_load_dwordx4 v[38:41], v35, s[%d:%d], s%d offen offset:%d" % (S_WS, S_WS + 3, S_T[1], min(1024 * i, 1536)))
        A("s_and_b32 s%d, s%d, 15" % (S_T[0], S_T[0]))
        A("s_lshl_b32 s%d, s%d, 10" % (S_T[0], S_T[0]))
        A("s_add_u32 s%d, s%d, 0x%x" % (S_T[0], S_T[0], OFF_X))
        A("buffer_load_dwordx4 v[38:41], v35, s[%d:%d], s%d offen" % (S_WS, S_WS + 3, S_T[0]))
    WL.cur_srd = None
    ist(5)
    win = cfg.get("w_win", 60)
    stepn = 30 if win >= 60 else 8
    while WL.left() > 0:
        A("s_waitcnt vmcnt(%d)" % (win - stepn))
        WL.issue(min(stepn, WL.left()))
    assert WL.cur_srd == "w2"
    sk = newlab("w2x")
    A("s_waitcnt vmcnt(40)")
    WL.voff(1152)
    A("s_and_b32 s%d, s%d, 1" % (S_T[0], S_W))
    A("s_cmp_eq_u32 s%d, 1" % S_T[0])
    A("s_cbranch_scc1 %s" % sk)
    A("s_add_u32 m0, s%d, 0x%x" % (L2X, 4 * 1024))
    A("s_add_u32 s%d, s%d, 0x%x" % (S_T[8], S2X, 4 * 128))
    A("buffer_load_dwordx4 v%d, s[%d:%d], s%d offen nt lds" % (WL.VOFF, S_SRD, S_SRD + 3, S_T[8]))
    A.label(sk)
    dry = cfg.get("dry", 0)
    def post():
        ist(6)
        if dry: xc_issue()
        A("s_waitcnt vmcnt(0)")
        for r in (V_X, V_XO, V_B1M, V_B2, V_B1E):
            A("v_lshlrev_b32 v%d, 16, v%d" % (r, r))
        srd(A, S_OUT, S_P + 14, 2304)
        if cfg.get("tlbwarm", 1) >= 2:
            A("v_mov_b32 v38, 0")
            A("buffer_load_dword v39, v38, s[%d:%d], 0 offen" % (S_OUT, S_OUT + 3))
            A("s_mov_b32 s%d, 0x280000" % S_T[0])
            A("buffer_load_dword v39, v38, s[%d:%d], s%d offen sc1" % (S_WS, S_WS + 3, S_T[0]))
        okx = newlab("xok"); rtx = newlab("xrt")
        A("v_cmp_ne_u32 vcc, s%d, v37" % S_TAG)
        A.branch("s_cbranch_vccz %s" % okx)
        A("s_mov_b32 s%d, 0x2000" % S_SPIN)
        A.label(rtx)
        A("s_sleep 2")
        xc_issue()
        A("s_waitcnt vmcnt(0)")
        A("v_cmp_ne_u32 vcc, s%d, v37" % S_TAG)
        A("s_sub_u32 s%d, s%d, 1" % (S_SPIN, S_SPIN))
        A.branch("s_cbranch_scc1 %s" % okx)
        A.branch("s_cbranch_vccnz %s" % rtx)
        A.label(okx)
        A("v_cmp_ne_u32 vcc, s%d, v36" % S_XCC)
        A("s_cmp_eq_u64 vcc, 0")
        A("s_cselect_b32 s%d, %d, 0" % (S_FAST, 0 if cfg.get("force_slow") else 1))
        ist(7)
        if cfg.get("stamps"):
            A("s_lshl_b32 s%d, s%d, 8" % (S_CST + 8, S_XCC))
            A("s_or_b32 s%d, s%d, s%d" % (S_CST + 8, S_CST + 8, S_FAST))
            stamp_store(A, 0x780000, 5, 8, S_CST + 8)
        if cfg.get("dbgtime"):
            A("s_memrealtime s[%d:%d]" % (S_EX, S_EX + 1))
            A("s_waitcnt lgkmcnt(0)")
            A("s_mov_b32 s%d, s%d" % (S_DBG, S_EX))
    if not dry: post()
    A("s_mov_b32 s%d, 0x%x" % (S_YP1, OFF_YP))
    A("s_mov_b32 s%d, 0x%x" % (S_YP2, OFF_YP + YP_STRIDE))
    A("s_mov_b32 s%d, 0x%x" % (S_X1, OFF_X))
    A("s_mov_b32 s%d, 0x%x" % (S_X2, OFF_X + X_STRIDE))
    if dry:
        A("s_mov_b32 s%d, 1" % S_STEP)
        A("s_mov_b32 s%d, 2" % S_FAST)
        A("s_mov_b32 s%d, 1" % S_W0)
        DRY["on"] = True
    else:
        A("s_mov_b32 s%d, 2" % S_STEP)
    A.label("L_ch_loop")
    A("s_lshr_b32 s%d, 0xd, s%d" % (S_B, S_STEP))
    A("s_and_b32 s%d, s%d, 1" % (S_B, S_B))
    A("s_lshr_b32 s%d, 0x28, s%d" % (S_L, S_STEP))
    A("s_and_b32 s%d, s%d, 1" % (S_L, S_L))
    A("s_lshl_b32 s%d, s%d, 1" % (S_T[0], S_L))
    A("s_add_u32 s%d, s%d, s%d" % (S_T[0], S_T[0], S_B))
    A("s_lshl_b32 s%d, s%d, 5" % (S_PART, S_T[0]))
    A("s_add_u32 s%d, s%d, s%d" % (S_PART, S_PART, S_C))
    A("s_lshl_b32 s%d, s%d, 14" % (S_PART, S_PART))
    A("s_add_u32 s%d, s%d, 0x%x" % (S_PART, S_PART, OFF_PART))
    A("s_add_u32 s%d, s%d, s%d" % (S_TL, S_TAG, S_STEP))
    A("s_lshl_b32 s%d, s%d, 14" % (S_QO, S_B))
    A("s_lshl_b32 s%d, s%d, 9" % (S_T[1], S_C))
    A("s_add_u32 s%d, s%d, s%d" % (S_QO, S_QO, S_T[1]))
    A("s_add_u32 s%d, s%d, 0x%x" % (S_QO, S_QO, OFF_Q + 2 * 16384))
    FINE["cfg"] = cfg
    st = (lambda k: None) if cfg.get("fine") else (lambda k: chain_stamp(A, cfg, k))
    if cfg.get("fine") == 4:
        pass
    st(0); fst(A, 0); fst(A, 0, 3)
    oproj(A)
    st(1); fst(A, 1)
    red(A, S_YP1, False, lambda A: pubx(A, S_X1))
    st(2)
    gath_ln(A, S_X1)
    st(3); fst(A, 6); fst(A, 0, 2); fst(A, 0, 4); cyc_stamp(A, 1)
    mlp(A)
    st(4); fst(A, 7); fst(A, 4, 2); fst(A, 2, 4); cyc_stamp(A, 3)
    def tail2(A):
        o = newlab("t2out"); d = newlab("t2done")
        A("s_cmp_eq_u32 s%d, 1" % S_L)
        A.branch("s_cbranch_scc1 %s" % o)
        pubx(A, S_X2)
        A.branch("s_branch %s" % d)
        A.label(o)
        if cfg.get("perturb"):
            A("s_cmp_eq_u32 s%d, 0" % S_C)
            A("s_cselect_b32 s%d, 0x%x, 0" % (S_T[0], f2u(float(cfg["perturb"]) / 1000.0)))
            A("v_add_f32 v30, s%d, v%d" % (S_T[0], V_X))
            A("v_lshrrev_b32 v30, 16, v30")
        else:
            A("v_lshrrev_b32 v30, 16, v%d" % V_X)
        A("v_lshrrev_b32 v31, 2, v%d" % V_PX)
        if cfg.get("bswap", 0):
            A("s_xor_b32 s%d, s%d, 1" % (S_T[0], S_B))
            A("s_mul_i32 s%d, s%d, 1152" % (S_T[0], S_T[0]))
        else:
            A("s_mul_i32 s%d, s%d, 1152" % (S_T[0], S_B))
        A("s_mov_b32 s%d, 0x55555555" % S_EX)
        A("s_mov_b32 s%d, 0x5" % (S_EX + 1))
        A("s_mov_b64 exec, s[%d:%d]" % (S_EX, S_EX + 1))
        A("buffer_store_short v30, v31, s[%d:%d], s%d offen" % (S_OUT, S_OUT + 3, S_T[0]))
        A("s_mov_b64 exec, -1")
        A.label(d)
    red(A, S_YP2, True, tail2)
    st(5)
    A("s_cmp_eq_u32 s%d, 1" % S_L)
    A.branch("s_cbranch_scc1 L_ch_next")
    gath_ln(A, S_X2)
    st(6)
    qproj(A, S_QO, pre_barrier=False)
    st(7); fst(A, 7, 2)
    A.label("L_ch_next")
    A("s_cmp_eq_u32 s%d, 3" % S_STEP)
    A("s_cbranch_scc0 L_ch_noswap")
    A("v_swap_b32 v%d, v%d" % (V_X, V_XO))
    A("s_or_b32 s%d, s%d, s%d" % (S_T[0], S_C, S_W))
    A("s_cmp_lg_u32 s%d, 0" % S_T[0])
    A("s_cbranch_scc1 L_ch_noswap")
    A("s_add_u32 s%d, s%d, 1" % (S_T[0], S_EPOCH))
    A("v_mov_b32 v30, s%d" % S_T[0])
    A("v_mov_b32 v31, 0")
    A("s_mov_b64 exec, 1")
    A("buffer_store_dword v30, v31, s[%d:%d], 0 offen" % (S_WS, S_WS + 3))
    A("s_mov_b64 exec, -1")
    A.label("L_ch_noswap")
    if dry:
        DRY["on"] = False
        A("s_cmp_eq_u32 s%d, 1" % S_STEP)
        A.branch("s_cbranch_scc0 L_ch_notdry")
        post()
        A("s_mov_b32 s%d, s%d" % (S_W0, S_W))
        A("s_mov_b32 s%d, 2" % S_STEP)
        A.branch("s_branch L_ch_loop")
        A.label("L_ch_notdry")
    if cfg.get("stamps"):
        def eo():
            A("s_sub_u32 s%d, s%d, 2" % (S_T[1], S_STEP))
            A("s_lshl_b32 s%d, s%d, 5" % (S_T[1], S_T[1]))
            A("s_add_u32 s%d, s%d, s%d" % (S_T[0], S_T[0], S_T[1]))
        stamp_store(A, 0x700000, 7, 8, S_CST, eo)
    if cfg.get("dbgtime"):
        A("s_memrealtime s[%d:%d]" % (S_EX, S_EX + 1))
        A("s_waitcnt lgkmcnt(0)")
        for k in range(2, 6):
            A("s_cmp_eq_u32 s%d, %d" % (S_STEP, k))
            A("s_cselect_b32 s%d, s%d, s%d" % (S_DBG + k - 1, S_EX, S_DBG + k - 1))
    A("s_add_u32 s%d, s%d, 1" % (S_STEP, S_STEP))
    A("s_cmp_lt_u32 s%d, 6" % S_STEP)
    A.branch("s_cbranch_scc1 L_ch_loop")
    A("s_or_b32 s%d, s%d, s%d" % (S_T[0], S_C, S_W))
    A("s_cmp_lg_u32 s%d, 0" % S_T[0])
    A.branch("s_cbranch_scc1 L_end")
    if cfg.get("dbgtime"):
        A("s_memrealtime s[%d:%d]" % (S_EX, S_EX + 1))
        A("s_load_dwordx2 s[%d:%d], s[0:1], 88" % (S_T[2], S_T[3]))
        A("s_waitcnt lgkmcnt(0)")
        srd(A, S_SRD, S_T[2], 256)
        A("s_sub_u32 s%d, s%d, s98" % (S_T[4], S_EX))
        A("v_mov_b32 v30, s%d" % S_T[4])
        A("v_mov_b32 v31, 0")
        A("buffer_store_dword v30, v31, s[%d:%d], 0 offen" % (S_SRD, S_SRD + 3))
        for k in range(6):
            A("s_sub_u32 s%d, s%d, s98" % (S_T[4], S_DBG + k))
            A("v_mov_b32 v30, s%d" % S_T[4])
            A("buffer_store_dword v30, v31, s[%d:%d], 0 offen offset:%d" % (S_SRD, S_SRD + 3, 4 * (k + 1)))
            A("s_nop 1")
    pass
```

```python
import sys
sys.path.insert(0, "gen")
from emit import *
from layout import *
import attn, chain2 as chain

HEADER = """; Kernarg layout (104 bytes, ptrs only): A_x, A_k_cache, A_v_cache, A_wq, A_wo, B_x, B_w1, B_b1, B_w2, B_b2, d_out, d_debug, d_ws
; Generated by an own generator script (gen/main.py, attn.py, chain2.py, emit.py).
;
; One persistent launch, 256 workgroups x 4 waves (one per SIMD, 512 registers each, 160 KiB LDS).
;  * workgroups with id mod 8 != 0 (224): attention. 7 workgroups per head; each wave streams K/V tiles of 16 keys straight into
;    registers / LDS (quad-contiguous loads, MFMA 16x16x32 with masked B operands), keeps most of batch 1 on chip
;    between the two layers, then most of batch 0.  Partial (max, sum, o[128]) results are published as tagged 8-byte granules.
;  * workgroups with id mod 8 == 0 (32): projections / MLP / layernorm.  All weights stay in registers + LDS; the
;    all-reduces between them go through tagged granules (plain stores when all 32 sit on one die, write-through otherwise).
;  * hand-offs are tagged with a value derived from an epoch word in d_ws, so stale data of earlier launches never matches.
; @launch grid=(256,1,1) block=(256,1,1) lds=163840
.amdgcn_target "amdgcn-amd-amdhsa--gfx950"
.text
.globl %(kn)s_kernel
.p2align 8
.type %(kn)s_kernel,@function
%(kn)s_kernel:
""" % {"kn": KN}
FOOTER = """L_end:
  s_endpgm
.section .rodata,"a"
.p2align 6
.amdhsa_kernel %(kn)s_kernel
  .amdhsa_next_free_vgpr 512
  .amdhsa_next_free_sgpr 102
  .amdhsa_accum_offset 256
  .amdhsa_group_segment_fixed_size 0
  .amdhsa_kernarg_size 104
  .amdhsa_user_sgpr_count 2
  .amdhsa_user_sgpr_kernarg_segment_ptr 1
  .amdhsa_system_sgpr_workgroup_id_x 1
.end_amdhsa_kernel
""" % {"kn": KN}

def prologue(A, cfg={}):
    if cfg.get("stamps") or cfg.get("dbgtime"):
        A("s_memrealtime s[90:91]")
    A("s_cmp_ge_u32 s2, 256")
    A("s_cbranch_scc1 L_end")
    A("s_load_dwordx4 s[8:11], s[0:1], 8")
    A("s_load_dwordx2 s[4:5], s[0:1], 96")
    A("v_lshrrev_b32 v1, 6, v0")
    A("v_and_b32 v0, 63, v0")
    A("v_readfirstlane_b32 s17, v1")
    A("s_waitcnt lgkmcnt(0)")
    if cfg.get("stamps"):
        A("s_mov_b32 s%d, s90" % (64 + cfg["stamps"] - 1))
    if cfg.get("dbgtime"):
        A("s_mov_b32 s98, s90")
        for k in range(6): A("s_mov_b32 s%d, s90" % (80 + k))
    A("s_and_b32 s5, s5, 0xffff")
    A("s_load_dword s16, s[4:5], 0")
    A("s_mov_b32 s12, s10")
    A("s_and_b32 s13, s11, 0xffff")
    A("s_mov_b32 s14, 0x08000000")
    A("s_mov_b32 s15, 0x00020000")
    A("s_and_b32 s9, s9, 0xffff")
    A("s_mov_b32 s10, 0x08000000")
    A("s_mov_b32 s11, 0x00020000")
    A("s_mov_b32 s6, 0x%x" % WS_SIZE)
    A("s_mov_b32 s7, 0x00020000")
    A("s_and_b32 s3, s2, 7")
    A("s_cmp_eq_u32 s3, 0")
    A.branch("s_cbranch_scc1 L_chain")
    A.lines.append("L_attn:")

def code_prefetch(A, start, end, nbytes, dst, vtmp, wreg=17):
    A("s_getpc_b64 s[92:93]")
    lab = "L_pc_%s" % start
    A.lines.append(lab + ":")
    A("v_lshlrev_b32 v%d, 4, v0" % vtmp)
    A("s_lshl_b32 s94, s%d, 10" % wreg)
    A("v_add_u32 v%d, s94, v%d" % (vtmp, vtmp))
    n = (nbytes + 4095) // 4096
    for i in range(n):
        A("v_min_u32 v%d, %s-%s-16, v%d" % (vtmp + 1, end, lab, vtmp))
        A("global_load_dwordx4 %s, v%d, s[92:93]" % (vr(dst, 4), vtmp + 1))
        A("v_add_u32 v%d, 0x1000, v%d" % (vtmp, vtmp))
    return n

def build(cfg):
    A = Asm()
    prologue(A, cfg)
    cfg["code_prefetch"] = code_prefetch
    if cfg.get("noattn"):
        A.branch("s_branch L_end")
    S = attn.gen_attn(A, cfg)
    A.label("L_chain")
    cfg["code_prefetch"] = code_prefetch
    if cfg.get("chain"):
        cfg["chain"](A, cfg)
    A.branch("s_branch L_end")
    return HEADER + A.text() + FOOTER, A, S

if __name__ == "__main__":
    cfg = dict(nlds=attn.NLDS, nreg=112, cap0=6, cap1=8, dstep=2, w_win=24, npre=120, sched=attn.sched_pipe, la=3, stamps=12, ring=8, bgk=4, bgv=4, cap4=12, cap7=16, gwait=1, gw_early=24, mimic=1, pref=0, chain=chain.gen_chain, pf_attn=28672, pf_chain=20480, l2k0=13, l2b1=1, gil=1, rotsub=1, psleep=4)
    for a in sys.argv[2:]:
        k, v = a.split("=")
        cfg[k] = int(v) if v.lstrip("-").isdigit() else v
    txt, A, S = build(cfg)
    out = sys.argv[1] if len(sys.argv) > 1 else "k.s"
    open(out, "w").write(txt)
    print("instructions", A.nins, "nops", A.nnops, "loads", S.nloads, "bytes", len(txt))
```
